```python
import torch

def _softmax(x, axis=-1):
    return torch.softmax(x, dim=axis)
def _gelu(x):
    return torch.nn.functional.gelu(x, approximate="tanh")
def _silu(x):
    return torch.nn.functional.silu(x)
def _sigmoid(x):
    return torch.sigmoid(x)
def _layernorm(x, axis=-1, eps=1e-5):
    m = x.mean(dim=axis, keepdim=True)
    v = x.var(dim=axis, keepdim=True, unbiased=False)
    return (x - m) / torch.sqrt(v + eps)
def _scatter_add(tgt, idx, src, axis=0):
    return tgt.clone().index_add_(axis, idx, src)
def _segment_sum(src, seg, n):
    out = torch.zeros((n,) + src.shape[1:], dtype=src.dtype)
    return out.index_add_(0, seg, src)
def _pad(x, pw):
    flat = tuple(v for pair in reversed(pw) for v in pair)
    return torch.nn.functional.pad(x, flat)

kernel_name = 'concat_heads__mha_block_cached__gqa_block_cached__near_ridge'

def setup_inputs():

    _w = (lambda a: (lambda t: t.to(torch.bfloat16) if t.is_floating_point() else t)(torch.as_tensor(a)))
    def _A_setup():
        B, Sq, D = 8, 128, 512
        H, Sk, Dh = 32, 1024, 128
        return {
            "x": _w((lambda *s: torch.randn(*s, dtype=torch.bfloat16) * 0.8)(B, Sq, D)),
            "k_cache": _w((lambda *s: torch.randn(*s, dtype=torch.bfloat16) * 0.8)(B, H, Sk, Dh)),
            "v_cache": _w((lambda *s: torch.randn(*s, dtype=torch.bfloat16) * 0.05)(B, H, Sk, Dh)),
            "wq": _w((lambda *s: torch.randn(*s, dtype=torch.bfloat16) * 0.8)(D, H * Dh) * (D ** -0.5)),
            "wo": _w((lambda *s: torch.randn(*s, dtype=torch.bfloat16) * 0.05)(H * Dh, D) * ((H * Dh) ** -0.5)),
        }
    _A_in = _A_setup()

    def _B_setup():
        B, Sq, D = 8, 128, 512
        Hq, Hkv, Sk, Dh = 32, 32, 1024, 128
        assert Hq % Hkv == 0, (Hq, Hkv)
        return {
            "x": _w((lambda *s: torch.randn(*s, dtype=torch.bfloat16) * 0.8)(B, Sq, D)),
            "k_cache": _w((lambda *s: torch.randn(*s, dtype=torch.bfloat16) * 0.8)(B, Hkv, Sk, Dh)),
            "v_cache": _w((lambda *s: torch.randn(*s, dtype=torch.bfloat16) * 0.05)(B, Hkv, Sk, Dh)),
            "wq": _w((lambda *s: torch.randn(*s, dtype=torch.bfloat16) * 0.8)(D, Hq * Dh) * (D ** -0.5)),
            "wo": _w((lambda *s: torch.randn(*s, dtype=torch.bfloat16) * 0.05)(Hq * Dh, D) * ((Hq * Dh) ** -0.5)),
        }
    _B_in = _B_setup()

    return {
        "A_x": _A_in["x"],
        "A_k_cache": _A_in["k_cache"],
        "A_v_cache": _A_in["v_cache"],
        "A_wq": _A_in["wq"],
        "A_wo": _A_in["wo"],
        "B_x": _B_in["x"],
        "B_k_cache": _B_in["k_cache"],
        "B_v_cache": _B_in["v_cache"],
        "B_wq": _B_in["wq"],
        "B_wo": _B_in["wo"],
    }

def reference(A_x, A_k_cache, A_v_cache, A_wq, A_wo, B_x, B_k_cache, B_v_cache, B_wq, B_wo):
    def _A_ref(x, k_cache, v_cache, wq, wo):
        B, Sq, D = x.shape
        H, Dh = 32, 128
        q = (lambda x, *d: x.permute(*d))((x @ wq).reshape(B, Sq, H, Dh), 0, 2, 1, 3)
        scores = torch.einsum("bhqd,bhkd->bhqk", q, k_cache) * (Dh ** -0.5)
        p = _softmax(scores, axis=-1)
        o = torch.einsum("bhqk,bhkd->bhqd", p, v_cache)
        return (lambda x, *d: x.permute(*d))(o, 0, 2, 1, 3).reshape(B, Sq, H * Dh) @ wo

    def _B_ref(x, k_cache, v_cache, wq, wo):
        B, Sq, D = x.shape
        Hq, Dh = 32, 128
        Hkv = k_cache.shape[1]
        rep = Hq // Hkv
        q = (lambda x, *d: x.permute(*d))((x @ wq).reshape(B, Sq, Hq, Dh), 0, 2, 1, 3)
        k = (lambda x, n, axis: torch.repeat_interleave(x, n, dim=axis))(k_cache, rep, axis=1)
        v = (lambda x, n, axis: torch.repeat_interleave(x, n, dim=axis))(v_cache, rep, axis=1)
        scores = torch.einsum("bhqd,bhkd->bhqk", q, k) * (Dh ** -0.5)
        p = _softmax(scores, axis=-1)
        o = torch.einsum("bhqk,bhkd->bhqd", p, v)
        return (lambda x, *d: x.permute(*d))(o, 0, 2, 1, 3).reshape(B, Sq, Hq * Dh) @ wo

    a = _A_ref(A_x, A_k_cache, A_v_cache, A_wq, A_wo)
    b = _B_ref(B_x, B_k_cache, B_v_cache, B_wq, B_wo)
    return torch.concatenate([a, b], axis=-1)
```

```python
import sys, math
NAME = "concat_heads__mha_block_cached__gqa_block_cached__near_ridge"

class Asm:
    def __init__(s):
        s.L = []
        s.vmq = []
    def __call__(s, t): s.L.append("  " + t)
    def label(s, t): s.L.append(t + ":")
    def raw(s, t): s.L.append(t)
    def vm(s, t, tag):
        s(t); s.vmq.append(tag)
    def vmwait(s, tags, drop=True):
        if not isinstance(tags, (list, tuple, set)): tags = [tags]
        last = -1
        for i, t in enumerate(s.vmq):
            if t in tags: last = i
        if last < 0: return
        n = len(s.vmq) - 1 - last
        assert n <= 63, n
        s(f"s_waitcnt vmcnt({n})")
        s.vmq = s.vmq[last+1:]
    def text(s): return "\n".join(s.L) + "\n"

def vr(b, n=1): return f"v{b}" if n == 1 else f"v[{b}:{b+n-1}]"
def sr(b, n=1): return f"s{b}" if n == 1 else f"s[{b}:{b+n-1}]"

V_LANE = 1
V_KA = 2
V_VA = 10
V_DK = 14
V_DV = 18
V_DW = 19
V_DX = 20
V_L  = 21
V_T  = 22
V_L16 = 23
V_E  = 24
V_TMP = 28
V_Q  = 32
V_O  = 64
V_NM = 128
V_S  = [144, 160]
V_P  = [176, 184]
V_KF = 192
V_VF = 224
def XREG(s):
    return (128 + 4*s) if s < 24 else (32 + 4*(s-24))

S_K, S_V, S_X, S_WQ, S_WS, S_WO, S_OUT = 4, 8, 12, 16, 20, 24, 28
S_RET = 32
S_WV = 34; S_GRP = 35
S_BR = 52; S_B = 53; S_J = 54; S_SET = 55
S_KOFF = 56; S_VOFF = 57; S_WOFF = 58; S_XOFF = 59; S_LDSW = 60
S_H2OFF = 61; S_CNT = 62; S_KD = 63; S_VD = 64; S_KS = 65; S_VS = 66
S_THR = 67; S_T0 = 68; S_T1 = 69; S_OOFF = 70; S_VCUR = 71; S_T2 = 72; S_MYH = 73
S_STAMP = 80
S_C16K = 74

KSLOT = lambda n: (n % 3) * 16384
VSLOT = lambda n: 49152 + (n % 3) * 16384
WSLOT = lambda n: 98304 + (n % 4) * 16384
QSCALE = (1.0/math.sqrt(128.0)) * math.log2(math.e)
import struct
def f2u(f): return struct.unpack("<I", struct.pack("<f", f))[0]

KV_FLAGS = "nt"
W_FLAGS = ""
O_WS_OFF = 0
PART_WS_OFF = 16*1024*1024

def header(a, name):
    a.raw(f".globl {name}"); a.raw(".p2align 8"); a.raw(f".type {name},@function"); a.label(name)

def kd(a, name, vgpr=256, sgpr=96):
    a.raw(f".amdhsa_kernel {name}")
    a.raw(f"  .amdhsa_next_free_vgpr {vgpr}"); a.raw(f"  .amdhsa_next_free_sgpr {sgpr}"); a.raw(f"  .amdhsa_accum_offset {vgpr}")
    a.raw("  .amdhsa_group_segment_fixed_size 0"); a.raw("  .amdhsa_kernarg_size 104"); a.raw("  .amdhsa_user_sgpr_count 2")
    a.raw("  .amdhsa_user_sgpr_kernarg_segment_ptr 1"); a.raw("  .amdhsa_system_sgpr_workgroup_id_x 1"); a.raw(".end_amdhsa_kernel")

def setup_srds(a):
    a("s_load_dwordx16 s[36:51], s[0:1], 0")
    a("s_load_dwordx8 s[72:79], s[0:1], 64")
    a("s_load_dwordx2 s[20:21], s[0:1], 96")
    a("s_and_b32 s3, s2, 7")
    a(f"s_lshr_b32 s{S_BR}, s3, 2")
    a(f"s_and_b32 s{S_SET}, s3, 3")
    a(f"s_lshr_b32 s{S_B}, s2, 5")
    a(f"s_lshr_b32 s{S_J}, s2, 3")
    a(f"s_and_b32 s{S_J}, s{S_J}, 3")
    a(f"v_lshrrev_b32 v2, 6, v0")
    a(f"v_and_b32 v{V_LANE}, 63, v0")
    a(f"v_readfirstlane_b32 s{S_WV}, v2")
    for b, n in ((S_K, 1<<26), (S_V, 1<<26), (S_X, 1<<20), (S_WQ, 1<<22), (S_WS, 287309824), (S_WO, 1<<22), (S_OUT, 1<<21)):
        a(f"s_mov_b32 s{b+2}, {n}")
        a(f"s_mov_b32 s{b+3}, 0x20000")
    a(f"s_lshr_b32 s{S_GRP}, s{S_WV}, 2")
    a(f"s_and_b32 s{S_WV}, s{S_WV}, 3")
    a(f"s_lshl_b32 s{S_LDSW}, s{S_WV}, 12")
    a("s_waitcnt lgkmcnt(0)")
    a(f"s_cmp_eq_u32 s{S_BR}, 0")
    for b, sa, sb in ((S_X, 36, 46), (S_K, 38, 48), (S_V, 40, 50), (S_WQ, 42, 72), (S_WO, 44, 74)):
        a(f"s_cselect_b32 s{b}, s{sa}, s{sb}")
        a(f"s_cselect_b32 s{b+1}, s{sa+1}, s{sb+1}")
    a(f"s_mov_b32 s{S_OUT}, s76")
    a(f"s_mov_b32 s{S_OUT+1}, s77")

def setup_vtype_addr(a, base_imm=None, base_sgpr=None):
    t0, t1, t2, t3 = V_TMP, V_TMP+1, V_TMP+2, V_TMP+3
    a(f"v_bfe_u32 v{t0}, v{V_LANE}, 2, 2")
    a(f"v_lshrrev_b32 v{t1}, 5, v{V_LANE}")
    a(f"v_lshl_add_u32 v{t1}, v{t1}, 3, v{t0}")
    a(f"v_lshlrev_b32 v{t1}, 8, v{t1}")
    a(f"v_bfe_u32 v{t2}, v{V_LANE}, 4, 1")
    a(f"v_lshl_add_u32 v{t1}, v{t2}, 5, v{t1}")
    a(f"v_and_b32 v{t2}, 1, v{V_LANE}")
    a(f"v_lshl_add_u32 v{t1}, v{t2}, 4, v{t1}")
    a(f"v_bfe_u32 v{t2}, v{V_LANE}, 1, 1")
    a(f"v_lshl_add_u32 v{t1}, v{t2}, 3, v{t1}")
    if base_imm: a(f"v_add_u32 v{t1}, {base_imm}, v{t1}")
    if base_sgpr is not None: a(f"v_add_u32 v{t1}, s{base_sgpr}, v{t1}")
    for blk in range(4):
        a(f"v_xor_b32 v{t2}, {blk}, v{t0}")
        a(f"v_lshl_add_u32 v{V_VA+blk}, v{t2}, 6, v{t1}")

def setup_vtype_dma(a, dst, log2stride):
    t0, t1, t2 = V_TMP, V_TMP+1, V_TMP+2
    a(f"v_lshrrev_b32 v{t0}, 4, v{V_LANE}")
    a(f"v_and_b32 v{t1}, 15, v{V_LANE}")
    a(f"v_lshlrev_b32 v{t2}, 2, v{t0}")
    a(f"v_xor_b32 v{t1}, v{t1}, v{t2}")
    a(f"v_lshlrev_b32 v{t1}, 4, v{t1}")
    a(f"s_lshl_b32 s{S_T0}, s{S_WV}, 4")
    a(f"v_add_u32 v{t0}, s{S_T0}, v{t0}")
    a(f"v_lshl_add_u32 v{dst}, v{t0}, {log2stride}, v{t1}")

def dma_tile(a, srd, voffs, soff, ldsbase, gstep, flags, tag):
    a(f"s_add_u32 m0, s{S_LDSW}, {ldsbase}")
    if gstep == 1024:
        a("s_nop 0")
        for j in range(4):
            v = voffs[j] if isinstance(voffs, list) else voffs
            a.vm(f"buffer_load_dwordx4 v{v}, {sr(srd,4)}, s{soff} offen offset:{j*1024} {flags} lds".replace("  ", " "), tag)
    else:
        a(f"s_mov_b32 s{S_T0}, s{soff}")
        for j in range(4):
            a.vm(f"buffer_load_dwordx4 v{voffs}, {sr(srd,4)}, s{S_T0} offen offset:{j*1024} {flags} lds".replace("  ", " "), tag)
            if j < 3: a(f"s_add_u32 s{S_T0}, s{S_T0}, {gstep-1024}")

def proj_segs(a, pfx):
    for seg in range(8):
        a.label(f"{pfx}_seg{seg}")
        def rd(idx):
            ks, blk = idx >> 2, idx & 3
            d = V_VF + 4*(idx % 8)
            a(f"ds_read_b64_tr_b16 {vr(d,2)}, v{V_VA+blk} offset:{ks*4096}")
            a(f"ds_read_b64_tr_b16 {vr(d+2,2)}, v{V_VA+blk} offset:{ks*4096+1024}")
        for i in range(6): rd(i)
        for idx in range(16):
            ks, blk = idx >> 2, idx & 3
            issued = min(16, idx + 6)
            if idx % 2 == 0:
                a(f"s_waitcnt lgkmcnt({2*(issued - (idx+2))})")
            a(f"v_mfma_f32_32x32x16_bf16 {vr(V_O+16*blk,16)}, {vr(V_VF+4*(idx%8),4)}, {vr(XREG(4*seg+ks),4)}, {vr(V_O+16*blk,16)}")
            if idx + 6 < 16: rd(idx + 6)
        a(f"s_setpc_b64 {sr(S_RET,2)}")

def move_va(a, delta_imm=None, delta_sgpr=None):
    for blk in range(4):
        if delta_sgpr is not None: a(f"v_add_u32 v{V_VA+blk}, s{delta_sgpr}, v{V_VA+blk}")
        else: a(f"v_add_u32 v{V_VA+blk}, {delta_imm & 0xffffffff:#x}, v{V_VA+blk}")

def acc_to_frags(a, dst, scale_op):
    for m in range(8):
        b = V_O + 8*m
        for i in range(8):
            a(f"v_mul_f32 v{b+i}, {scale_op}, v{b+i}")
        for i in range(4):
            a(f"v_cvt_pk_bf16_f32 v{dst+4*m+i}, v{b+2*i}, v{b+2*i+1}")

def substep(a, par, has_qk, has_pv, has_sm, k_half, v_half, k_pre, k_next, upd_k=False, upd_v=False, uid=""):
    Sc, Sn, Pc, Pp = V_S[par], V_S[1-par], V_P[par], V_P[1-par]
    def krd(m, half): a(f"ds_read_b128 {vr(V_KF+4*m,4)}, v{V_KA+m} offset:{half*8192}")
    def vrd(idx):
        mm, blk = idx >> 2, idx & 3
        d = V_VF + 4*idx
        off = v_half*8192 + mm*4096
        a(f"ds_read_b64_tr_b16 {vr(d,2)}, v{V_VA+blk} offset:{off}")
        a(f"ds_read_b64_tr_b16 {vr(d+2,2)}, v{V_VA+blk} offset:{off+1024}")
    sm = []
    if has_sm:
        for i in range(16):
            grp = [f"v_exp_f32 v{V_E+i%4}, v{Sc+i}"]
            if i >= 2:
                j = i-1
                if j == 1: grp.append(f"v_add_f32 v{V_T}, v{V_E+0}, v{V_E+1}")
                else: grp.append(f"v_add_f32 v{V_T}, v{V_T}, v{V_E+j%4}")
                if j % 2 == 1: grp.append(f"v_cvt_pk_bf16_f32 v{Pc+j//2}, v{V_E+(j-1)%4}, v{V_E+j%4}")
            sm.append(grp)
    def smg(i):
        if has_sm and i < 16:
            for x in sm[i]: a(x)
    smi = 0
    if has_qk and not k_pre:
        for m in range(8): krd(m, k_half)
    if not has_qk and has_pv:
        for idx in range(4): vrd(idx)
    lead = 2
    for _ in range(lead): smg(smi); smi += 1
    if has_qk:
        for m in range(8):
            if m == 0: a("s_waitcnt lgkmcnt(4)")
            if m == 4: a(f"s_waitcnt lgkmcnt({8 if has_pv else 0})")
            c = vr(V_NM,16) if m == 0 else vr(Sn,16)
            a(f"v_mfma_f32_32x32x16_bf16 {vr(Sn,16)}, {vr(V_KF+4*m,4)}, {vr(V_Q+4*m,4)}, {c}")
            if has_pv: vrd(m)
            smg(smi); smi += 1
            if not has_pv: smg(smi); smi += 1
    if has_pv:
        for idx in range(8):
            mm, blk = idx >> 2, idx & 3
            if has_qk:
                if idx == 0: a("s_waitcnt lgkmcnt(8)")
                if idx == 4: a(f"s_waitcnt lgkmcnt({4 if k_next else 0})")
            else:
                if idx < 4: a(f"s_waitcnt lgkmcnt(6)")
                else: a(f"s_waitcnt lgkmcnt({2*(7-idx)})")
            a(f"v_mfma_f32_32x32x16_bf16 {vr(V_O+16*blk,16)}, {vr(V_VF+4*idx,4)}, {vr(Pp+4*mm,4)}, {vr(V_O+16*blk,16)}")
            if not has_qk and idx < 4: vrd(idx+4)
            if k_next: krd(idx, 1)
            if upd_k: a(f"v_add_u32 v{V_KA+idx}, s{S_KD}, v{V_KA+idx}")
            if upd_v and idx >= 4: a(f"v_add_u32 v{V_VA+idx-4}, s{S_VD}, v{V_VA+idx-4}")
            smg(smi); smi += 1
            if not has_qk: smg(smi); smi += 1
    elif k_next:
        for m in range(8): krd(m, 1)
    if has_sm:
        while smi < 16: smg(smi); smi += 1
        a("s_nop 0")
        a(f"v_add_f32 v{V_T}, v{V_T}, v{V_E+3}")
        a(f"v_cvt_pk_bf16_f32 v{Pc+7}, v{V_E+2}, v{V_E+3}")
        a(f"v_cmp_nge_f32 vcc, s{S_THR}, v{V_T}")
        a(f"s_cbranch_vccz L_ok{uid}")
        a(f"s_call_b64 {sr(S_RET,2)}, L_rare{par}")
        a.label(f"L_ok{uid}")
        a(f"v_add_f32 v{V_L}, v{V_L}, v{V_T}")

def rowmax(a, S, dst, tmp):
    a(f"v_max3_f32 v{dst}, v{S}, v{S+1}, v{S+2}")
    for i in range(3, 15, 2): a(f"v_max3_f32 v{dst}, v{dst}, v{S+i}, v{S+i+1}")
    a(f"v_max_f32 v{dst}, v{dst}, v{S+15}")
    a(f"v_mov_b32 v{tmp}, v{dst}")
    a("s_nop 1")
    a(f"v_permlane32_swap_b32 v{dst}, v{tmp}")
    a(f"v_max_f32 v{dst}, v{dst}, v{tmp}")

def rare(a, par):
    Sc, Sn, Pc = V_S[par], V_S[1-par], V_P[par]
    d, t = V_TMP, V_TMP+1
    a.label(f"L_rare{par}")
    a("s_nop 15")
    rowmax(a, Sc, d, t)
    a(f"v_max_f32 v{d}, 0, v{d}")
    a(f"v_exp_f32 v{t}, -v{d}")
    for i in range(16): a(f"v_sub_f32 v{V_NM+i}, v{V_NM+i}, v{d}")
    for i in range(16): a(f"v_sub_f32 v{Sc+i}, v{Sc+i}, v{d}")
    for i in range(16): a(f"v_sub_f32 v{Sn+i}, v{Sn+i}, v{d}")
    for i in range(64): a(f"v_mul_f32 v{V_O+i}, v{V_O+i}, v{t}")
    a(f"v_mul_f32 v{V_L}, v{V_L}, v{t}")
    for i in range(16): a(f"v_exp_f32 v{Sc+i}, v{Sc+i}")
    a("s_nop 0")
    a(f"v_add_f32 v{V_T}, v{Sc}, v{Sc+1}")
    for i in range(2, 16): a(f"v_add_f32 v{V_T}, v{V_T}, v{Sc+i}")
    for i in range(8): a(f"v_cvt_pk_bf16_f32 v{Pc+i}, v{Sc+2*i}, v{Sc+2*i+1}")
    a(f"s_setpc_b64 {sr(S_RET,2)}")

def slot_advance(a, sslot, sdelta):
    a(f"s_add_u32 s{sslot}, s{sslot}, 1")
    a(f"s_cmp_eq_u32 s{sslot}, 3")
    a(f"s_cselect_b32 s{sdelta}, {(-32768) & 0xffffffff:#x}, s{S_C16K}")
    a(f"s_cselect_b32 s{sslot}, 0, s{sslot}")

def attention(a):
    for m in range(8): a(f"ds_read_b128 {vr(V_KF+4*m,4)}, v{V_KA+m}")
    for i in range(64): a(f"v_mov_b32 v{V_O+i}, 0")
    a(f"v_mov_b32 v{V_L}, 0")
    for m in range(8):
        if m % 4 == 0: a(f"s_waitcnt lgkmcnt({4-m})")
        c = "0" if m == 0 else vr(V_S[0],16)
        a(f"v_mfma_f32_32x32x16_bf16 {vr(V_S[0],16)}, {vr(V_KF+4*m,4)}, {vr(V_Q+4*m,4)}, {c}")
    for m in range(8): a(f"ds_read_b128 {vr(V_KF+4*m,4)}, v{V_KA+m} offset:8192")
    slot_advance(a, S_KS, S_KD)
    a("s_nop 3")
    rowmax(a, V_S[0], V_TMP, V_TMP+1)
    for i in range(16): a(f"v_sub_f32 v{V_NM+i}, 0, v{V_TMP}")
    for i in range(16): a(f"v_sub_f32 v{V_S[0]+i}, v{V_S[0]+i}, v{V_TMP}")
    for m in range(8): a(f"v_add_u32 v{V_KA+m}, s{S_KD}, v{V_KA+m}")
    substep(a, 0, True, False, True, 1, 0, True, False, uid="p")
    a(f"s_mov_b32 s{S_CNT}, 0")
    a.label("L_att_loop")
    a(f"s_cmp_lg_u32 s{S_CNT}, 0")
    a("s_cbranch_scc1 L_att_w0")
    a("s_waitcnt vmcnt(8)")
    a("s_branch L_att_w1")
    a.label("L_att_w0")
    a("s_waitcnt vmcnt(0)")
    a.label("L_att_w1")
    a("s_barrier")
    slot_advance(a, S_KS, S_KD)
    slot_advance(a, S_VS, S_VD)
    substep(a, 1, True, True, True, 0, 0, False, True, uid="a")
    substep(a, 0, True, True, True, 1, 1, True, False, upd_k=True, upd_v=True, uid="b")
    a(f"s_add_u32 s{S_CNT}, s{S_CNT}, 1")
    a(f"s_cmp_lt_u32 s{S_CNT}, 15")
    a("s_cbranch_scc1 L_att_loop")
    a("s_barrier")
    substep(a, 1, False, True, True, 0, 0, False, False, uid="e")
    substep(a, 0, False, True, False, 0, 1, False, False, uid="f")

def finalize_o(a, flags=""):
    a(f"v_mov_b32 v{V_TMP}, v{V_L}")
    a("s_nop 1")
    a(f"v_permlane32_swap_b32 v{V_L}, v{V_TMP}")
    a(f"v_add_f32 v{V_L}, v{V_L}, v{V_TMP}")
    a(f"v_rcp_f32 v{V_L}, v{V_L}")
    a("s_nop 7")
    acc_to_frags(a, V_Q, f"v{V_L}")
    a(f"s_add_u32 s{S_T0}, s{S_OOFF}, 4096")
    for m in range(8):
        so = S_OOFF if m < 4 else S_T0
        a.vm(f"buffer_store_dwordx4 {vr(V_Q+4*m,4)}, v{V_L16}, {sr(S_WS,4)}, s{so} offen offset:{(m%4)*1024} {flags}".rstrip(), "ost")

def pkg(a, g):
    kn, vn = g+1, g
    if kn <= 31:
        if kn == 16: a(f"s_mov_b32 s{S_KOFF}, s{S_H2OFF}")
        dma_tile(a, S_K, [V_DK+j for j in range(4)], S_KOFF, KSLOT(kn), 1024, KV_FLAGS, f"p{g}")
        a(f"s_add_u32 s{S_KOFF}, s{S_KOFF}, 16384")
    if 0 <= vn <= 31:
        if vn == 16: a(f"s_mov_b32 s{S_VOFF}, s{S_H2OFF}")
        dma_tile(a, S_V, V_DV, S_VOFF, VSLOT(vn), 1024, KV_FLAGS, f"p{g}")
        a(f"s_add_u32 s{S_VOFF}, s{S_VOFF}, 16384")

def stamp(a, idx):
    pass

def kernel_attn(a, name):
    header(a, name)
    a("s_cmp_ge_u32 s2, 256")
    a("s_cbranch_scc1 L_end")
    setup_srds(a)
    a(f"s_lshl_b32 s{S_T1}, s{S_SET}, 3")
    a(f"s_add_u32 s{S_T1}, s{S_T1}, s{S_J}")
    a(f"s_lshl_b32 s{S_T2}, s{S_B}, 5")
    a(f"s_add_u32 s{S_T2}, s{S_T2}, s{S_T1}")
    a(f"s_lshl_b32 s{S_KOFF}, s{S_T2}, 18")
    a(f"s_mov_b32 s{S_VOFF}, s{S_KOFF}")
    a(f"s_add_u32 s{S_H2OFF}, s{S_KOFF}, {4<<18}")
    a(f"s_lshl_b32 s{S_WOFF}, s{S_T1}, 8")
    a(f"s_lshl_b32 s{S_XOFF}, s{S_B}, 17")
    a(f"s_lshl_b32 s{S_T0}, s{S_BR}, 8")
    a(f"s_add_u32 s{S_T0}, s{S_T0}, s{S_T2}")
    a(f"s_lshl_b32 s{S_T1}, s{S_GRP}, 2")
    a(f"s_add_u32 s{S_T0}, s{S_T0}, s{S_T1}")
    a(f"s_lshl_b32 s{S_T0}, s{S_T0}, 2")
    a(f"s_add_u32 s{S_T0}, s{S_T0}, s{S_WV}")
    a(f"s_lshl_b32 s{S_OOFF}, s{S_T0}, 13")
    a(f"s_mov_b32 s{S_THR}, 0x47800000")
    a(f"s_mov_b32 s{S_C16K}, 16384")
    a(f"v_and_b32 v{V_TMP}, 31, v{V_LANE}")
    a(f"s_lshl_b32 s{S_T0}, s{S_WV}, 5")
    a(f"v_add_u32 v{V_TMP}, s{S_T0}, v{V_TMP}")
    a(f"v_lshrrev_b32 v{V_TMP+1}, 5, v{V_LANE}")
    a(f"v_lshlrev_b32 v{V_TMP+1}, 4, v{V_TMP+1}")
    a(f"v_lshl_add_u32 v{V_DX}, v{V_TMP}, 10, v{V_TMP+1}")
    a(f"v_lshlrev_b32 v{V_L16}, 4, v{V_LANE}")
    setup_vtype_dma(a, V_DW, 13)
    setup_vtype_dma(a, V_DV, 8)
    a(f"v_lshrrev_b32 v{V_TMP}, 4, v{V_LANE}")
    a(f"v_and_b32 v{V_TMP+1}, 15, v{V_LANE}")
    a(f"v_xor_b32 v{V_TMP+1}, v{V_TMP+1}, v{V_TMP}")
    a(f"v_lshlrev_b32 v{V_TMP}, 8, v{V_TMP}")
    a(f"v_add_u32 v{V_TMP}, s{S_LDSW}, v{V_TMP}")
    for j in range(4):
        a(f"v_xor_b32 v{V_TMP+2}, {4*j}, v{V_TMP+1}")
        a(f"v_lshl_add_u32 v{V_DK+j}, v{V_TMP+2}, 4, v{V_TMP}")
    a(f"s_cmp_eq_u32 s{S_GRP}, 0")
    a("s_cbranch_scc0 L_grpB")

    def k_addr_setup(base):
        t0, t1, t2, t3 = V_TMP, V_TMP+1, V_TMP+2, V_TMP+3
        a(f"v_and_b32 v{t0}, 0x13, v{V_LANE}")
        a(f"v_bfe_u32 v{t1}, v{V_LANE}, 2, 1")
        a(f"v_lshl_or_b32 v{t0}, v{t1}, 3, v{t0}")
        a(f"v_bfe_u32 v{t1}, v{V_LANE}, 3, 1")
        a(f"v_lshl_or_b32 v{t0}, v{t1}, 2, v{t0}")
        a(f"v_and_b32 v{t1}, 15, v{t0}")
        a(f"v_lshrrev_b32 v{t2}, 5, v{V_LANE}")
        a(f"v_xor_b32 v{t1}, v{t1}, v{t2}")
        a(f"v_lshlrev_b32 v{t0}, 8, v{t0}")
        if base: a(f"v_add_u32 v{t0}, {base}, v{t0}")
        for m in range(8):
            a(f"v_xor_b32 v{t2}, {2*m}, v{t1}")
            a(f"v_lshl_add_u32 v{V_KA+m}, v{t2}, 4, v{t0}")

    W1SLOTS = [VSLOT(0), KSLOT(2), VSLOT(1), WSLOT(0), WSLOT(1), WSLOT(2), WSLOT(3), VSLOT(2)]
    a.vmq = []
    for s in range(32):
        a.vm(f"buffer_load_dwordx4 {vr(XREG(s),4)}, v{V_DX}, {sr(S_X,4)}, s{S_XOFF} offen offset:{s*32}", f"x{s//4}")
    setup_vtype_addr(a, base_imm=W1SLOTS[0])
    k_addr_setup(KSLOT(0))
    for i in range(64): a(f"v_mov_b32 v{V_O+i}, 0")
    for i in range(8):
        a.vmwait(f"x{i}")
        a("s_barrier")
        a(f"s_call_b64 {sr(S_RET,2)}, PJ_seg{i}")
        move_va(a, (W1SLOTS[i+1] if i < 7 else VSLOT(0)) - W1SLOTS[i])
    a(f"s_mov_b32 s{S_T0}, {f2u(QSCALE):#x}")
    a("s_nop 7")
    acc_to_frags(a, V_Q, f"s{S_T0}")
    a(f"s_mov_b32 s{S_KS}, 0")
    a(f"s_mov_b32 s{S_VS}, 0")
    a("s_barrier")
    a.label("L_att_entry")
    attention(a)
    a(f"s_cmp_eq_u32 s{S_GRP}, 0")
    a("s_cbranch_scc0 L_B_fin")
    a.vmq = []
    a(f"s_add_u32 s{S_KOFF}, s{S_H2OFF}, {3*16384}")
    a(f"s_add_u32 s{S_VOFF}, s{S_H2OFF}, {2*16384}")
    for g in range(16, 32):
        a.vmwait(f"p{g}")
        a("s_barrier")
        if g + 2 <= 31: pkg(a, g+2)
        if g == 16: finalize_o(a)
    a("s_branch L_end")
    a.label("L_B_fin")
    finalize_o(a)
    a("s_branch L_end")

    a.label("L_grpB")
    a.vmq = []
    def w1(i):
        dma_tile(a, S_WQ, V_DW, S_WOFF, W1SLOTS[i], 4*8192, W_FLAGS, f"w1_{i}")
        a(f"s_add_u32 s{S_WOFF}, s{S_WOFF}, {64*8192}")
    def ktile(n, tag):
        dma_tile(a, S_K, [V_DK+j for j in range(4)], S_KOFF, KSLOT(n), 1024, KV_FLAGS, tag)
        a(f"s_add_u32 s{S_KOFF}, s{S_KOFF}, 16384")
    def vtile(n, tag):
        dma_tile(a, S_V, V_DV, S_VOFF, VSLOT(n), 1024, KV_FLAGS, tag)
        a(f"s_add_u32 s{S_VOFF}, s{S_VOFF}, 16384")
    w1(0); w1(1); ktile(0, "p-1"); w1(2); w1(3); w1(4); ktile(1, "p0"); w1(5); w1(6); w1(7)
    a(f"s_add_u32 s{S_WOFF}, s{S_WOFF}, {(4*256 - 512*8192) & 0xffffffff:#x}")
    setup_vtype_addr(a, base_imm=WSLOT(0))
    k_addr_setup(KSLOT(16))
    for i in range(64): a(f"v_mov_b32 v{V_O+i}, 0")
    for i in range(8):
        a.vmwait(f"w1_{i}")
        a("s_barrier")
        if i == 1: vtile(0, "p0")
        if i == 2: ktile(2, "p1")
        if i == 3: vtile(1, "p1")
    a.vmwait("p-1")
    a("s_barrier")
    for g in range(0, 16):
        tags = [f"p{g}"]
        if 2 <= g <= 9: tags += [f"w2_{g-2}"]
        a.vmwait(tags)
        a("s_barrier")
        pkg(a, g+2)
        if g <= 7:
            dma_tile(a, S_WQ, V_DW, S_WOFF, WSLOT(g), 4*8192, W_FLAGS, f"w2_{g}")
            a(f"s_add_u32 s{S_WOFF}, s{S_WOFF}, {64*8192}")
            for s in range(4*g, 4*g+4):
                a.vm(f"buffer_load_dwordx4 {vr(XREG(s),4)}, v{V_DX}, {sr(S_X,4)}, s{S_XOFF} offen offset:{s*32}", f"w2_{g}")
        if 2 <= g <= 9:
            i = g-2
            a(f"s_call_b64 {sr(S_RET,2)}, PJ_seg{i}")
            move_va(a, (WSLOT(i+1) if i < 7 else VSLOT(16)) - WSLOT(i))
        if g == 10:
            a(f"s_mov_b32 s{S_T0}, {f2u(QSCALE):#x}")
            acc_to_frags(a, V_Q, f"s{S_T0}")
            a(f"s_mov_b32 s{S_KS}, {16%3}")
            a(f"s_mov_b32 s{S_VS}, {16%3}")
    assert a.vmq == ["p16"]*8 + ["p17"]*8, a.vmq
    a("s_branch L_att_entry")
    a.label("L_end")
    a("s_endpgm")
    rare(a, 0); rare(a, 1)
    proj_segs(a, "PJ")

def kernel_oproj(a, name):
    header(a, name)
    a("s_cmp_ge_u32 s2, 256")
    a("s_cbranch_scc1 L2_end")
    setup_srds(a)
    a(f"v_lshlrev_b32 v{V_L16}, 4, v{V_LANE}")
    setup_vtype_dma(a, V_DW, 10)
    setup_vtype_addr(a)
    a(f"s_lshl_b32 s{S_WOFF}, s{S_SET}, 20")
    a(f"s_lshl_b32 s{S_T0}, s{S_J}, 8")
    a(f"s_add_u32 s{S_WOFF}, s{S_WOFF}, s{S_T0}")
    a(f"s_lshl_b32 s{S_T0}, s{S_BR}, 3")
    a(f"s_add_u32 s{S_T0}, s{S_T0}, s{S_B}")
    a(f"s_lshl_b32 s{S_T0}, s{S_T0}, 2")
    a(f"s_add_u32 s{S_T0}, s{S_T0}, s{S_SET}")
    a(f"s_lshl_b32 s{S_T0}, s{S_T0}, 5")
    a(f"s_add_u32 s{S_T0}, s{S_T0}, s{S_WV}")
    a(f"s_lshl_b32 s{S_OOFF}, s{S_T0}, 13")
    for i in range(64): a(f"v_mov_b32 v{V_O+i}, 0")
    a(f"s_mov_b32 s{S_CNT}, 0")
    a.label("L2_loop")
    a.vmq = []
    for i in range(8):
        dma_tile(a, S_WO, V_DW, S_WOFF, i*16384, 4096, W_FLAGS, f"t{i}")
        a(f"s_add_u32 s{S_WOFF}, s{S_WOFF}, {64*1024}")
        for s in range(4*i, 4*i+4):
            a.vm(f"buffer_load_dwordx4 {vr(XREG(s),4)}, v{V_L16}, {sr(S_WS,4)}, s{S_OOFF} offen offset:{(s%4)*1024}", f"t{i}")
        a(f"s_add_u32 s{S_OOFF}, s{S_OOFF}, {4096 if i%2==0 else 32768-4096}")
        if i == 6: a.vmwait("t0")
    for i in range(8):
        a.vmwait(f"t{i}")
        a("s_barrier")
        a(f"s_call_b64 {sr(S_RET,2)}, P2_seg{i}")
        move_va(a, 16384 if i < 7 else -7*16384)
    a("s_barrier")
    a(f"s_add_u32 s{S_CNT}, s{S_CNT}, 1")
    a(f"s_cmp_lt_u32 s{S_CNT}, 2")
    a("s_cbranch_scc1 L2_loop")
    a(f"s_lshl_b32 s{S_T0}, s2, 2")
    a(f"s_add_u32 s{S_T0}, s{S_T0}, s{S_WV}")
    a(f"s_lshl_b32 s{S_T0}, s{S_T0}, 14")
    a(f"s_add_u32 s{S_T0}, s{S_T0}, {PART_WS_OFF}")
    a("s_nop 7")
    for i in range(16):
        a(f"buffer_store_dwordx4 {vr(V_O+4*i,4)}, v{V_L16}, {sr(S_WS,4)}, s{S_T0} offen offset:{(i%4)*1024}")
        if i % 4 == 3: a(f"s_add_u32 s{S_T0}, s{S_T0}, 4096")
    a.label("L2_end")
    a("s_endpgm")
    proj_segs(a, "P2")

def kernel_reduce(a, name):
    header(a, name)
    a("s_cmp_ge_u32 s2, 256")
    a("s_cbranch_scc1 L3_end")
    setup_srds(a)
    a(f"v_lshlrev_b32 v{V_L16}, 4, v{V_LANE}")
    a(f"s_and_b32 s{S_T0}, s2, 0xfc")
    a(f"s_lshl_b32 s{S_T0}, s{S_T0}, 2")
    a(f"s_add_u32 s{S_T0}, s{S_T0}, s{S_SET}")
    a(f"s_lshl_b32 s{S_T0}, s{S_T0}, 14")
    a(f"s_add_u32 s{S_T0}, s{S_T0}, s{S_LDSW}")
    a(f"s_add_u32 s{S_T0}, s{S_T0}, {PART_WS_OFF}")
    for s in range(4):
        for i in range(4):
            a(f"buffer_load_dwordx4 {vr(32+16*s+4*i,4)}, v{V_L16}, {sr(S_WS,4)}, s{S_T0} offen offset:{i*1024}")
        a(f"s_add_u32 s{S_T0}, s{S_T0}, 65536")
    a(f"v_and_b32 v{V_TMP}, 31, v{V_LANE}")
    a(f"v_lshrrev_b32 v{V_TMP+1}, 5, v{V_LANE}")
    a(f"v_lshlrev_b32 v{V_TMP+1}, 4, v{V_TMP+1}")
    a(f"v_lshl_add_u32 v{V_TMP}, v{V_TMP}, 11, v{V_TMP+1}")
    a(f"s_lshl_b32 s{S_T0}, s{S_B}, 2")
    a(f"s_add_u32 s{S_T0}, s{S_T0}, s{S_SET}")
    a(f"s_lshl_b32 s{S_T0}, s{S_T0}, 16")
    a(f"s_lshl_b32 s{S_T1}, s{S_BR}, 10")
    a(f"s_add_u32 s{S_T0}, s{S_T0}, s{S_T1}")
    a(f"s_lshl_b32 s{S_T1}, s{S_J}, 8")
    a(f"s_add_u32 s{S_T0}, s{S_T0}, s{S_T1}")
    a(f"s_lshl_b32 s{S_T1}, s{S_WV}, 6")
    a(f"s_add_u32 s{S_T0}, s{S_T0}, s{S_T1}")
    a("s_waitcnt vmcnt(0)")
    for i in range(16):
        a(f"v_add_f32 v{32+i}, v{32+i}, v{48+i}")
        a(f"v_add_f32 v{64+i}, v{64+i}, v{80+i}")
        a(f"v_add_f32 v{32+i}, v{32+i}, v{64+i}")
    for i in range(8): a(f"v_cvt_pk_bf16_f32 v{96+i}, v{32+2*i}, v{33+2*i}")
    a(f"buffer_store_dwordx4 v[96:99], v{V_TMP}, {sr(S_OUT,4)}, s{S_T0} offen")
    a(f"buffer_store_dwordx4 v[100:103], v{V_TMP}, {sr(S_OUT,4)}, s{S_T0} offen offset:32")
    a.label("L3_end")
    a("s_endpgm")

def main(fn):
    a = Asm()
    a.raw(f"; @launch kernel=attn_kernel grid=(256,1,1) block=(512,1,1) lds=163840")
    a.raw(f"; @launch kernel=oproj_kernel grid=(256,1,1) block=(256,1,1) lds=131072")
    a.raw(f"; @launch kernel=reduce_kernel grid=(256,1,1) block=(256,1,1) lds=0")
    a.raw('.amdgcn_target "amdgcn-amd-amdhsa--gfx950"')
    a.raw(".text")
    kernel_attn(a, "attn_kernel")
    kernel_oproj(a, "oproj_kernel")
    kernel_reduce(a, "reduce_kernel")
    a.raw('.section .rodata,"a"')
    for n, v in (("attn_kernel", 256), ("oproj_kernel", 256), ("reduce_kernel", 128)):
        a.raw(".p2align 6"); kd(a, n, v)
    open(fn, "w").write(a.text())

if __name__ == "__main__":
    main(sys.argv[1] if len(sys.argv) > 1 else "k1.s")
```

```python
import sys, math, os, struct
NAME = "concat_heads__mha_block_cached__gqa_block_cached__near_ridge"
E = os.environ.get

class Asm:
    def __init__(s):
        s.L = []; s.vmq = []
    def __call__(s, t): s.L.append("  " + " ".join(t.split()))
    def label(s, t): s.L.append(t + ":")
    def raw(s, t): s.L.append(t)
    def vm(s, t, tag):
        s(t); s.vmq.append(tag)
    def vmwait(s, tags):
        if not isinstance(tags, (list, tuple, set)): tags = [tags]
        last = -1
        for i, t in enumerate(s.vmq):
            if t in tags: last = i
        if last < 0: return
        n = len(s.vmq) - 1 - last
        assert n <= 63, n
        s(f"s_waitcnt vmcnt({n})")
        s.vmq = s.vmq[last+1:]
    def vmall(s):
        s("s_waitcnt vmcnt(0)"); s.vmq = []
    def text(s): return "\n".join(s.L) + "\n"

def vr(b, n=1): return f"v{b}" if n == 1 else f"v[{b}:{b+n-1}]"
def sr(b, n=1): return f"s{b}" if n == 1 else f"s[{b}:{b+n-1}]"
def f2u(f): return struct.unpack("<I", struct.pack("<f", f))[0]
def u32(x): return f"{x & 0xffffffff:#x}"

V_LANE = 1
V_KA = 2
V_VA = 10
V_DK = 14
V_DV = 18
V_DW = 19
V_FL = 20
V_L  = 21
V_T  = 22
V_L16 = 23
V_E  = 24
V_TMP = 28
V_ST = 31
V_Q  = 32
V_O  = 64
V_NM = 128
V_S  = [144, 160]
V_P  = [176, 184]
V_KF = 192
V_VF = 224
def XREG(s): return (128 + 4*s) if s < 24 else (32 + 4*(s-24))

S_K, S_V, S_X, S_WQ, S_WS, S_WO, S_OUT = 4, 8, 12, 16, 20, 24, 28
S_RET = 32
S_WV = 34; S_GRP = 35
S_DBG = 36
S_BR = 52; S_B = 53; S_J = 54; S_SET = 55
S_KOFF = 56; S_VOFF = 57; S_WOFF = 58; S_XOFF = 59; S_LDSW = 60
S_H2OFF = 61; S_CNT = 62; S_KD = 63; S_VD = 64; S_KS = 65; S_VS = 66
S_THR = 67; S_T0 = 68; S_T1 = 69; S_OOFF = 70; S_T2 = 71
S_C16K = 40; S_ROT = 41; S_WBASE = 42; S_XBASE = 43; S_HALF = 44; S_OSET = 45; S_FLG = 46; S_T3 = 47; S_WOB = 48
S_EX = 50
S_STAMP = 80

KSLOT = lambda n: (n % 3) * 16384
VSLOT = lambda n: 49152 + (n % 3) * 16384
WSLOT = lambda n: 98304 + (n % 4) * 16384
QSCALE = (1.0/math.sqrt(128.0)) * math.log2(math.e)

KV_FLAGS = E("KVF", "nt")
WQ_FLAGS = E("WQF", "nt")
WO_FLAGS = E("WOF", "nt")
X_FLAGS = E("XF", "nt")
O_WS_OFF = 0
PART_WS_OFF = 16*1024*1024
FLAG_WS_OFF = 32*1024*1024
STAMP_WS_OFF = 64*1024*1024
STAMPS = False
SPIN_CAP = 0x40000

def stamp(a, idx):
    if not STAMPS: return
    a(f"s_memrealtime s[{S_STAMP}:{S_STAMP+1}]")
    a("s_waitcnt lgkmcnt(0)")
    a(f"v_writelane_b32 v{V_ST}, s{S_STAMP}, {idx}")
def stamp_flush(a):
    if not STAMPS: return
    a(f"s_lshl_b32 s{S_STAMP}, s2, 3")
    a(f"s_lshl_b32 s{S_STAMP+1}, s{S_GRP}, 2")
    a(f"s_add_u32 s{S_STAMP}, s{S_STAMP}, s{S_STAMP+1}")
    a(f"s_add_u32 s{S_STAMP}, s{S_STAMP}, s{S_WV}")
    a(f"s_lshl_b32 s{S_STAMP}, s{S_STAMP}, 8")
    a(f"s_add_u32 s{S_STAMP}, s{S_STAMP}, {STAMP_WS_OFF}")
    a(f"v_lshlrev_b32 v{V_TMP}, 2, v{V_LANE}")
    a(f"buffer_store_dword v{V_ST}, v{V_TMP}, {sr(S_WS,4)}, s{S_STAMP} offen")

def setup_srds(a):
    a("s_load_dwordx16 s[36:51], s[0:1], 0")
    a("s_load_dwordx8 s[72:79], s[0:1], 64")
    a("s_load_dwordx2 s[20:21], s[0:1], 96")
    a("s_and_b32 s3, s2, 7")
    a(f"s_lshr_b32 s{S_BR}, s3, 2")
    a(f"s_and_b32 s{S_SET}, s3, 3")
    a(f"s_lshr_b32 s{S_B}, s2, 5")
    a(f"s_lshr_b32 s{S_J}, s2, 3")
    a(f"s_and_b32 s{S_J}, s{S_J}, 3")
    a(f"v_lshrrev_b32 v2, 6, v0")
    a(f"v_and_b32 v{V_LANE}, 63, v0")
    a(f"v_readfirstlane_b32 s{S_WV}, v2")
    for b, n in ((S_K, 1<<26), (S_V, 1<<26), (S_X, 1<<20), (S_WQ, 1<<22), (S_WS, 287309824), (S_WO, 1<<22), (S_OUT, 1<<21)):
        a(f"s_mov_b32 s{b+2}, {n}")
        a(f"s_mov_b32 s{b+3}, 0x20000")
    a(f"s_lshr_b32 s{S_GRP}, s{S_WV}, 2")
    a(f"s_and_b32 s{S_WV}, s{S_WV}, 3")
    a(f"s_lshl_b32 s{S_LDSW}, s{S_WV}, 12")
    a("s_waitcnt lgkmcnt(0)")
    a(f"s_cmp_eq_u32 s{S_BR}, 0")
    for b, sa, sb in ((S_X, 36, 46), (S_K, 38, 48), (S_V, 40, 50), (S_WQ, 42, 72), (S_WO, 44, 74)):
        a(f"s_cselect_b32 s{b}, s{sa}, s{sb}")
        a(f"s_cselect_b32 s{b+1}, s{sa+1}, s{sb+1}")
    a(f"s_mov_b32 s{S_OUT}, s76")
    a(f"s_mov_b32 s{S_OUT+1}, s77")
    a(f"s_mov_b32 s{S_DBG}, s78")
    a(f"s_mov_b32 s{S_DBG+1}, s79")
    a(f"s_mov_b32 s{S_DBG+2}, 256")
    a(f"s_mov_b32 s{S_DBG+3}, 0x20000")

def setup_vtype_addr(a, base_imm, xor_sgpr=None):
    t0, t1, t2 = V_TMP, V_TMP+1, V_TMP+2
    a(f"v_bfe_u32 v{t0}, v{V_LANE}, 2, 2")
    a(f"v_lshrrev_b32 v{t1}, 5, v{V_LANE}")
    a(f"v_lshl_add_u32 v{t1}, v{t1}, 3, v{t0}")
    a(f"v_lshlrev_b32 v{t1}, 8, v{t1}")
    a(f"v_bfe_u32 v{t2}, v{V_LANE}, 4, 1")
    a(f"v_lshl_add_u32 v{t1}, v{t2}, 5, v{t1}")
    a(f"v_and_b32 v{t2}, 1, v{V_LANE}")
    a(f"v_lshl_add_u32 v{t1}, v{t2}, 4, v{t1}")
    a(f"v_bfe_u32 v{t2}, v{V_LANE}, 1, 1")
    a(f"v_lshl_add_u32 v{t1}, v{t2}, 3, v{t1}")
    if base_imm: a(f"v_add_u32 v{t1}, {base_imm}, v{t1}")
    if xor_sgpr is not None: a(f"v_xor_b32 v{t0}, s{xor_sgpr}, v{t0}")
    for blk in range(4):
        a(f"v_xor_b32 v{t2}, {blk}, v{t0}")
        a(f"v_lshl_add_u32 v{V_VA+blk}, v{t2}, 6, v{t1}")

def setup_vtype_dma(a, dst, log2stride):
    t0, t1, t2 = V_TMP, V_TMP+1, V_TMP+2
    a(f"v_lshrrev_b32 v{t0}, 4, v{V_LANE}")
    a(f"v_and_b32 v{t1}, 15, v{V_LANE}")
    a(f"v_lshlrev_b32 v{t2}, 2, v{t0}")
    a(f"v_xor_b32 v{t1}, v{t1}, v{t2}")
    a(f"v_lshlrev_b32 v{t1}, 4, v{t1}")
    a(f"s_lshl_b32 s{S_T0}, s{S_WV}, 4")
    a(f"v_add_u32 v{t0}, s{S_T0}, v{t0}")
    a(f"v_lshl_add_u32 v{dst}, v{t0}, {log2stride}, v{t1}")

def setup_ktype_dma(a, dst, log2stride):
    t0, t1, t2 = V_TMP, V_TMP+1, V_TMP+2
    a(f"v_lshrrev_b32 v{t0}, 4, v{V_LANE}")
    a(f"v_and_b32 v{t1}, 15, v{V_LANE}")
    a(f"v_xor_b32 v{t1}, v{t1}, v{t0}")
    a(f"s_lshl_b32 s{S_T0}, s{S_WV}, 4")
    a(f"v_add_u32 v{t0}, s{S_T0}, v{t0}")
    a(f"v_lshlrev_b32 v{t0}, {log2stride}, v{t0}")
    for j in range(4):
        a(f"v_xor_b32 v{t2}, {4*j}, v{t1}")
        a(f"v_lshl_add_u32 v{dst+j}, v{t2}, 4, v{t0}")

def k_addr_setup(a):
    t0, t1, t2 = V_TMP, V_TMP+1, V_TMP+2
    a(f"v_and_b32 v{t0}, 0x13, v{V_LANE}")
    a(f"v_bfe_u32 v{t1}, v{V_LANE}, 2, 1")
    a(f"v_lshl_or_b32 v{t0}, v{t1}, 3, v{t0}")
    a(f"v_bfe_u32 v{t1}, v{V_LANE}, 3, 1")
    a(f"v_lshl_or_b32 v{t0}, v{t1}, 2, v{t0}")
    a(f"v_and_b32 v{t1}, 15, v{t0}")
    a(f"v_lshrrev_b32 v{t2}, 5, v{V_LANE}")
    a(f"v_xor_b32 v{t1}, v{t1}, v{t2}")
    a(f"v_lshlrev_b32 v{t0}, 8, v{t0}")
    for m in range(8):
        a(f"v_xor_b32 v{t2}, {2*m}, v{t1}")
        a(f"v_lshl_add_u32 v{V_KA+m}, v{t2}, 4, v{t0}")

def dma(a, srd, voffs, soff, ldsbase, gstep, flags, tag, js=(0,1,2,3)):
    a(f"s_add_u32 m0, s{S_LDSW}, {ldsbase}")
    if gstep == 1024:
        a("s_nop 0")
        for j in js:
            v = voffs[j] if isinstance(voffs, list) else voffs
            a.vm(f"buffer_load_dwordx4 v{v}, {sr(srd,4)}, s{soff} offen offset:{j*1024} {flags} lds", tag)
    else:
        for n, j in enumerate(js):
            v = voffs[j] if isinstance(voffs, list) else voffs
            if j == 0: a(f"s_mov_b32 s{S_T0}, s{soff}")
            else: a(f"s_add_u32 s{S_T0}, s{soff}, {j*(gstep-1024)}")
            a.vm(f"buffer_load_dwordx4 v{v}, {sr(srd,4)}, s{S_T0} offen offset:{j*1024} {flags} lds", tag)

def mfma(d, x, y, c): return f"v_mfma_f32_32x32x16_bf16 {vr(d,16)}, {vr(x,4)}, {vr(y,4)}, {c if isinstance(c,str) else vr(c,16)}"

def seg_flush(a, seg):
    for idx in range(12, 16):
        blk = idx & 3
        a(mfma(V_O+16*blk, V_VF+4*(idx%8), XREG(4*seg+3), V_O+16*blk))

def proj_segs(a):
    for seg in range(8):
        a.label(f"PJ{seg}")
        def rd(idx):
            ks, blk = idx >> 2, idx & 3
            d = V_VF + 4*(idx % 8)
            a(f"ds_read_b64_tr_b16 {vr(d,2)}, v{V_VA+blk} offset:{ks*4096}")
            a(f"ds_read_b64_tr_b16 {vr(d+2,2)}, v{V_VA+blk} offset:{ks*4096+1024}")
        for i in range(3): rd(i)
        a(f"s_cbranch_scc1 PJ{seg}_f")
        seg_flush(a, (seg-1) % 8)
        a.label(f"PJ{seg}_f")
        a("s_waitcnt lgkmcnt(6)")
        for i in range(3, 7): rd(i)
        issued = 7
        for idx in range(12):
            ks, blk = idx >> 2, idx & 3
            if idx % 2 == 0: a(f"s_waitcnt lgkmcnt({2*(issued - (idx+2))})")
            a(mfma(V_O+16*blk, V_VF+4*(idx%8), XREG(4*seg+ks), V_O+16*blk))
            if issued < 16 and idx >= 0:
                assert issued - 8 <= idx - 1
                rd(issued); issued += 1
        assert issued == 16
        a("s_waitcnt lgkmcnt(0)")
        a(f"s_setpc_b64 {sr(S_RET,2)}")

def call_seg(a, seg, fresh):
    a(f"s_cmp_eq_u32 0, {0 if fresh else 1}")
    a(f"s_call_b64 {sr(S_RET,2)}, PJ{seg}")

def move_va(a, delta):
    if delta == 0: return
    for blk in range(4): a(f"v_add_u32 v{V_VA+blk}, {u32(delta)}, v{V_VA+blk}")

def acc_to_frags(a, dstf, scale_op):
    for m in range(8):
        b = V_O + 8*m
        for i in range(8): a(f"v_mul_f32 v{b+i}, {scale_op}, v{b+i}")
        for i in range(4): a(f"v_cvt_pk_bf16_f32 v{dstf(m)+i}, v{b+2*i}, v{b+2*i+1}")

def substep(a, par, has_qk, has_pv, has_sm, k_half, v_half, k_pre, k_next, upd_k=False, upd_v=False, uid=""):
    Sc, Sn, Pc, Pp = V_S[par], V_S[1-par], V_P[par], V_P[1-par]
    def krd(m, half): a(f"ds_read_b128 {vr(V_KF+4*m,4)}, v{V_KA+m} offset:{half*8192}")
    def vrd(idx):
        mm, blk = idx >> 2, idx & 3
        d = V_VF + 4*idx
        off = v_half*8192 + mm*4096
        a(f"ds_read_b64_tr_b16 {vr(d,2)}, v{V_VA+blk} offset:{off}")
        a(f"ds_read_b64_tr_b16 {vr(d+2,2)}, v{V_VA+blk} offset:{off+1024}")
    sm = []
    if has_sm:
        for i in range(16):
            grp = [f"v_exp_f32 v{V_E+i%4}, v{Sc+i}"]
            if i >= 2:
                j = i-1
                if j == 1: grp.append(f"v_add_f32 v{V_T}, v{V_E+0}, v{V_E+1}")
                else: grp.append(f"v_add_f32 v{V_T}, v{V_T}, v{V_E+j%4}")
                if j % 2 == 1: grp.append(f"v_cvt_pk_bf16_f32 v{Pc+j//2}, v{V_E+(j-1)%4}, v{V_E+j%4}")
            sm.append(grp)
    def smg(i):
        if has_sm and i < 16:
            for x in sm[i]: a(x)
    smi = 0
    if has_qk and not k_pre:
        for m in range(8): krd(m, k_half)
    if not has_qk and has_pv:
        for idx in range(4): vrd(idx)
    lead = 2
    for _ in range(lead): smg(smi); smi += 1
    if has_qk:
        for m in range(8):
            if m == 0: a("s_waitcnt lgkmcnt(4)")
            if m == 4: a(f"s_waitcnt lgkmcnt({8 if has_pv else 0})")
            a(mfma(Sn, V_KF+4*m, V_Q+4*m, V_NM if m == 0 else Sn))
            if has_pv: vrd(m)
            smg(smi); smi += 1
            if not has_pv: smg(smi); smi += 1
    if has_pv:
        for idx in range(8):
            mm, blk = idx >> 2, idx & 3
            if has_qk:
                if idx == 0: a("s_waitcnt lgkmcnt(8)")
                if idx == 4: a(f"s_waitcnt lgkmcnt({4 if k_next else 0})")
            else:
                if idx < 4: a(f"s_waitcnt lgkmcnt(6)")
                else: a(f"s_waitcnt lgkmcnt({2*(7-idx)})")
            a(mfma(V_O+16*blk, V_VF+4*idx, Pp+4*mm, V_O+16*blk))
            if not has_qk and idx < 4: vrd(idx+4)
            if k_next: krd(idx, 1)
            if upd_k: a(f"v_add_u32 v{V_KA+idx}, s{S_KD}, v{V_KA+idx}")
            if upd_v and idx >= 4: a(f"v_add_u32 v{V_VA+idx-4}, s{S_VD}, v{V_VA+idx-4}")
            smg(smi); smi += 1
            if not has_qk: smg(smi); smi += 1
    if has_sm:
        while smi < 16: smg(smi); smi += 1
        a("s_nop 0")
        a(f"v_add_f32 v{V_T}, v{V_T}, v{V_E+3}")
        a(f"v_cvt_pk_bf16_f32 v{Pc+7}, v{V_E+2}, v{V_E+3}")
        a(f"v_cmp_nge_f32 vcc, s{S_THR}, v{V_T}")
        a(f"s_cbranch_vccz L_ok{uid}")
        a(f"s_call_b64 {sr(S_RET,2)}, L_rare{par}")
        a.label(f"L_ok{uid}")
        a(f"v_add_f32 v{V_L}, v{V_L}, v{V_T}")

def rowmax(a, S, dst, tmp):
    a(f"v_max3_f32 v{dst}, v{S}, v{S+1}, v{S+2}")
    for i in range(3, 15, 2): a(f"v_max3_f32 v{dst}, v{dst}, v{S+i}, v{S+i+1}")
    a(f"v_max_f32 v{dst}, v{dst}, v{S+15}")
    a(f"v_mov_b32 v{tmp}, v{dst}")
    a("s_nop 1")
    a(f"v_permlane32_swap_b32 v{dst}, v{tmp}")
    a(f"v_max_f32 v{dst}, v{dst}, v{tmp}")

def rare(a, par):
    Sc, Sn, Pc = V_S[par], V_S[1-par], V_P[par]
    d, t = V_TMP, V_TMP+1
    a.label(f"L_rare{par}")
    a("s_nop 15")
    rowmax(a, Sc, d, t)
    a(f"v_max_f32 v{d}, 0, v{d}")
    a(f"v_exp_f32 v{t}, -v{d}")
    for i in range(16): a(f"v_sub_f32 v{V_NM+i}, v{V_NM+i}, v{d}")
    for i in range(16): a(f"v_sub_f32 v{Sc+i}, v{Sc+i}, v{d}")
    for i in range(16): a(f"v_sub_f32 v{Sn+i}, v{Sn+i}, v{d}")
    for i in range(64): a(f"v_mul_f32 v{V_O+i}, v{V_O+i}, v{t}")
    a(f"v_mul_f32 v{V_L}, v{V_L}, v{t}")
    for i in range(16): a(f"v_exp_f32 v{Sc+i}, v{Sc+i}")
    a("s_nop 0")
    a(f"v_add_f32 v{V_T}, v{Sc}, v{Sc+1}")
    for i in range(2, 16): a(f"v_add_f32 v{V_T}, v{V_T}, v{Sc+i}")
    for i in range(8): a(f"v_cvt_pk_bf16_f32 v{Pc+i}, v{Sc+2*i}, v{Sc+2*i+1}")
    a(f"s_setpc_b64 {sr(S_RET,2)}")

def slot_advance(a, sslot, sdelta):
    a(f"s_add_u32 s{sslot}, s{sslot}, 1")
    a(f"s_cmp_eq_u32 s{sslot}, 3")
    a(f"s_cselect_b32 s{sdelta}, {u32(-32768)}, s{S_C16K}")
    a(f"s_cselect_b32 s{sslot}, 0, s{sslot}")

def attention(a):
    for m in range(8): a(f"ds_read_b128 {vr(V_KF+4*m,4)}, v{V_KA+m}")
    for i in range(64): a(f"v_mov_b32 v{V_O+i}, 0")
    a(f"v_mov_b32 v{V_L}, 0")
    for m in range(8):
        if m % 4 == 0: a(f"s_waitcnt lgkmcnt({4-m})")
        a(mfma(V_S[0], V_KF+4*m, V_Q+4*m, "0" if m == 0 else V_S[0]))
    for m in range(8): a(f"ds_read_b128 {vr(V_KF+4*m,4)}, v{V_KA+m} offset:8192")
    slot_advance(a, S_KS, S_KD)
    a("s_nop 3")
    rowmax(a, V_S[0], V_TMP, V_TMP+1)
    for i in range(16): a(f"v_sub_f32 v{V_NM+i}, 0, v{V_TMP}")
    for i in range(16): a(f"v_sub_f32 v{V_S[0]+i}, v{V_S[0]+i}, v{V_TMP}")
    for m in range(8): a(f"v_add_u32 v{V_KA+m}, s{S_KD}, v{V_KA+m}")
    substep(a, 0, True, False, True, 1, 0, True, False, uid="p")
    a(f"s_mov_b32 s{S_CNT}, 0")
    a("s_waitcnt vmcnt(8)")
    a("s_branch L_att_w1")
    a.raw(".p2align 3")
    a.label("L_att_loop")
    a("s_waitcnt vmcnt(0)")
    a.label("L_att_w1")
    a("s_barrier")
    slot_advance(a, S_KS, S_KD)
    slot_advance(a, S_VS, S_VD)
    substep(a, 1, True, True, True, 0, 0, False, True, uid="a")
    substep(a, 0, True, True, True, 1, 1, True, False, upd_k=True, upd_v=True, uid="b")
    a(f"s_add_u32 s{S_CNT}, s{S_CNT}, 1")
    a(f"s_cmp_lt_u32 s{S_CNT}, 15")
    a("s_cbranch_scc1 L_att_loop")
    a("s_barrier")
    substep(a, 1, False, True, True, 0, 0, False, False, uid="e")
    substep(a, 0, False, True, False, 0, 1, False, False, uid="f")

def normalize_o(a):
    a(f"v_mov_b32 v{V_TMP}, v{V_L}")
    a("s_nop 1")
    a(f"v_permlane32_swap_b32 v{V_L}, v{V_TMP}")
    a(f"v_add_f32 v{V_L}, v{V_L}, v{V_TMP}")
    a(f"v_rcp_f32 v{V_L}, v{V_L}")
    a("s_nop 7")
    acc_to_frags(a, XREG, f"v{V_L}")

def store_o(a):
    a(f"s_add_u32 s{S_T0}, s{S_OOFF}, 4096")
    for m in range(8):
        so = S_OOFF if m < 4 else S_T0
        a.vm(f"buffer_store_dwordx4 {vr(XREG(m),4)}, v{V_L16}, {sr(S_WS,4)}, s{so} offen offset:{(m%4)*1024} sc1", "ost")

def load_o(a, head_sgpr_off, first_frag, tag):
    a(f"s_add_u32 s{S_T0}, s{head_sgpr_off}, 4096")
    for m in range(8):
        so = head_sgpr_off if m < 4 else S_T0
        a.vm(f"buffer_load_dwordx4 {vr(XREG(first_frag+m),4)}, v{V_L16}, {sr(S_WS,4)}, s{so} offen offset:{(m%4)*1024} sc1", tag + ("a" if m < 4 else "b"))

def set_flag(a, kind, val=1, tag="flag"):
    a(f"v_mov_b32 v{V_TMP}, {val}")
    a(f"v_mov_b32 v{V_TMP+1}, 0")
    a("s_mov_b64 exec, 1")
    a.vm(f"buffer_store_dword v{V_TMP}, v{V_TMP+1}, {sr(S_WS,4)}, s{S_FLG} offen offset:{kind*128} sc1", tag)
    a("s_mov_b64 exec, -1")

def poll(a, kind, uid):
    a(f"s_mov_b32 s{S_CNT}, {SPIN_CAP}")
    a.label(f"L_poll{uid}")
    a(f"buffer_load_dword v{V_TMP}, v{V_FL}, {sr(S_WS,4)}, 0 offen offset:{kind*128} sc1")
    a(f"s_sub_u32 s{S_CNT}, s{S_CNT}, 1")
    a(f"s_cbranch_scc1 L_pollx{uid}")
    a("s_waitcnt vmcnt(0)")
    a(f"v_cmp_ne_u32 vcc, 1, v{V_TMP}")
    a(f"s_cbranch_vccnz L_poll{uid}")
    a.label(f"L_pollx{uid}")
    a("s_waitcnt vmcnt(0)")
    a.vmq = []

def pkg(a, g):
    kn, vn = g+1, g
    if kn <= 31:
        if kn == 16: a(f"s_mov_b32 s{S_KOFF}, s{S_H2OFF}")
        dma(a, S_K, [V_DK+j for j in range(4)], S_KOFF, KSLOT(kn), 1024, KV_FLAGS, f"p{g}")
        a(f"s_add_u32 s{S_KOFF}, s{S_KOFF}, 16384")
    if 0 <= vn <= 31:
        if vn == 16: a(f"s_mov_b32 s{S_VOFF}, s{S_H2OFF}")
        dma(a, S_V, V_DV, S_VOFF, VSLOT(vn), 1024, KV_FLAGS, f"p{g}")
        a(f"s_add_u32 s{S_VOFF}, s{S_VOFF}, 16384")

XS = [(VSLOT(1), WSLOT(0)), (WSLOT(3), VSLOT(2)), (VSLOT(0), KSLOT(2)), (WSLOT(1), WSLOT(2))]
W1S = [WSLOT(1), WSLOT(2), KSLOT(0), KSLOT(1), VSLOT(1), WSLOT(0), WSLOT(3), VSLOT(2)]

def x_frag_reads(a, q, prev_q):
    pa, pb = XS[prev_q] if prev_q is not None else (0, 0)
    a(f"s_cmp_lt_u32 s{S_WV}, 2")
    a(f"s_mov_b32 s{S_T1}, {u32(XS[q][0]-pa)}")
    a(f"s_cselect_b32 s{S_T1}, s{S_T1}, {u32(XS[q][1]-pb)}")
    if prev_q is None: a(f"s_add_u32 s{S_T1}, s{S_T1}, s{S_HALF}")
    for m in range(8): a(f"v_add_u32 v{V_KA+m}, s{S_T1}, v{V_KA+m}")
def x_frag_issue(a, q):
    for m in range(8): a(f"ds_read_b128 {vr(XREG(8*q+m),4)}, v{V_KA+m}")
def x_addr_finish(a, kbase):
    a(f"s_cmp_lt_u32 s{S_WV}, 2")
    a(f"s_mov_b32 s{S_T1}, {u32(kbase-XS[3][0])}")
    a(f"s_cselect_b32 s{S_T1}, s{S_T1}, {u32(kbase-XS[3][1])}")
    a(f"s_sub_u32 s{S_T1}, s{S_T1}, s{S_HALF}")
    for m in range(8): a(f"v_add_u32 v{V_KA+m}, s{S_T1}, v{V_KA+m}")

def kernel(a, name):
    a.raw(f".globl {name}"); a.raw(".p2align 8"); a.raw(f".type {name},@function"); a.label(name)
    a("s_cmp_ge_u32 s2, 256")
    a("s_cbranch_scc1 L_end")
    if STAMPS: a(f"v_mov_b32 v{V_ST}, 0")
    stamp(a, 0)
    setup_srds(a)
    stamp(a, 1)
    a(f"s_lshl_b32 s{S_T1}, s{S_SET}, 3")
    a(f"s_add_u32 s{S_T1}, s{S_T1}, s{S_J}")
    a(f"s_lshl_b32 s{S_T2}, s{S_B}, 5")
    a(f"s_add_u32 s{S_T2}, s{S_T2}, s{S_T1}")
    a(f"s_lshl_b32 s{S_KOFF}, s{S_T2}, 18")
    a(f"s_mov_b32 s{S_VOFF}, s{S_KOFF}")
    a(f"s_add_u32 s{S_H2OFF}, s{S_KOFF}, {4<<18}")
    a(f"s_lshl_b32 s{S_WBASE}, s{S_T1}, 8")
    a(f"s_lshl_b32 s{S_XBASE}, s{S_B}, 17")
    a(f"s_add_u32 s{S_ROT}, s{S_J}, s{S_B}")
    a(f"s_and_b32 s{S_ROT}, s{S_ROT}, {3 if E('NOROT') is None else 0}")
    a(f"s_lshl_b32 s{S_T0}, s{S_BR}, 3")
    a(f"s_add_u32 s{S_T0}, s{S_T0}, s{S_B}")
    a(f"s_lshl_b32 s{S_T0}, s{S_T0}, 2")
    a(f"s_add_u32 s{S_T0}, s{S_T0}, s{S_SET}")
    a(f"s_lshl_b32 s{S_T0}, s{S_T0}, 5")
    a(f"s_add_u32 s{S_T0}, s{S_T0}, s{S_WV}")
    a(f"s_lshl_b32 s{S_OSET}, s{S_T0}, 13")
    a(f"s_lshl_b32 s{S_T0}, s{S_GRP}, 2")
    a(f"s_add_u32 s{S_T0}, s{S_T0}, s{S_J}")
    a(f"s_lshl_b32 s{S_T0}, s{S_T0}, 15")
    a(f"s_add_u32 s{S_OOFF}, s{S_OSET}, s{S_T0}")
    a(f"s_lshl_b32 s{S_T0}, s2, 2")
    a(f"s_add_u32 s{S_T0}, s{S_T0}, s{S_WV}")
    a(f"s_mul_i32 s{S_FLG}, s{S_T0}, 384")
    a(f"s_add_u32 s{S_FLG}, s{S_FLG}, {FLAG_WS_OFF}")
    a(f"s_mov_b32 s{S_THR}, 0x47800000")
    a(f"s_mov_b32 s{S_C16K}, 16384")
    a(f"s_and_b32 s{S_HALF}, s{S_WV}, 1")
    a(f"s_lshl_b32 s{S_HALF}, s{S_HALF}, 13")
    a(f"v_lshlrev_b32 v{V_L16}, 4, v{V_LANE}")
    a(f"s_cmp_eq_u32 s{S_GRP}, 0")
    a("s_cbranch_scc0 L_grpB")

    a.vmq = []
    setup_vtype_dma(a, V_DW, 10)
    setup_vtype_dma(a, V_DV, 8)
    setup_ktype_dma(a, V_DK, 8)
    setup_vtype_addr(a, W1S[0])
    k_addr_setup(a)
    for i in range(64): a(f"v_mov_b32 v{V_O+i}, 0")
    x_frag_reads(a, 0, None)
    for i in range(8):
        stamp(a, 2+i)
        a("s_barrier")
        if i % 2 == 0: x_frag_issue(a, i//2)
        call_seg(a, i, i == 0)
        move_va(a, (W1S[i+1] if i < 7 else VSLOT(0)) - W1S[i])
        if i % 2 == 0 and i < 6: x_frag_reads(a, i//2+1, i//2)
        if i == 6: x_addr_finish(a, KSLOT(0))
    a("s_barrier")
    seg_flush(a, 7)
    a(f"s_mov_b32 s{S_T0}, {f2u(QSCALE):#x}")
    a(f"s_mov_b32 s{S_KS}, 0")
    a(f"s_mov_b32 s{S_VS}, 0")
    a("s_nop 7"); a("s_nop 1")
    acc_to_frags(a, lambda m: V_Q+4*m, f"s{S_T0}")
    a.label("L_att_entry")
    attention(a)
    a(f"s_cmp_eq_u32 s{S_GRP}, 0")
    a("s_cbranch_scc0 L_B_fin")
    a.vmq = []
    a(f"s_add_u32 s{S_KOFF}, s{S_H2OFF}, {3*16384}")
    a(f"s_add_u32 s{S_VOFF}, s{S_H2OFF}, {2*16384}")
    a(f"s_lshl_b32 s{S_WOB}, s{S_SET}, 20")
    a(f"s_lshl_b32 s{S_T0}, s{S_J}, 8")
    a(f"s_add_u32 s{S_WOB}, s{S_WOB}, s{S_T0}")
    def wo_off(t):
        d = (t >> 1) & 3
        a(f"s_add_u32 s{S_WOFF}, s{S_J}, {d}")
        a(f"s_and_b32 s{S_WOFF}, s{S_WOFF}, 3")
        a(f"s_lshl_b32 s{S_WOFF}, s{S_WOFF}, 17")
        a(f"s_add_u32 s{S_WOFF}, s{S_WOFF}, s{S_WOB}")
        add = (t >> 3)*4*131072 + (t & 1)*65536
        if add: a(f"s_add_u32 s{S_WOFF}, s{S_WOFF}, {add}")
    def wo_tile(t, slot, js=(0,1,2,3)):
        if js[0] == 0: wo_off(t)
        dma(a, S_WO, V_DW, S_WOFF, slot, 4096, WO_FLAGS, f"wo{t}", js)
    def o_off(dst, d, second):
        a(f"s_add_u32 s{dst}, s{S_J}, {d}")
        a(f"s_and_b32 s{dst}, s{dst}, 3")
        a(f"s_lshl_b32 s{dst}, s{dst}, 15")
        a(f"s_add_u32 s{dst}, s{dst}, s{S_OSET}")
        if second: a(f"s_add_u32 s{dst}, s{dst}, {4*32768}")
    TS = {0: WSLOT(0), 1: WSLOT(1), 2: WSLOT(2), 3: WSLOT(3), 4: WSLOT(0), 5: WSLOT(1), 6: KSLOT(29), 7: KSLOT(30),
          8: VSLOT(29), 9: KSLOT(31), 10: VSLOT(30), 11: WSLOT(2), 12: WSLOT(3), 13: VSLOT(31), 14: WSLOT(0), 15: WSLOT(1)}
    cur = [None]
    def goto_tile(t):
        move_va(a, TS[t] - cur[0]); cur[0] = TS[t]
    PUB = int(E("PUB", "30"))
    for g in range(16, 32):
        tags = [f"p{g}"]
        if g == 19: tags.append("wo0")
        if g == 21: tags.append("wo1")
        if g == 22: tags.append("clr")
        a.vmwait(tags)
        stamp(a, 2*(g-16)+10)
        a("s_barrier")
        stamp(a, 2*(g-16)+11)
        if g == 20:
            a(f"s_lshl_b32 s{S_T1}, s{S_BR}, 3")
            a(f"s_add_u32 s{S_T1}, s{S_T1}, s{S_B}")
            a(f"s_lshl_b32 s{S_T3}, s{S_T1}, 2")
            a(f"v_mov_b32 v{V_FL}, 0")
            a.vm(f"buffer_load_dword v{V_T}, v{V_FL}, {sr(S_DBG,4)}, s{S_T3} offen sc1", "clr")
        if g + 2 <= 31: pkg(a, g+2)
        if 16 <= g <= 27:
            t = (g-16)//2
            wo_tile(t, TS[t], (0,1) if g % 2 == 0 else (2,3))
        if g == 29: wo_tile(6, TS[6])
        if g == 30: wo_tile(7, TS[7]); wo_tile(8, TS[8])
        if g == 31: wo_tile(9, TS[9]); wo_tile(10, TS[10])
        if g == 16:
            normalize_o(a)
            for i in range(64): a(f"v_mov_b32 v{V_O+i}, 0")
            setup_vtype_addr(a, TS[0], xor_sgpr=S_SET); cur[0] = TS[0]
        if g == 19: call_seg(a, 0, True)
        if g == 21:
            goto_tile(1); call_seg(a, 1, False); seg_flush(a, 1)
        if g == 22:
            a(f"v_cmp_le_u32 vcc, 16, v{V_T}")
            a("s_cbranch_vccnz L_clr_ok")
            a(f"s_mov_b32 s{S_CNT}, {SPIN_CAP}")
            a.label("L_clr_spin")
            a(f"s_sub_u32 s{S_CNT}, s{S_CNT}, 1")
            a("s_cbranch_scc1 L_clr_ok")
            a(f"buffer_load_dword v{V_T}, v{V_FL}, {sr(S_DBG,4)}, s{S_T3} offen sc1")
            a("s_waitcnt vmcnt(0)")
            a(f"v_cmp_gt_u32 vcc, 16, v{V_T}")
            a("s_cbranch_vccnz L_clr_spin")
            a.label("L_clr_ok")
            a(f"v_and_b32 v{V_FL}, 3, v{V_LANE}")
            a(f"v_lshlrev_b32 v{V_FL}, 5, v{V_FL}")
            a(f"s_and_b32 s{S_T1}, s2, 0xe7")
            a(f"s_lshl_b32 s{S_T1}, s{S_T1}, 2")
            a(f"s_add_u32 s{S_T1}, s{S_T1}, s{S_WV}")
            a(f"v_add_u32 v{V_FL}, s{S_T1}, v{V_FL}")
            a(f"v_mul_u32_u24 v{V_FL}, 384, v{V_FL}")
            a(f"v_add_u32 v{V_FL}, {FLAG_WS_OFF}, v{V_FL}")
        if g == PUB: store_o(a)
    a.vmwait("ost")
    stamp(a, 44)
    set_flag(a, 0)
    poll(a, 0, "1")
    stamp(a, 45)
    for d in (1, 2, 3):
        o_off(S_T1, d, False)
        load_o(a, S_T1, 8*d, f"oa{d}")
    goto_tile(2); a.vmwait("oa1a"); stamp(a, 46); call_seg(a, 2, True)
    goto_tile(3); a.vmwait("oa1b"); call_seg(a, 3, False)
    stamp(a, 47)
    a("s_barrier")
    stamp(a, 48)
    o_off(S_T1, 0, True)
    load_o(a, S_T1, 0, "ob0")
    wo_tile(11, TS[11]); wo_tile(12, TS[12]); wo_tile(13, TS[13])
    goto_tile(4); a.vmwait("oa2a"); call_seg(a, 4, False)
    goto_tile(5); a.vmwait("oa2b"); call_seg(a, 5, False)
    a("s_barrier")
    stamp(a, 49)
    wo_tile(14, TS[14]); wo_tile(15, TS[15])
    goto_tile(6); a.vmwait("oa3a"); call_seg(a, 6, False)
    poll(a, 1, "2")
    stamp(a, 50)
    for d in (1, 2):
        o_off(S_T1, d, True)
        load_o(a, S_T1, 8*d, f"ob{d}")
    goto_tile(7); call_seg(a, 7, False)
    goto_tile(8); call_seg(a, 0, False)
    o_off(S_T1, 3, True)
    load_o(a, S_T1, 24, "ob3")
    goto_tile(9); call_seg(a, 1, False)
    a("s_barrier")
    stamp(a, 51)
    for t in range(10, 16):
        seg = t - 8
        goto_tile(t); a.vmwait(f"ob{seg//2}{'ab'[seg%2]}"); call_seg(a, seg, False)
    seg_flush(a, 7)
    stamp(a, 52)
    a(f"s_lshl_b32 s{S_T1}, s2, 2")
    a(f"s_add_u32 s{S_T1}, s{S_T1}, s{S_WV}")
    a(f"s_lshl_b32 s{S_T1}, s{S_T1}, 14")
    a(f"s_add_u32 s{S_T1}, s{S_T1}, {PART_WS_OFF}")
    a(f"v_and_b32 v{V_FL}, 3, v{V_LANE}")
    a(f"v_xor_b32 v{V_FL}, s2, v{V_FL}")
    a(f"v_lshlrev_b32 v{V_FL}, 2, v{V_FL}")
    a(f"v_add_u32 v{V_FL}, s{S_WV}, v{V_FL}")
    a(f"v_mul_u32_u24 v{V_FL}, 384, v{V_FL}")
    a(f"v_add_u32 v{V_FL}, {FLAG_WS_OFF}, v{V_FL}")
    a("s_nop 3")
    for beta in (1, 2, 3):
        a(f"s_add_u32 s{S_T1}, s{S_T1}, 4096")
        for i in range(4):
            a.vm(f"buffer_store_dwordx4 {vr(V_O+16*beta+4*i,4)}, v{V_L16}, {sr(S_WS,4)}, s{S_T1} offen offset:{i*1024} sc1", "pst")
    t0, t1 = V_E, V_E+1
    a(f"v_and_b32 v{t0}, 0x13, v{V_LANE}")
    a(f"v_bfe_u32 v{t1}, v{V_LANE}, 2, 1")
    a(f"v_lshl_or_b32 v{t0}, v{t1}, 3, v{t0}")
    a(f"v_bfe_u32 v{t1}, v{V_LANE}, 3, 1")
    a(f"v_lshl_or_b32 v{t0}, v{t1}, 2, v{t0}")
    a(f"v_lshrrev_b32 v{t1}, 5, v{V_LANE}")
    a(f"v_lshlrev_b32 v{t1}, 4, v{t1}")
    a(f"v_lshl_add_u32 v{t0}, v{t0}, 11, v{t1}")
    a(f"s_lshl_b32 s{S_T2}, s{S_B}, 2")
    a(f"s_add_u32 s{S_T2}, s{S_T2}, s{S_WV}")
    a(f"s_lshl_b32 s{S_T2}, s{S_T2}, 16")
    a(f"s_lshl_b32 s{S_T0}, s{S_BR}, 10")
    a(f"s_add_u32 s{S_T2}, s{S_T2}, s{S_T0}")
    a(f"s_lshl_b32 s{S_T0}, s{S_J}, 8")
    a(f"s_add_u32 s{S_T2}, s{S_T2}, s{S_T0}")
    a(f"s_lshl_b32 s{S_T0}, s{S_SET}, 6")
    a(f"s_add_u32 s{S_T2}, s{S_T2}, s{S_T0}")
    a.vmall()
    stamp(a, 53)
    set_flag(a, 2)
    poll(a, 2, "3")
    stamp(a, 54)
    for beta in (1, 2, 3):
        a(f"s_xor_b32 s{S_T1}, s2, {beta}")
        a(f"s_lshl_b32 s{S_T1}, s{S_T1}, 2")
        a(f"s_add_u32 s{S_T1}, s{S_T1}, s{S_WV}")
        a(f"s_lshl_b32 s{S_T1}, s{S_T1}, 14")
        a(f"s_add_u32 s{S_T1}, s{S_T1}, {PART_WS_OFF + beta*4096}")
        for i in range(4):
            a.vm(f"buffer_load_dwordx4 {vr(V_O+16*beta+4*i,4)}, v{V_L16}, {sr(S_WS,4)}, s{S_T1} offen offset:{i*1024} sc1", f"pl{beta}")
    for beta in (1, 2, 3):
        a.vmwait(f"pl{beta}")
        for i in range(16): a(f"v_add_f32 v{V_O+i}, v{V_O+i}, v{V_O+16*beta+i}")
    for i in range(8): a(f"v_cvt_pk_bf16_f32 v{V_Q+i}, v{V_O+2*i}, v{V_O+2*i+1}")
    a(f"buffer_store_dwordx4 {vr(V_Q,4)}, v{t0}, {sr(S_OUT,4)}, s{S_T2} offen")
    a(f"buffer_store_dwordx4 {vr(V_Q+4,4)}, v{t0}, {sr(S_OUT,4)}, s{S_T2} offen offset:32")
    if STAMPS: a("s_waitcnt vmcnt(0)")
    stamp(a, 55)
    stamp_flush(a)
    a("s_endpgm")

    a.label("L_B_fin")
    a.vmq = []
    stamp(a, 60)
    normalize_o(a)
    store_o(a)
    stamp(a, 61)
    a.vmall()
    stamp(a, 62)
    set_flag(a, 1)
    stamp_flush(a)
    a("s_endpgm")

    a.label("L_grpB")
    a.vmq = []
    setup_ktype_dma(a, V_E, 10)
    setup_vtype_dma(a, V_DW, 13)
    def rot_off(dst, q, shift, base):
        a(f"s_add_u32 s{dst}, s{S_ROT}, {q}")
        a(f"s_and_b32 s{dst}, s{dst}, 3")
        a(f"s_lshl_b32 s{dst}, s{dst}, {shift}")
        a(f"s_add_u32 s{dst}, s{dst}, s{base}")
    def xt(q, half):
        rot_off(S_XOFF, q, 8, S_XBASE)
        if half: a(f"s_add_u32 s{S_XOFF}, s{S_XOFF}, 65536")
        dma(a, S_X, [V_E+j for j in range(4)], S_XOFF, XS[q][half], 4096, X_FLAGS, f"s{2*q}")
    def wq(i, slot, tag, js=(0,1,2,3)):
        if js[0] == 0:
            rot_off(S_WOFF, i//2, 20, S_WBASE)
            if i % 2: a(f"s_add_u32 s{S_WOFF}, s{S_WOFF}, {64*8192}")
        dma(a, S_WQ, V_DW, S_WOFF, slot, 4*8192, WQ_FLAGS, tag, js)
    def ktile(n, tag):
        dma(a, S_K, [V_DK+j for j in range(4)], S_KOFF, KSLOT(n), 1024, KV_FLAGS, tag)
        a(f"s_add_u32 s{S_KOFF}, s{S_KOFF}, 16384")
    def vtile(n, tag):
        dma(a, S_V, V_DV, S_VOFF, VSLOT(n), 1024, KV_FLAGS, tag)
        a(f"s_add_u32 s{S_VOFF}, s{S_VOFF}, 16384")
    w1 = lambda i: wq(i, W1S[i], f"s{i}")
    xt(0,0); xt(0,1); w1(0); w1(1)
    k_addr_setup(a)
    x_frag_reads(a, 0, None)
    xt(1,0); xt(1,1); w1(2); w1(3)
    setup_vtype_dma(a, V_DV, 8)
    setup_ktype_dma(a, V_DK, 8)
    setup_vtype_addr(a, WSLOT(0))
    for i in range(8):
        a.vmwait(f"s{i}")
        a("s_barrier")
        stamp(a, 2+i)
        if i % 2 == 0: x_frag_issue(a, i//2)
        if i == 0: xt(2,0); xt(2,1)
        if i == 1: w1(4); w1(5); xt(3,0)
        if i == 2: xt(3,1)
        if i == 3: w1(6); w1(7); ktile(0, "p-1")
        if i == 4: ktile(1, "p0")
        if i == 5: vtile(0, "p0"); ktile(2, "p1"); vtile(1, "p1")
        if i == 6:
            for kind in range(3): set_flag(a, kind, 0, "clr")
            for r in range(64): a(f"v_mov_b32 v{V_O+r}, 0")
        if i % 2 == 0:
            a("s_waitcnt lgkmcnt(0)")
            if i < 6: x_frag_reads(a, i//2+1, i//2)
            else: x_addr_finish(a, KSLOT(16))
    a(f"s_add_u32 s{S_WBASE}, s{S_WBASE}, {4*256}")
    a.vmwait("p-1")
    stamp(a, 10)
    a("s_barrier")
    stamp(a, 11)
    halves = {-1: [0,1], 0: [2,3]}
    for g in range(1, 13): halves[g] = [g+3]
    cons = {1: 0, 2: 1, 4: 2, 6: 3, 8: 4, 10: 5, 12: 6, 14: 7}
    def w2h(h): wq(h//2, WSLOT(h//2), f"w2_{h//2}", (0,1) if h % 2 == 0 else (2,3))
    for h in halves[-1]: w2h(h)
    for g in range(0, 16):
        tags = [f"p{g}"]
        if g in cons: tags.append(f"w2_{cons[g]}")
        if g == 2: tags.append("clr")
        a.vmwait(tags)
        stamp(a, 2*g+12)
        a("s_barrier")
        stamp(a, 2*g+13)
        pkg(a, g+2)
        for h in halves.get(g, []): w2h(h)
        if g == 3:
            a(f"s_cmp_lg_u32 s{S_WV}, 0")
            a("s_cbranch_scc1 L_noclr")
            a(f"s_lshl_b32 s{S_T1}, s{S_BR}, 3")
            a(f"s_add_u32 s{S_T1}, s{S_T1}, s{S_B}")
            a(f"s_lshl_b32 s{S_T1}, s{S_T1}, 2")
            a(f"v_mov_b32 v{V_TMP}, 1")
            a(f"v_mov_b32 v{V_TMP+1}, 0")
            a("s_mov_b64 exec, 1")
            a(f"buffer_atomic_add v{V_TMP}, v{V_TMP+1}, {sr(S_DBG,4)}, s{S_T1} offen sc1")
            a("s_mov_b64 exec, -1")
            a.label("L_noclr")
        if g in cons:
            i = cons[g]
            call_seg(a, i, i == 0)
            move_va(a, (WSLOT(i+1) if i < 7 else VSLOT(16)) - WSLOT(i))
        if g == 14:
            seg_flush(a, 7)
            a(f"s_mov_b32 s{S_T0}, {f2u(QSCALE):#x}")
            a(f"s_mov_b32 s{S_KS}, {16%3}")
            a(f"s_mov_b32 s{S_VS}, {16%3}")
            a("s_nop 7"); a("s_nop 1")
            acc_to_frags(a, lambda m: V_Q+4*m, f"s{S_T0}")
    assert a.vmq == ["p16"]*8 + ["p17"]*8, a.vmq
    a("s_branch L_att_entry")
    a.label("L_end")
    a("s_endpgm")
    rare(a, 0); rare(a, 1)
    proj_segs(a)

def main(fn):
    a = Asm()
    name = NAME + "_kernel"
    a.raw(f"; @launch grid=(256,1,1) block=(512,1,1) lds=163840")
    a.raw('.amdgcn_target "amdgcn-amd-amdhsa--gfx950"')
    a.raw(".text")
    kernel(a, name)
    a.raw('.section .rodata,"a"')
    a.raw(".p2align 6")
    a.raw(f".amdhsa_kernel {name}")
    a.raw(f"  .amdhsa_next_free_vgpr 256"); a.raw(f"  .amdhsa_next_free_sgpr 96"); a.raw(f"  .amdhsa_accum_offset 256")
    a.raw("  .amdhsa_group_segment_fixed_size 0"); a.raw("  .amdhsa_kernarg_size 104"); a.raw("  .amdhsa_user_sgpr_count 2")
    a.raw("  .amdhsa_user_sgpr_kernarg_segment_ptr 1"); a.raw("  .amdhsa_system_sgpr_workgroup_id_x 1"); a.raw(".end_amdhsa_kernel")
    open(fn, "w").write(a.text())

if __name__ == "__main__":
    if len(sys.argv) > 2 and sys.argv[2] == "stamps": STAMPS = True
    main(sys.argv[1] if len(sys.argv) > 1 else "k2.s")
```

```python
import sys, math, os, struct
NAME = "concat_heads__mha_block_cached__gqa_block_cached__near_ridge"
E = os.environ.get

class Asm:
    def __init__(s):
        s.L = []; s.vmq = []; s.lq = []; s.stubs = []
    def __call__(s, t): s.L.append("  " + " ".join(t.split()))
    def label(s, t): s.L.append(t + ":")
    def raw(s, t): s.L.append(t)
    def vm(s, t, tag):
        s(t); s.vmq.append(tag)
    def vmwait(s, tags):
        if not isinstance(tags, (list, tuple, set)): tags = [tags]
        last = -1
        for i, t in enumerate(s.vmq):
            if t in tags: last = i
        if last < 0: return
        n = len(s.vmq) - 1 - last
        assert n <= 63, n
        s(f"s_waitcnt vmcnt({n})")
        s.vmq = s.vmq[last+1:]
    def vmall(s):
        s("s_waitcnt vmcnt(0)"); s.vmq = []
    def ds(s, t, tag):
        s(t); s.lq.append(tag)
        assert len(s.lq) <= 15, s.lq
    def dswait(s, tags, force=False):
        if not isinstance(tags, (list, tuple, set)): tags = [tags]
        last = -1
        for i, t in enumerate(s.lq):
            if t in tags: last = i
        if last < 0: return
        s(f"s_waitcnt lgkmcnt({len(s.lq) - 1 - last})")
        s.lq = s.lq[last+1:]
    def dsall(s):
        s("s_waitcnt lgkmcnt(0)"); s.lq = []
    def text(s): return "\n".join(s.L) + "\n"

def vr(b, n=1): return f"v{b}" if n == 1 else f"v[{b}:{b+n-1}]"
def sr(b, n=1): return f"s{b}" if n == 1 else f"s[{b}:{b+n-1}]"
def f2u(f): return struct.unpack("<I", struct.pack("<f", f))[0]
def u32(x): return f"{x & 0xffffffff:#x}"

V_LANE = 1
V_KA = 2
V_VA = 6
V_DK = 14
V_DV = 16
V_DW = 18
V_ONE = 20
V_FL = 20
V_L  = 22
V_E  = 24
V_TMP = 28
V_L16 = 30
V_ST = 31
V_Q  = 32
V_O  = 64
V_NM = 128
V_LA = 136
V_S  = [144, 160]
V_P  = [176, 184]
V_KF = 192
V_VF = 224
def XREG(s): return (128 + 4*s) if s < 24 else (32 + 4*(s-24))
def OREG(dt, qh): return V_O + 8*dt + 4*qh

S_K, S_V, S_X, S_WQ, S_WS, S_WO, S_OUT = 4, 8, 12, 16, 20, 24, 28
S_RET = 32
S_WV = 34; S_GRP = 35
S_DBG = 36
S_BR = 52; S_B = 53; S_J = 54; S_SET = 55
S_KOFF = 56; S_VOFF = 57; S_WOFF = 58; S_XOFF = 59; S_LDSW = 60
S_H2OFF = 61; S_CNT = 62; S_KD = 63; S_VD = 64; S_KS = 65; S_VS = 66
S_THR = 67; S_T0 = 68; S_T1 = 69; S_OOFF = 70; S_T2 = 71
S_C16K = 40; S_ROT = 41; S_WBASE = 42; S_XBASE = 43; S_HALF = 44; S_OSET = 45; S_FLG = 46; S_T3 = 47; S_WOB = 48
S_STAMP = 80
S_EP = 84
S_TOK = 86
S_RDY = 88
S_SC = 90
S_MSK = 49

KSLOT = lambda n: (n % 3) * 16384 if n < 16 else 16384 + ((n-16) % 3) * 16384
VSLOT = lambda n: 65536 + KSLOT(n)
WSLOT = lambda n: [49152, 114688, 131072, 147456][n % 4]
WSLOT2 = lambda n: [131072, 147456, 0, 65536][n % 4]
S_DL = 72
PLAG = 6
QSCALE = (1.0/math.sqrt(128.0)) * math.log2(math.e)

KV_FLAGS = E("KVF", "nt")
WQ_FLAGS = E("WQF", "")
WO_FLAGS = E("WOF", "")
X_FLAGS = E("XF", "")
OSF = E("OSF", "sc1")
OLF = E("OLF", "sc1")
PBF16 = E("PBF16", "0") == "1"
O_WS_OFF = 0
PART_WS_OFF = 16*1024*1024
FLAG_WS_OFF = 32*1024*1024
EPOCH_WS_OFF = 33*1024*1024
STAMP_WS_OFF = 64*1024*1024
STAMPS = False
SPIN_CAP = 0x40000

def stamp(a, idx):
    if not STAMPS: return
    a(f"s_memrealtime s[{S_STAMP}:{S_STAMP+1}]")
    if idx > 0: a(f"s_memtime s[{S_STAMP+2}:{S_STAMP+3}]")
    a("s_waitcnt lgkmcnt(0)")
    a(f"v_writelane_b32 v{V_ST}, s{S_STAMP}, {idx}")
    if idx > 0: a(f"v_writelane_b32 v0, s{S_STAMP+2}, {idx}")
def stamp_flush(a):
    if not STAMPS: return
    a(f"s_lshl_b32 s{S_STAMP}, s2, 3")
    a(f"s_lshl_b32 s{S_STAMP+1}, s{S_GRP}, 2")
    a(f"s_add_u32 s{S_STAMP}, s{S_STAMP}, s{S_STAMP+1}")
    a(f"s_add_u32 s{S_STAMP}, s{S_STAMP}, s{S_WV}")
    a(f"s_lshl_b32 s{S_STAMP}, s{S_STAMP}, 8")
    a(f"s_add_u32 s{S_STAMP}, s{S_STAMP}, {STAMP_WS_OFF}")
    a(f"v_lshlrev_b32 v{V_TMP}, 2, v{V_LANE}")
    a(f"buffer_store_dword v{V_ST}, v{V_TMP}, {sr(S_WS,4)}, s{S_STAMP} offen")
    a(f"s_add_u32 s{S_STAMP}, s{S_STAMP}, {256*8*256}")
    a(f"buffer_store_dword v0, v{V_TMP}, {sr(S_WS,4)}, s{S_STAMP} offen")

def setup_srds(a):
    a("s_load_dwordx16 s[36:51], s[0:1], 0")
    a("s_load_dwordx8 s[72:79], s[0:1], 64")
    a("s_load_dwordx2 s[20:21], s[0:1], 96")
    a("s_and_b32 s3, s2, 7")
    a(f"s_lshr_b32 s{S_BR}, s3, 2")
    a(f"s_and_b32 s{S_SET}, s3, 3")
    a(f"s_lshr_b32 s{S_B}, s2, 5")
    a(f"s_lshr_b32 s{S_J}, s2, 3")
    a(f"s_and_b32 s{S_J}, s{S_J}, 3")
    a(f"v_lshrrev_b32 v2, 6, v0")
    a(f"v_and_b32 v{V_LANE}, 63, v0")
    a(f"v_readfirstlane_b32 s{S_WV}, v2")
    for b, n in ((S_K, 1<<26), (S_V, 1<<26), (S_X, 1<<20), (S_WQ, 1<<22), (S_WS, 287309824), (S_WO, 1<<22), (S_OUT, 1<<21)):
        a(f"s_mov_b32 s{b+2}, {n}")
        a(f"s_mov_b32 s{b+3}, 0x20000")
    a(f"s_lshr_b32 s{S_GRP}, s{S_WV}, 2")
    a(f"s_and_b32 s{S_WV}, s{S_WV}, 3")
    a(f"s_lshl_b32 s{S_LDSW}, s{S_WV}, 12")

def finish_srds(a):
    a("s_waitcnt lgkmcnt(0)")
    a(f"s_cmp_eq_u32 s{S_BR}, 0")
    for b, sa, sb in ((S_X, 36, 46), (S_K, 38, 48), (S_V, 40, 50), (S_WQ, 42, 72), (S_WO, 44, 74)):
        a(f"s_cselect_b32 s{b}, s{sa}, s{sb}")
        a(f"s_cselect_b32 s{b+1}, s{sa+1}, s{sb+1}")
    a(f"s_mov_b32 s{S_OUT}, s76")
    a(f"s_mov_b32 s{S_OUT+1}, s77")
    a(f"s_mov_b32 s{S_DBG}, s78")
    a(f"s_mov_b32 s{S_DBG+1}, s79")
    a(f"s_mov_b32 s{S_DBG+2}, 256")
    a(f"s_mov_b32 s{S_DBG+3}, 0x20000")

def setup_vtype_addr(a, base_imm, xor_sgpr=None):
    t0, t1, t2 = V_TMP, V_TMP+1, V_E+3
    a(f"v_bfe_u32 v{t0}, v{V_LANE}, 2, 3")
    a(f"v_bfe_u32 v{t2}, v{V_LANE}, 2, 2")
    a(f"v_lshrrev_b32 v{t1}, 4, v{V_LANE}")
    a(f"v_lshl_add_u32 v{t1}, v{t1}, 3, v{t2}")
    a(f"v_lshlrev_b32 v{t1}, 8, v{t1}")
    a(f"v_and_b32 v{t2}, 3, v{V_LANE}")
    a(f"v_lshl_add_u32 v{t1}, v{t2}, 3, v{t1}")
    if base_imm: a(f"v_add_u32 v{t1}, {base_imm}, v{t1}")
    if xor_sgpr is not None: a(f"v_xor_b32 v{t0}, s{xor_sgpr}, v{t0}")
    for dt in range(8):
        a(f"v_xor_b32 v{t2}, {dt}, v{t0}")
        a(f"v_lshl_add_u32 v{V_VA+dt}, v{t2}, 5, v{t1}")

def setup_vtype_dma(a, dst, log2stride):
    t0, t1, t2 = V_TMP, V_TMP+1, V_E+3
    a(f"v_lshrrev_b32 v{t0}, 4, v{V_LANE}")
    a(f"v_and_b32 v{t1}, 15, v{V_LANE}")
    a(f"v_lshlrev_b32 v{t2}, 1, v{t0}")
    a(f"v_xor_b32 v{t1}, v{t1}, v{t2}")
    a(f"v_lshlrev_b32 v{t1}, 4, v{t1}")
    a(f"s_lshl_b32 s{S_T0}, s{S_WV}, 4")
    a(f"v_add_u32 v{t0}, s{S_T0}, v{t0}")
    a(f"v_lshl_add_u32 v{dst}, v{t0}, {log2stride}, v{t1}")
    a(f"v_xor_b32 v{dst+1}, 0x80, v{dst}")

def setup_ktype_dma(a, dst, log2stride):
    t0, t1, t2 = V_TMP, V_TMP+1, V_E+3
    a(f"v_lshrrev_b32 v{t0}, 4, v{V_LANE}")
    a(f"v_and_b32 v{t1}, 15, v{V_LANE}")
    a(f"v_xor_b32 v{t1}, v{t1}, v{t0}")
    a(f"s_and_b32 s{S_T0}, s{S_WV}, 1")
    a(f"s_lshl_b32 s{S_T0}, s{S_T0}, 3")
    a(f"v_xor_b32 v{t1}, s{S_T0}, v{t1}")
    a(f"v_lshlrev_b32 v{t1}, 4, v{t1}")
    a(f"s_lshl_b32 s{S_T0}, s{S_WV}, 4")
    a(f"v_add_u32 v{t0}, s{S_T0}, v{t0}")
    a(f"v_lshl_add_u32 v{dst}, v{t0}, {log2stride}, v{t1}")
    a(f"v_xor_b32 v{dst+1}, 0x40, v{dst}")

def row0(a, dst, tmp):
    a(f"v_bfe_u32 v{tmp}, v{V_LANE}, 2, 2")
    a(f"v_and_b32 v{dst}, 3, v{V_LANE}")
    a(f"v_lshl_or_b32 v{dst}, v{tmp}, 3, v{dst}")

def k_addr_setup(a):
    t0, t1, t2 = V_TMP, V_TMP+1, V_E+3
    row0(a, t0, t1)
    a(f"v_lshlrev_b32 v{t0}, 8, v{t0}")
    a(f"v_and_b32 v{t1}, 15, v{V_LANE}")
    a(f"v_lshrrev_b32 v{t2}, 4, v{V_LANE}")
    a(f"v_xor_b32 v{t1}, v{t1}, v{t2}")
    for ks in range(4):
        a(f"v_xor_b32 v{t2}, {4*ks}, v{t1}")
        a(f"v_lshl_add_u32 v{V_KA+ks}, v{t2}, 4, v{t0}")

WIN = [0]
def window(a):
    w = WIN[0]
    if w and len(a.vmq) >= w:
        a(f"s_waitcnt vmcnt({w-1})")
        a.vmq = a.vmq[len(a.vmq)-(w-1):]
def dma(a, srd, voff, soff, ldsbase, gstep, flags, tag, js=(0,1,2,3)):
    a(f"s_add_u32 m0, s{S_LDSW}, {ldsbase}")
    if gstep == 1024:
        a("s_nop 0")
        for j in js:
            window(a)
            a.vm(f"buffer_load_dwordx4 v{voff+(j>>1)}, {sr(srd,4)}, s{soff} offen offset:{j*1024} {flags} lds", tag)
    else:
        for j in js:
            if j == 0: a(f"s_mov_b32 s{S_T0}, s{soff}")
            else: a(f"s_add_u32 s{S_T0}, s{soff}, {j*(gstep-1024)}")
            window(a)
            a.vm(f"buffer_load_dwordx4 v{voff+(j>>1)}, {sr(srd,4)}, s{S_T0} offen offset:{j*1024} {flags} lds", tag)

def mfma(d, x, y, c): return f"v_mfma_f32_16x16x32_bf16 {vr(d,4)}, {vr(x,4)}, {vr(y,4)}, {c if isinstance(c,str) else vr(c,4)}"

def pj_mm(seg, idx):
    if idx < 0: seg, idx = (seg-1) % 8, idx + 16
    ks, dt = idx >> 3, idx & 7
    return [mfma(OREG(dt,qh), V_VF+4*dt, XREG(4*seg+2*ks+qh), OREG(dt,qh)) for qh in range(2)]

def seg_flush(a, seg):
    a("s_waitcnt lgkmcnt(0)")
    for idx in range(16-PLAG, 16):
        for x in pj_mm(seg, idx): a(x)

TAILW = {2: 20, 3: 16, 4: 12, 5: 8, 6: 4, 7: 0}
def proj_segs(a):
    def rdl(idx):
        ks, dt = idx >> 3, idx & 7
        d = V_VF + 4*dt
        return [f"ds_read_b64_tr_b16 {vr(d,2)}, v{V_VA+dt} offset:{ks*8192}", f"ds_read_b64_tr_b16 {vr(d+2,2)}, v{V_VA+dt} offset:{ks*8192+1024}"]
    a.label("PJ0f")
    a("s_waitcnt lgkmcnt(2)")
    for idx in range(PLAG):
        for x in rdl(idx): a(x)
    a(f"s_waitcnt lgkmcnt({2*(PLAG-1)})")
    a("s_branch PJ0m")
    for seg in range(8):
        a.label(f"PJ{seg}")
        for idx in range(16):
            if seg == 0 and idx == PLAG: a.label("PJ0m")
            m = pj_mm(seg, idx-PLAG); r = rdl(idx)
            a(m[0]); a(r[0])
            if idx >= 9: a(f"v_add_u32 v{V_VA+idx-9}, s{S_DL+seg}, v{V_VA+idx-9}")
            a(m[1]); a(f"s_waitcnt lgkmcnt({2*(PLAG-1)-1})"); a(r[1])
            if idx == 15: a(f"v_add_u32 v{V_VA+7}, s{S_DL+seg}, v{V_VA+7}")
        if seg < 7:
            a("s_cbranch_scc1 PJret")
            if seg+1 in TAILW: a(f"s_waitcnt vmcnt({TAILW[seg+1]})")
    a.label("PJret")
    a(f"s_setpc_b64 {sr(S_RET,2)}")

def call_seg(a, seg, fresh, delta=None, chain=False):
    if delta is not None: a(f"s_mov_b32 s{S_DL+seg}, {u32(delta)}")
    a(f"s_cmp_eq_u32 0, {1 if chain else 0}")
    a(f"s_call_b64 {sr(S_RET,2)}, PJ{seg}{'f' if fresh else ''}")

def proj_bench(a):
    for i in range(8): a(f"s_mov_b32 s{S_DL+i}, 0")
    call_seg(a, 0, True, chain=True); seg_flush(a, 7)
    for i in range(8): call_seg(a, i, i == 0)
    seg_flush(a, 7)

def acc_to_frags(a, dstf, scale):
    for f in range(8):
        ks, qh = f >> 1, f & 1
        for h in range(2):
            b = OREG(2*ks+h, qh)
            if scale is None:
                if E("PKL"):
                    for i in range(2): a(f"v_pk_mul_f32 {vr(b+2*i,2)}, {vr(b+2*i,2)}, {sr(S_SC,2)}")
                else:
                    for i in range(4): a(f"v_mul_f32 v{b+i}, s{S_SC}, v{b+i}")
            else:
                if E("PKL"):
                    for i in range(2): a(f"v_pk_mul_f32 {vr(b+2*i,2)}, {vr(b+2*i,2)}, {vr(V_E+2*qh,2)}")
                else:
                    for i in range(4): a(f"v_mul_f32 v{b+i}, v{V_E+2*qh}, v{b+i}")
            for i in range(2): a(f"v_cvt_pk_bf16_f32 v{dstf(f)+2*h+i}, v{b+2*i}, v{b+2*i+1}")
    for op in ("v_permlane32_swap_b32", "v_permlane16_swap_b32"):
        for f in range(8):
            for i in range(2): a(f"{op} v{dstf(f)+i}, v{dstf(f)+2+i}")

def xreduce(a, op, d0, d1, t0, t1):
    for sw in ("v_permlane32_swap_b32", "v_permlane16_swap_b32"):
        a(f"v_mov_b32 v{t0}, v{d0}")
        a(f"v_mov_b32 v{t1}, v{d1}")
        a("s_nop 1")
        a(f"{sw} v{d0}, v{t0}")
        a(f"{sw} v{d1}, v{t1}")
        a(f"{op} v{d0}, v{d0}, v{t0}")
        a(f"{op} v{d1}, v{d1}, v{t1}")

def rowmax(a, S, d, t):
    for qh in range(2):
        b0, b1 = S+4*qh, S+8+4*qh
        a(f"v_max3_f32 v{d+qh}, v{b0}, v{b0+1}, v{b0+2}")
        a(f"v_max3_f32 v{d+qh}, v{d+qh}, v{b0+3}, v{b1}")
        a(f"v_max3_f32 v{d+qh}, v{d+qh}, v{b1+1}, v{b1+2}")
        a(f"v_max_f32 v{d+qh}, v{d+qh}, v{b1+3}")
    xreduce(a, "v_max_f32", d, d+1, t, t+1)

QH = lambda i: (i >> 2) & 1
def pidx(j): return 4*QH(j) + 2*(j >> 3) + ((j & 3) >> 1)

def rare(a, par):
    Sc, Sn, Pc = V_S[par], V_S[1-par], V_P[par]
    d, t = V_E, V_E+2
    a.label(f"L_rare{par}")
    a("s_nop 15")
    rowmax(a, Sc, d, t)
    for qh in range(2): a(f"v_add_f32 v{d+qh}, s{S_THR}, v{d+qh}")
    for qh in range(2): a(f"v_max_f32 v{d+qh}, 0, v{d+qh}")
    for qh in range(2): a(f"v_exp_f32 v{t+qh}, -v{d+qh}")
    for i in range(8): a(f"v_sub_f32 v{V_NM+i}, v{V_NM+i}, v{d+QH(i)}")
    for i in range(16): a(f"v_sub_f32 v{Sc+i}, v{Sc+i}, v{d+QH(i)}")
    for i in range(16): a(f"v_sub_f32 v{Sn+i}, v{Sn+i}, v{d+QH(i)}")
    for i in range(64): a(f"v_mul_f32 v{V_O+i}, v{V_O+i}, v{t+QH(i)}")
    for i in range(8): a(f"v_mul_f32 v{V_LA+i}, v{V_LA+i}, v{t+QH(i)}")
    for i in range(16): a(f"v_exp_f32 v{Sc+i}, v{Sc+i}")
    a("s_nop 0")
    for j in range(1, 16, 2): a(f"v_cvt_pk_bf16_f32 v{Pc+pidx(j)}, v{Sc+j-1}, v{Sc+j}")
    a("s_nop 1")
    a(f"s_setpc_b64 {sr(S_RET,2)}")

def att_pairs(a, par, i0, i1, qk, pv, sm, koff, voff, uid, bar=None):
    Sc, Sn, Pc, Pp = V_S[par], V_S[1-par], V_P[par], V_P[1-par]
    T = V_TMP
    W = [Pc+pidx(2*n+1) for n in range(8)]
    for i in range(i0, i1):
        kt, ks = i >> 2, i & 3
        f = (i + 4) % 8
        mq = [mfma(Sn+8*kt+4*qh, V_KF+4*i, V_Q+4*(2*ks+qh), (V_NM+4*qh) if ks == 0 else Sn+8*kt+4*qh) for qh in range(2)] if qk else [None, None]
        mp = [mfma(OREG(i,qh), V_VF+4*i, Pp+4*qh, OREG(i,qh)) for qh in range(2)] if pv else [None, None]
        ml = [mfma(V_LA+4*qh, V_ONE, Pp+4*qh, V_LA+4*qh) for qh in range(2)] if pv else [None, None]
        ex = [f"v_exp_f32 v{V_E+n}, v{Sc+2*i+n}" for n in range(2)] if sm else [None, None]
        cv = f"v_cvt_pk_bf16_f32 v{W[i]}, v{V_E}, v{V_E+1}" if sm else None
        def e(x):
            if x: a(x)
        def vread():
            o = voff(i)
            if o is None: return
            a.ds(f"ds_read_b64_tr_b16 {vr(V_VF+4*f,2)}, v{V_VA+f} offset:{o}", f"v{f}")
            a.ds(f"ds_read_b64_tr_b16 {vr(V_VF+4*f+2,2)}, v{V_VA+f} offset:{o+1024}", f"v{f}")
        def kread():
            o = koff(i)
            if o is None: return
            a.ds(f"ds_read_b128 {vr(V_KF+4*f,4)}, v{V_KA+(f&3)} offset:{o+(f>>2)*1024}", f"k{f}")
        nxt = [f"k{(i+1)%8}", f"v{(i+1)%8}"]
        if i < 7:
            e(mq[0]); e(ex[0]); e(mq[1])
            if bar and i == i0: bar()
            vread()
            e(mp[0]); a.dswait(nxt); e(ex[1]); e(mp[1]); kread()
            if sm and not pv and koff(i) is None: a("s_nop 0")
            e(cv)
            if i == 5:
                e(ml[1])
                if sm:
                    a(f"v_or3_b32 v{T}, v{W[0]}, v{W[1]}, v{W[2]}")
                    a(f"v_or3_b32 v{T}, v{T}, v{W[3]}, v{W[4]}")
        else:
            e(mq[0]); e(ex[0]); e(mq[1]); a.dswait(nxt); e(ex[1]); e(mp[0]); kread()
            if sm: a(f"v_or3_b32 v{T}, v{T}, v{W[5]}, v{W[6]}")
            e(mp[1]); e(cv)
            if sm:
                a(f"v_bitop3_b32 v{T}, v{T}, v{W[7]}, s{S_MSK} bitop3:0xa8")
                a(f"v_cmp_ne_u32 vcc, 0, v{T}")
            e(ml[0]); vread()
            if sm:
                a(f"s_cbranch_vccnz L_st{uid}")
                a.label(f"L_ok{uid}")
                a.stubs.append((uid, par))

def att_stubs(a):
    for uid, par in a.stubs:
        a.label(f"L_st{uid}")
        a(f"s_call_b64 {sr(S_RET,2)}, L_rare{par}")
        a(f"s_branch L_ok{uid}")

def attention(a):
    S0 = V_S[0]
    a.lq = []
    for u in range(8): a.ds(f"ds_read_b128 {vr(V_KF+4*u,4)}, v{V_KA+(u&3)} offset:{(u>>2)*1024}", f"k{u}")
    for i in range(32): a(f"v_mov_b64 {vr(V_O+2*i,2)}, 0")
    for i in range(4): a(f"v_mov_b64 {vr(V_LA+2*i,2)}, 0")
    for i in range(4): a(f"v_mov_b64 {vr(V_P[1]+2*i,2)}, 0")
    for i in range(8): a(f"v_mov_b64 {vr(V_VF+16+2*i,2)}, 0")
    for i in range(4): a(f"v_mov_b32 v{V_ONE+i}, 0x3f803f80")
    for u in range(8):
        kt, ks = u >> 2, u & 3
        if u % 4 == 0: a.dswait(f"k{u+3}")
        for qh in range(2): a(mfma(S0+8*kt+4*qh, V_KF+4*u, V_Q+4*(2*ks+qh), "0" if ks == 0 else S0+8*kt+4*qh))
    for u in range(4): a.ds(f"ds_read_b128 {vr(V_KF+4*u,4)}, v{V_KA+u} offset:8192", f"k{u}")
    a(f"s_mov_b32 s{S_CNT}, 0")
    a("s_nop 3")
    rowmax(a, S0, V_E, V_E+2)
    for qh in range(2): a(f"v_add_f32 v{V_E+qh}, s{S_THR}, v{V_E+qh}")
    for i in range(8): a(f"v_sub_f32 v{V_NM+i}, 0, v{V_E+QH(i)}")
    for i in range(16): a(f"v_sub_f32 v{S0+i}, v{S0+i}, v{V_E+QH(i)}")
    a.dswait("k0")
    att_pairs(a, 0, 0, 4, True, False, True, lambda i: 8192, lambda i: None, "p")
    lq_entry = list(a.lq)
    a.raw(".p2align 3")
    a.label("L_att_loop")
    for p in range(3):
        ks, vs = ((p+1) % 3)*16384, p*16384
        def bar(p=p):
            a.dsall()
            if p == 0: a("s_waitcnt vmcnt(8)")
            if p == 1: a("s_waitcnt vmcnt(0)")
            a("s_barrier")
        att_pairs(a, 0, 4, 8, True, True, True, lambda i: ks, lambda i: vs, f"a{p}", bar)
        att_pairs(a, 1, 0, 8, True, True, True, lambda i: ks + (i >> 2)*8192, lambda i: vs + (i >> 2)*8192, f"b{p}")
        att_pairs(a, 0, 0, 4, True, True, True, lambda i: ks + 8192, lambda i: vs + 8192, f"c{p}")
    a(f"s_add_u32 s{S_CNT}, s{S_CNT}, 1")
    a(f"s_cmp_lt_u32 s{S_CNT}, 5")
    a("s_cbranch_scc1 L_att_loop")
    def bar():
        a.dsall(); a("s_barrier")
    att_pairs(a, 0, 4, 8, True, True, True, lambda i: None, lambda i: 0, "e0", bar)
    att_pairs(a, 1, 0, 8, False, True, True, lambda i: None, lambda i: (i >> 2)*8192, "e1")
    att_pairs(a, 0, 0, 8, False, True, False, lambda i: None, lambda i: 8192 if i < 4 else None, "e2")
    assert a.lq == [], a.lq

def normalize_o(a):
    a("s_nop 7")
    for i in range(4): a(f"v_rcp_f32 v{V_E+i}, v{V_LA+2*i}")
    a("s_nop 0")
    acc_to_frags(a, XREG, "l")

def store_o(a):
    a(f"s_add_u32 s{S_T0}, s{S_OOFF}, 4096")
    for m in range(8):
        so = S_OOFF if m < 4 else S_T0
        a.vm(f"buffer_store_dwordx4 {vr(XREG(m),4)}, v{V_L16}, {sr(S_WS,4)}, s{so} offen offset:{(m%4)*1024} {OSF}", "ost")

def load_o(a, head_sgpr_off, first_frag, tag):
    a(f"s_add_u32 s{S_T0}, s{head_sgpr_off}, 4096")
    for m in range(8):
        so = head_sgpr_off if m < 4 else S_T0
        a.vm(f"buffer_load_dwordx4 {vr(XREG(first_frag+m),4)}, v{V_L16}, {sr(S_WS,4)}, s{so} offen offset:{(m%4)*1024} {OLF}", tag + ("a" if m < 4 else "b"))

def set_flag(a, kind, tag="flag"):
    a(f"v_mov_b32 v{V_TMP}, s{S_TOK}")
    a(f"v_mov_b32 v{V_TMP+1}, s{S_TOK+1}")
    a("s_mov_b64 exec, 1")
    a.vm(f"buffer_store_dwordx2 {vr(V_TMP,2)}, off, {sr(S_WS,4)}, s{S_FLG} offset:{kind*128} sc1", tag)
    a("s_mov_b64 exec, -1")

def poll_issue(a, kind, dst, tag):
    a("s_mov_b64 exec, 7")
    a.vm(f"buffer_load_dwordx2 {vr(dst,2)}, v{V_FL}, {sr(S_WS,4)}, 0 offen offset:{kind*128} sc1", tag)
    a("s_mov_b64 exec, -1")

def poll_spin(a, kind, uid, dst):
    a(f"s_mov_b32 s{S_CNT}, {SPIN_CAP}")
    a("s_mov_b64 exec, 7")
    a(f"s_branch L_pollf{uid}")
    a.label(f"L_poll{uid}")
    a(f"s_sub_u32 s{S_CNT}, s{S_CNT}, 1")
    a(f"s_cbranch_scc1 L_pollx{uid}")
    if int(E("SLP", "2")): a(f"s_sleep {E('SLP','2')}")
    a.label(f"L_pollf{uid}")
    a(f"buffer_load_dwordx2 {vr(dst,2)}, v{V_FL}, {sr(S_WS,4)}, 0 offen offset:{kind*128} sc1")
    a("s_waitcnt vmcnt(0)")
    a(f"v_cmp_ne_u64 vcc, {sr(S_TOK,2)}, {vr(dst,2)}")
    a(f"s_cbranch_vccnz L_poll{uid}")
    a.label(f"L_pollx{uid}")
    a("s_mov_b64 exec, -1")
    a.vmq = []

def pkg(a, g):
    kn, vn = g+1, g
    if kn <= 31:
        if kn == 16: a(f"s_mov_b32 s{S_KOFF}, s{S_H2OFF}")
        dma(a, S_K, V_DK, S_KOFF, KSLOT(kn), 1024, KV_FLAGS, f"p{g}")
        a(f"s_add_u32 s{S_KOFF}, s{S_KOFF}, 16384")
    if 0 <= vn <= 31:
        if vn == 16: a(f"s_mov_b32 s{S_VOFF}, s{S_H2OFF}")
        dma(a, S_V, V_DV, S_VOFF, VSLOT(vn), 1024, KV_FLAGS, f"p{g}")
        a(f"s_add_u32 s{S_VOFF}, s{S_VOFF}, 16384")

XS = [(VSLOT(1), WSLOT(0)), (WSLOT(3), VSLOT(2)), (VSLOT(0), KSLOT(2)), (WSLOT(1), WSLOT(2))]
W1S = [WSLOT(1), WSLOT(2), KSLOT(0), KSLOT(1), VSLOT(1), WSLOT(0), WSLOT(3), VSLOT(2)]

def x_addr_move(a, q, prev_q):
    pa, pb = XS[prev_q] if prev_q is not None else (0, 0)
    a(f"s_cmp_lt_u32 s{S_WV}, 2")
    a(f"s_mov_b32 s{S_T1}, {u32(XS[q][0]-pa)}")
    a(f"s_cselect_b32 s{S_T1}, s{S_T1}, {u32(XS[q][1]-pb)}")
    if prev_q is None: a(f"s_add_u32 s{S_T1}, s{S_T1}, s{S_HALF}")
    for m in range(4): a(f"v_add_u32 v{V_KA+m}, s{S_T1}, v{V_KA+m}")
def x_frag_issue(a, q):
    for f in range(8): a(f"ds_read_b128 {vr(XREG(8*q+f),4)}, v{V_KA+(f>>1)} offset:{(f&1)*1024}")
def x_addr_finish(a, kbase):
    a(f"s_cmp_lt_u32 s{S_WV}, 2")
    a(f"s_mov_b32 s{S_T1}, {u32(kbase-XS[3][0])}")
    a(f"s_cselect_b32 s{S_T1}, s{S_T1}, {u32(kbase-XS[3][1])}")
    a(f"s_sub_u32 s{S_T1}, s{S_T1}, s{S_HALF}")
    for m in range(4): a(f"v_add_u32 v{V_KA+m}, s{S_T1}, v{V_KA+m}")

def own_o_lds_addr(a, dst):
    a(f"s_cmp_lt_u32 s{S_WV}, 2")
    a(f"s_mov_b32 s{S_T1}, {VSLOT(30)}")
    a(f"s_cselect_b32 s{S_T1}, s{S_T1}, {KSLOT(31)}")
    a(f"s_add_u32 s{S_T1}, s{S_T1}, s{S_HALF}")
    a(f"v_add_u32 v{dst}, s{S_T1}, v{V_L16}")

def q_finalize(a):
    a(f"s_mov_b32 s{S_SC}, {f2u(QSCALE):#x}")
    a(f"s_mov_b32 s{S_SC+1}, {f2u(QSCALE):#x}")
    a("s_nop 3")
    acc_to_frags(a, lambda f: V_Q+4*f, None)

def proj1_inline(a):
    L = 5
    a.lq = []
    def rd(n):
        idx = n & 15; ks, dt = idx >> 3, idx & 7
        d = V_VF + 4*dt
        return [(f"ds_read_b64_tr_b16 {vr(d+2*u,2)}, v{V_VA+dt} offset:{ks*8192+u*1024}", f"f{n}") for u in range(2)]
    def xrd(q, f): return (f"ds_read_b128 {vr(XREG(8*q+f),4)}, v{V_KA+(f>>1)} offset:{(f&1)*1024}", f"x{8*q+f}")
    def need(n):
        seg, idx = n >> 4, n & 15
        return [f"f{n}", f"x{4*seg+2*(idx>>3)}", f"x{4*seg+2*(idx>>3)+1}"]
    for n in range(128 + L):
        seg, idx = n >> 4, n & 15
        m = pj_mm((n-L) >> 4, (n-L) & 15) if n >= L else [None, None]
        r = rd(n) if n < 128 else []
        x = xrd(seg//2, idx) if (n < 128 and seg % 2 == 0 and idx < 8) else None
        v = []
        if n < 128:
            delta = (W1S[seg+1] if seg < 7 else VSLOT(0)) - W1S[seg]
            if idx == 8: a(f"s_mov_b32 s{S_DL}, {u32(delta)}")
            if idx >= 9: v.append(f"v_add_u32 v{V_VA+idx-9}, s{S_DL}, v{V_VA+idx-9}")
            if seg % 2 == 1 and idx < 4: v.append(f"v_add_u32 v{V_KA+idx}, s{S_T1}, v{V_KA+idx}")
            if seg % 2 == 0 and idx == 12:
                q = seg // 2
                tgt = XS[q+1] if q < 3 else (KSLOT(0), KSLOT(0))
                a(f"s_cmp_lt_u32 s{S_WV}, 2")
                a(f"s_mov_b32 s{S_T1}, {u32(tgt[0]-XS[q][0])}")
                a(f"s_cselect_b32 s{S_T1}, s{S_T1}, {u32(tgt[1]-XS[q][1])}")
                if q == 3: a(f"s_sub_u32 s{S_T1}, s{S_T1}, s{S_HALF}")
        if m[0]: a(m[0])
        if idx == 0 and n <= 128: a("s_barrier")
        if x: a.ds(*x)
        if r: a.ds(*r[0])
        if v and not x: a(v.pop(0))
        if m[1]: a(m[1])
        if L <= n+1 < 128 + L: a.dswait(need(n+1-L))
        if r: a.ds(*r[1])
        for y in v: a(y)
        if n < 128 and idx == 15: a(f"v_add_u32 v{V_VA+7}, s{S_DL}, v{V_VA+7}")
    assert a.lq == []

def kernel(a, name):
    a.raw(f".globl {name}"); a.raw(".p2align 8"); a.raw(f".type {name},@function"); a.label(name)
    a("s_cmp_ge_u32 s2, 256")
    a("s_cbranch_scc1 L_end")
    if STAMPS: a(f"v_mov_b32 v{V_ST}, 0")
    stamp(a, 0)
    setup_srds(a)
    a(f"s_lshl_b32 s{S_T1}, s{S_SET}, 3")
    a(f"s_add_u32 s{S_T1}, s{S_T1}, s{S_J}")
    a(f"s_lshl_b32 s{S_T2}, s{S_B}, 5")
    a(f"s_add_u32 s{S_T2}, s{S_T2}, s{S_T1}")
    a(f"s_lshl_b32 s{S_KOFF}, s{S_T2}, 18")
    a(f"s_mov_b32 s{S_VOFF}, s{S_KOFF}")
    a(f"s_add_u32 s{S_H2OFF}, s{S_KOFF}, {4<<18}")
    a(f"s_mov_b32 s{S_THR}, 0x41700000")
    a(f"v_lshlrev_b32 v{V_L16}, 4, v{V_LANE}")
    setup_ktype_dma(a, V_E, 10)
    setup_vtype_dma(a, V_DW, 13)
    finish_srds(a)
    stamp(a, 1)
    a(f"s_lshl_b32 s{S_WBASE}, s{S_T1}, 8")
    a(f"s_lshl_b32 s{S_XBASE}, s{S_B}, 17")
    a(f"s_add_u32 s{S_ROT}, s{S_J}, s{S_B}")
    a(f"s_and_b32 s{S_ROT}, s{S_ROT}, {3 if E('NOROT') is None else 0}")
    a(f"s_cmp_eq_u32 s{S_GRP}, 0")
    a("s_cbranch_scc1 L_grpA")

    def common2():
        a(f"s_lshl_b32 s{S_T0}, s{S_BR}, 3")
        a(f"s_add_u32 s{S_T0}, s{S_T0}, s{S_B}")
        a(f"s_lshl_b32 s{S_T3}, s{S_T0}, 7")
        a(f"s_add_u32 s{S_T3}, s{S_T3}, {EPOCH_WS_OFF}")
        a(f"s_load_dwordx2 {sr(S_EP,2)}, {sr(S_WS,2)}, s{S_T3}")
        a(f"s_lshl_b32 s{S_T0}, s{S_T0}, 2")
        a(f"s_add_u32 s{S_T0}, s{S_T0}, s{S_SET}")
        a(f"s_lshl_b32 s{S_T0}, s{S_T0}, 5")
        a(f"s_add_u32 s{S_T0}, s{S_T0}, s{S_WV}")
        a(f"s_lshl_b32 s{S_OSET}, s{S_T0}, 13")
        a(f"s_lshl_b32 s{S_T0}, s{S_GRP}, 2")
        a(f"s_add_u32 s{S_T0}, s{S_T0}, s{S_J}")
        a(f"s_lshl_b32 s{S_T0}, s{S_T0}, 15")
        a(f"s_add_u32 s{S_OOFF}, s{S_OSET}, s{S_T0}")
        a(f"s_lshl_b32 s{S_T0}, s2, 2")
        a(f"s_add_u32 s{S_T0}, s{S_T0}, s{S_WV}")
        a(f"s_mul_i32 s{S_FLG}, s{S_T0}, 384")
        a(f"s_add_u32 s{S_FLG}, s{S_FLG}, {FLAG_WS_OFF}")
        a(f"s_mov_b32 s{S_MSK}, 0x40004000")
        a(f"s_and_b32 s{S_HALF}, s{S_WV}, 1")
        a(f"s_lshl_b32 s{S_HALF}, s{S_HALF}, 13")
        a(f"s_lshl_b32 s{S_WOB}, s{S_SET}, 20")
        a(f"s_lshl_b32 s{S_T0}, s{S_J}, 8")
        a(f"s_add_u32 s{S_WOB}, s{S_WOB}, s{S_T0}")
        setup_vtype_dma(a, V_DV, 8)
        setup_ktype_dma(a, V_DK, 8)
        k_addr_setup(a)
        x_addr_move(a, 0, None)
    def token():
        a("s_waitcnt lgkmcnt(0)")
        a(f"s_mul_i32 s{S_TOK}, s{S_EP}, 0x9E3779B1")
        a(f"s_add_u32 s{S_TOK}, s{S_TOK}, 0x7F4A7C15")
        a(f"s_mul_i32 s{S_TOK+1}, s{S_EP+1}, 0x85EBCA6D")
        a(f"s_add_u32 s{S_TOK+1}, s{S_TOK+1}, 0x27D4EB2F")

    TS = {t: WSLOT2(t) for t in range(6)}
    TS.update({6: KSLOT(29), 7: KSLOT(30), 8: VSLOT(29), 9: VSLOT(31), 10: TS[2], 11: TS[3], 12: TS[4], 13: TS[5], 14: KSLOT(29), 15: KSLOT(30)})
    def wo_off(t):
        d = (t >> 1) & 3
        a(f"s_add_u32 s{S_WOFF}, s{S_J}, {d}")
        a(f"s_and_b32 s{S_WOFF}, s{S_WOFF}, 3")
        a(f"s_lshl_b32 s{S_WOFF}, s{S_WOFF}, 17")
        a(f"s_add_u32 s{S_WOFF}, s{S_WOFF}, s{S_WOB}")
        add = (t >> 3)*4*131072 + (t & 1)*65536
        if add: a(f"s_add_u32 s{S_WOFF}, s{S_WOFF}, {add}")
    def wo_tile(t, js=(0,1,2,3)):
        if js[0] == 0: wo_off(t)
        dma(a, S_WO, V_DW, S_WOFF, TS[t], 4096, WO_FLAGS, f"wo{t}", js)

    a.vmq = []
    def rot_off(dst, q, shift, base):
        a(f"s_add_u32 s{dst}, s{S_ROT}, {q}")
        a(f"s_and_b32 s{dst}, s{dst}, 3")
        a(f"s_lshl_b32 s{dst}, s{dst}, {shift}")
        a(f"s_add_u32 s{dst}, s{dst}, s{base}")
    def xt(q, half):
        rot_off(S_XOFF, q, 8, S_XBASE)
        if half: a(f"s_add_u32 s{S_XOFF}, s{S_XOFF}, 65536")
        dma(a, S_X, V_E, S_XOFF, XS[q][half], 4096, X_FLAGS, f"s{2*q}")
    def wq(i, slot, tag, js=(0,1,2,3)):
        if js[0] == 0:
            rot_off(S_WOFF, i//2, 20, S_WBASE)
            if i % 2: a(f"s_add_u32 s{S_WOFF}, s{S_WOFF}, {64*8192}")
        dma(a, S_WQ, V_DW, S_WOFF, slot, 4*8192, WQ_FLAGS, tag, js)
    def ktile(n, tag):
        dma(a, S_K, V_DK, S_KOFF, KSLOT(n), 1024, KV_FLAGS, tag)
        a(f"s_add_u32 s{S_KOFF}, s{S_KOFF}, 16384")
    def vtile(n, tag):
        dma(a, S_V, V_DV, S_VOFF, VSLOT(n), 1024, KV_FLAGS, tag)
        a(f"s_add_u32 s{S_VOFF}, s{S_VOFF}, 16384")
    seq = []
    for q in range(4):
        seq += [lambda q=q: xt(q,0), lambda q=q: xt(q,1), lambda q=q: wq(2*q, W1S[2*q], f"s{2*q}"), lambda q=q: wq(2*q+1, W1S[2*q+1], f"s{2*q+1}")]
    seq += [lambda: ktile(0, "p-1"), lambda: ktile(1, "p0"), lambda: vtile(0, "p0"), lambda: ktile(2, "p1"), lambda: vtile(1, "p1")]
    free_after = [-1]*10 + [2, 2, 2, 3, 4, 4, 4, 5, 6, 6, 6]
    cum = eval(E("CUM", "[5,8,10,13,14,17,18,19,19]"))
    pos = [0]
    def issue_to(n, after):
        while pos[0] < n:
            assert free_after[pos[0]] <= after, (pos[0], after)
            seq[pos[0]](); pos[0] += 1
    issue_to(2, -1)
    common2()
    issue_to(cum[0], -1)
    setup_vtype_addr(a, WSLOT(0))
    token()
    for i in range(8):
        a.vmwait(f"s{i}")
        a("s_barrier")
        stamp(a, 2+i)
        if i % 2 == 1: x_frag_issue(a, i//2)
        issue_to(cum[i+1], i)
        if i == 6:
            for r in range(32): a(f"v_mov_b64 {vr(V_O+2*r,2)}, 0")
        if i % 2 == 1:
            a("s_waitcnt lgkmcnt(0)")
            if i < 6: x_addr_move(a, i//2+1, i//2)
            else: x_addr_finish(a, KSLOT(16))
    a(f"s_add_u32 s{S_WBASE}, s{S_WBASE}, {4*256}")
    a.vmwait("p-1")
    stamp(a, 10)
    a("s_barrier")
    stamp(a, 11)
    issue_to(21, 8)
    halves = eval(E("W2H", "{0:[0],1:[1],2:[2],3:[3],4:[4],5:[5],6:[6,7],7:[8],8:[9],9:[10,11],10:[12],11:[13],12:[14],13:[15]}"))
    cons = eval(E("W2C", "{2:0,4:1,6:2,7:3,9:4,10:5,12:6,14:7}"))
    def w2h(h): wq(h//2, WSLOT(h//2), f"w2_{h//2}", (0,1) if h % 2 == 0 else (2,3))
    for g in range(0, 16):
        WIN[0] = int(E("WIN1", "0"))
        tags = [f"p{g}"]
        if g in cons: tags.append(f"w2_{cons[g]}")
        a.vmwait(tags)
        stamp(a, 2*g+12)
        a("s_barrier")
        stamp(a, 2*g+13)
        for h in halves.get(g, []): w2h(h)
        pkg(a, g+2)
        if g in cons:
            i = cons[g]
            call_seg(a, i, i == 0, (WSLOT(i+1) if i < 7 else VSLOT(16)) - WSLOT(i))
            if i < 7: a("s_waitcnt lgkmcnt(0)")
        if g == 14:
            seg_flush(a, 7)
            q_finalize(a)
    WIN[0] = 0
    a("s_branch L_att_entry")

    a.label("L_grpA")
    a.vmq = []
    if not E("NOPF"):
        a(f"s_getpc_b64 {sr(S_SC,2)}")
        a.label("L_pc")
        a(f"s_sub_u32 s{S_SC}, s{S_SC}, L_pc-{name}")
        a(f"s_subb_u32 s{S_SC+1}, s{S_SC+1}, 0")
        a(f"s_lshr_b32 s{S_T0}, s2, 3")
        a(f"s_lshl_b32 s{S_T0}, s{S_T0}, 2")
        a(f"s_add_u32 s{S_T0}, s{S_T0}, s{S_WV}")
        a(f"s_lshl_b32 s{S_T0}, s{S_T0}, 2")
        a(f"v_and_b32 v{V_TMP}, 3, v{V_LANE}")
        a(f"v_add_lshl_u32 v{V_TMP}, v{V_TMP}, s{S_T0}, 7")
        a(f"v_min_u32 v{V_TMP}, L_code_end-{name}-4, v{V_TMP}")
        a(f"global_load_dword v{V_Q}, v{V_TMP}, {sr(S_SC,2)}")
    common2()
    setup_vtype_dma(a, V_DW, 10)
    setup_vtype_addr(a, W1S[0])
    for i in range(32): a(f"v_mov_b64 {vr(V_O+2*i,2)}, 0")
    token()
    a("s_waitcnt vmcnt(0)")
    proj1_inline(a)
    q_finalize(a)
    a.label("L_att_entry")
    attention(a)
    a(f"s_cmp_eq_u32 s{S_GRP}, 0")
    a("s_cbranch_scc0 L_B_fin")
    a.vmq = []
    a(f"s_add_u32 s{S_KOFF}, s{S_H2OFF}, {3*16384}")
    a(f"s_add_u32 s{S_VOFF}, s{S_H2OFF}, {2*16384}")
    def o_off(dst, d, second):
        a(f"s_add_u32 s{dst}, s{S_J}, {d}")
        a(f"s_and_b32 s{dst}, s{dst}, 3")
        a(f"s_lshl_b32 s{dst}, s{dst}, 15")
        a(f"s_add_u32 s{dst}, s{dst}, s{S_OSET}")
        if second: a(f"s_add_u32 s{dst}, s{dst}, {4*32768}")
    PUB = int(E("PUB", "29"))
    normalize_o(a)
    for i in range(32): a(f"v_mov_b64 {vr(V_O+2*i,2)}, 0")
    a(f"s_lshl_b32 s{S_T1}, s{S_SET}, 1")
    setup_vtype_addr(a, TS[0], xor_sgpr=S_T1)
    a(f"s_add_u32 s{S_T1}, s{S_J}, 1")
    a(f"v_add_u32 v{V_FL}, s{S_T1}, v{V_LANE}")
    a(f"v_and_b32 v{V_FL}, 3, v{V_FL}")
    a(f"v_lshlrev_b32 v{V_FL}, 5, v{V_FL}")
    a(f"s_and_b32 s{S_T1}, s2, 0xe7")
    a(f"s_lshl_b32 s{S_T1}, s{S_T1}, 2")
    a(f"s_add_u32 s{S_T1}, s{S_T1}, s{S_WV}")
    a(f"v_add_u32 v{V_FL}, s{S_T1}, v{V_FL}")
    a(f"v_mul_u32_u24 v{V_FL}, 384, v{V_FL}")
    a(f"v_add_u32 v{V_FL}, {FLAG_WS_OFF}, v{V_FL}")
    seg_at = {19: 0, 21: 1}
    for g in range(16, 32):
        WIN[0] = int(E("WIN2", "0")) if g <= 29 else 0
        tags = [f"p{g}"]
        if g in seg_at: tags.append(f"wo{seg_at[g]}")
        if g == PUB+1: tags.append("ost")
        a.vmwait(tags)
        if g == PUB+1: set_flag(a, 0)
        stamp(a, 2*(g-16)+10)
        a("s_barrier")
        stamp(a, 2*(g-16)+11)
        if g <= 27: wo_tile((g-16)//2, (0,1) if g % 2 == 0 else (2,3))
        if g + 2 <= 31: pkg(a, g+2)
        if g == 29: WIN[0] = 0
        if g == PUB: store_o(a)
        if g == 29: wo_tile(6)
        if g == 30:
            wo_tile(7); wo_tile(8)
            if not E("NOWPF"):
                a(f"v_lshrrev_b32 v{V_TMP}, 4, v{V_LANE}")
                a(f"v_and_b32 v{V_TMP+1}, 15, v{V_LANE}")
                a(f"v_lshlrev_b32 v{V_TMP+1}, 4, v{V_TMP+1}")
                a(f"v_lshl_add_u32 v{V_TMP}, v{V_TMP}, 10, v{V_TMP+1}")
                a(f"s_add_u32 s{S_T1}, s{S_J}, s{S_WV}")
                a(f"s_and_b32 s{S_T1}, s{S_T1}, 3")
                a(f"s_lshl_b32 s{S_T1}, s{S_T1}, 17")
                a(f"s_add_u32 s{S_T1}, s{S_T1}, s{S_WOB}")
                a(f"s_lshl_b32 s{S_T0}, s{S_B}, 14")
                a(f"s_add_u32 s{S_T1}, s{S_T1}, s{S_T0}")
                a(f"s_add_u32 s{S_T1}, s{S_T1}, {4*131072}")
                for r in range(4):
                    a.vm(f"buffer_load_dwordx4 {vr(XREG(8+r),4)}, v{V_TMP}, {sr(S_WO,4)}, s{S_T1} offen", "wpf")
                    if r < 3: a(f"s_add_u32 s{S_T1}, s{S_T1}, 4096")
        if g in seg_at:
            s_ = seg_at[g]
            call_seg(a, s_, s_ == 0, TS[s_+1] - TS[s_])
            a("s_waitcnt lgkmcnt(0)")
    if PUB == 31:
        a.vmwait("ost"); set_flag(a, 0)
    poll_spin(a, 0, "1", V_E)
    stamp(a, 44)
    for d in (1, 2, 3):
        o_off(S_T1, d, False)
        load_o(a, S_T1, 8*d, f"oa{d}")
    own_o_lds_addr(a, V_E+2)
    def seg(t, wait=None):
        if wait: a.vmwait(wait)
        call_seg(a, t % 8, False, (TS[t+1] - TS[t]) if t < 15 else 0)
    a.vmwait("oa1a")
    stamp(a, 45)
    seg(2); seg(3, "oa1b"); seg(4, "oa2a")
    a("s_waitcnt lgkmcnt(0)")
    stamp(a, 46)
    a("s_barrier")
    stamp(a, 47)
    poll_issue(a, 1, V_E, "pl2")
    for m in range(8): a(f"ds_read_b128 {vr(XREG(m),4)}, v{V_E+2} offset:{m*1024}")
    seg(5, "oa2b")
    a.vmall()
    a("s_mov_b64 exec, 7")
    a(f"v_cmp_ne_u64 vcc, {sr(S_TOK,2)}, {vr(V_E,2)}")
    a("s_mov_b64 exec, -1")
    a(f"s_mov_b32 s{S_RDY}, 0")
    a("s_cbranch_vccnz L_nrdy1")
    a(f"s_mov_b32 s{S_RDY}, 1")
    o_off(S_T1, 1, True); load_o(a, S_T1, 8, "ob1")
    a.label("L_nrdy1")
    seg(6)
    a(f"s_cmp_eq_u32 s{S_RDY}, 0")
    a("s_cbranch_scc1 L_nrdy2")
    o_off(S_T1, 2, True); load_o(a, S_T1, 16, "ob2")
    a.label("L_nrdy2")
    seg(7); seg(8)
    a("s_waitcnt lgkmcnt(0)")
    stamp(a, 48)
    a("s_barrier")
    stamp(a, 49)
    a(f"s_cmp_eq_u32 s{S_RDY}, 0")
    a("s_cbranch_scc0 L_rdy3")
    q = list(a.vmq)
    poll_spin(a, 1, "2", V_E)
    for d in (1, 2):
        o_off(S_T1, d, True); load_o(a, S_T1, 8*d, f"ob{d}")
    assert a.vmq == q, (a.vmq, q)
    a.label("L_rdy3")
    o_off(S_T1, 3, True); load_o(a, S_T1, 24, "ob3")
    stamp(a, 50)
    seg(9); seg(10, "ob1a"); seg(11, "ob1b"); seg(12, "ob2a")
    stamp(a, 51)
    a("s_barrier")
    seg(13, "ob2b"); seg(14, "ob3a"); seg(15, "ob3b")
    seg_flush(a, 7)
    stamp(a, 52)
    a(f"s_lshl_b32 s{S_T1}, s2, 2")
    a(f"s_add_u32 s{S_T1}, s{S_T1}, s{S_WV}")
    a(f"s_lshl_b32 s{S_T1}, s{S_T1}, 14")
    a(f"s_add_u32 s{S_T1}, s{S_T1}, {PART_WS_OFF}")
    a(f"v_add_u32 v{V_FL}, 1, v{V_LANE}")
    a(f"v_and_b32 v{V_FL}, 3, v{V_FL}")
    a(f"v_xor_b32 v{V_FL}, s2, v{V_FL}")
    a(f"v_lshlrev_b32 v{V_FL}, 2, v{V_FL}")
    a(f"v_add_u32 v{V_FL}, s{S_WV}, v{V_FL}")
    a(f"v_mul_u32_u24 v{V_FL}, 384, v{V_FL}")
    a(f"v_add_u32 v{V_FL}, {FLAG_WS_OFF}, v{V_FL}")
    PB = 128
    for beta in (1, 2, 3):
        a(f"s_add_u32 s{S_T1}, s{S_T1}, 4096")
        if PBF16:
            for i in range(8): a(f"v_cvt_pk_bf16_f32 v{PB+8*beta+i}, v{V_O+16*beta+2*i}, v{V_O+16*beta+2*i+1}")
            for i in range(2):
                a.vm(f"buffer_store_dwordx4 {vr(PB+8*beta+4*i,4)}, v{V_L16}, {sr(S_WS,4)}, s{S_T1} offen offset:{i*1024} sc1", "pst")
        else:
            for i in range(4):
                a.vm(f"buffer_store_dwordx4 {vr(V_O+16*beta+4*i,4)}, v{V_L16}, {sr(S_WS,4)}, s{S_T1} offen offset:{i*1024} sc1", "pst")
    t0, t1 = V_E+2, V_E+3
    row0(a, t0, t1)
    a(f"v_and_b32 v{t1}, 0x30, v{V_LANE}")
    a(f"v_lshl_add_u32 v{t0}, v{t0}, 11, v{t1}")
    a(f"s_lshl_b32 s{S_T2}, s{S_B}, 2")
    a(f"s_add_u32 s{S_T2}, s{S_T2}, s{S_WV}")
    a(f"s_lshl_b32 s{S_T2}, s{S_T2}, 16")
    a(f"s_lshl_b32 s{S_T0}, s{S_BR}, 10")
    a(f"s_add_u32 s{S_T2}, s{S_T2}, s{S_T0}")
    a(f"s_lshl_b32 s{S_T0}, s{S_J}, 8")
    a(f"s_add_u32 s{S_T2}, s{S_T2}, s{S_T0}")
    a(f"s_lshl_b32 s{S_T0}, s{S_SET}, 6")
    a(f"s_add_u32 s{S_T2}, s{S_T2}, s{S_T0}")
    a(f"s_add_u32 s{S_KD}, s{S_T2}, 8192")
    a.vmall()
    stamp(a, 53)
    set_flag(a, 2)
    poll_spin(a, 2, "3", V_E)
    stamp(a, 54)
    for beta in (1, 2, 3):
        a(f"s_xor_b32 s{S_T1}, s2, {beta}")
        a(f"s_lshl_b32 s{S_T1}, s{S_T1}, 2")
        a(f"s_add_u32 s{S_T1}, s{S_T1}, s{S_WV}")
        a(f"s_lshl_b32 s{S_T1}, s{S_T1}, 14")
        a(f"s_add_u32 s{S_T1}, s{S_T1}, {PART_WS_OFF + beta*4096}")
        if PBF16:
            for i in range(2):
                a.vm(f"buffer_load_dwordx4 {vr(PB+8*beta+4*i,4)}, v{V_L16}, {sr(S_WS,4)}, s{S_T1} offen offset:{i*1024} sc1", f"pl{beta}")
        else:
            for i in range(4):
                a.vm(f"buffer_load_dwordx4 {vr(V_O+16*beta+4*i,4)}, v{V_L16}, {sr(S_WS,4)}, s{S_T1} offen offset:{i*1024} sc1", f"pl{beta}")
    for beta in (1, 2, 3):
        a.vmwait(f"pl{beta}")
        if PBF16:
            for i in range(8):
                a(f"v_lshlrev_b32 v{V_TMP}, 16, v{PB+8*beta+i}")
                a(f"v_and_b32 v{V_TMP+1}, 0xffff0000, v{PB+8*beta+i}")
                a(f"v_add_f32 v{V_O+2*i}, v{V_O+2*i}, v{V_TMP}")
                a(f"v_add_f32 v{V_O+2*i+1}, v{V_O+2*i+1}, v{V_TMP+1}")
        else:
            for i in range(16): a(f"v_add_f32 v{V_O+i}, v{V_O+i}, v{V_O+16*beta+i}")
    for qh in range(2):
        for h in range(2):
            for i in range(2): a(f"v_cvt_pk_bf16_f32 v{V_Q+4*qh+2*h+i}, v{OREG(h,qh)+2*i}, v{OREG(h,qh)+2*i+1}")
    a("s_nop 1")
    for op in ("v_permlane32_swap_b32", "v_permlane16_swap_b32"):
        for qh in range(2):
            for i in range(2): a(f"{op} v{V_Q+4*qh+i}, v{V_Q+4*qh+2+i}")
    a(f"buffer_store_dwordx4 {vr(V_Q,4)}, v{t0}, {sr(S_OUT,4)}, s{S_T2} offen")
    a(f"buffer_store_dwordx4 {vr(V_Q+4,4)}, v{t0}, {sr(S_OUT,4)}, s{S_KD} offen")
    a(f"s_or_b32 s{S_T0}, s{S_SET}, s{S_J}")
    a(f"s_or_b32 s{S_T0}, s{S_T0}, s{S_WV}")
    a("s_cbranch_scc1 L_noep")
    a(f"v_mov_b32 v{V_TMP}, s{S_TOK}")
    a(f"v_mov_b32 v{V_TMP+1}, s{S_TOK+1}")
    a("s_mov_b64 exec, 1")
    a(f"buffer_store_dwordx2 {vr(V_TMP,2)}, off, {sr(S_WS,4)}, s{S_T3} sc1")
    a("s_mov_b64 exec, -1")
    a.label("L_noep")
    if STAMPS: a("s_waitcnt vmcnt(0)")
    stamp(a, 55)
    stamp_flush(a)
    a("s_endpgm")

    a.label("L_B_fin")
    a.vmq = []
    stamp(a, 58)
    normalize_o(a)
    store_o(a)
    own_o_lds_addr(a, V_E)
    for m in range(8): a(f"ds_write_b128 v{V_E}, {vr(XREG(m),4)} offset:{m*1024}")
    setup_vtype_dma(a, V_DW, 10)
    stamp(a, 59)
    a.vmall()
    set_flag(a, 1)
    a("s_waitcnt lgkmcnt(0)")
    stamp(a, 60)
    a("s_barrier")
    for t in (9, 10, 11, 12): wo_tile(t)
    a.vmall()
    stamp(a, 61)
    a("s_barrier")
    for t in (13, 14, 15): wo_tile(t)
    a.vmall()
    stamp(a, 62)
    a("s_barrier")
    stamp_flush(a)
    a.label("L_end")
    a("s_endpgm")
    att_stubs(a)
    rare(a, 0); rare(a, 1)
    proj_segs(a)
    a.label("L_code_end")

def main(fn):
    a = Asm()
    name = NAME + "_kernel"
    a.raw(f"; @launch grid=(256,1,1) block=(512,1,1) lds=163840")
    a.raw('.amdgcn_target "amdgcn-amd-amdhsa--gfx950"')
    a.raw(".text")
    kernel(a, name)
    a.raw('.section .rodata,"a"')
    a.raw(".p2align 6")
    a.raw(f".amdhsa_kernel {name}")
    a.raw(f"  .amdhsa_next_free_vgpr 256"); a.raw(f"  .amdhsa_next_free_sgpr 96"); a.raw(f"  .amdhsa_accum_offset 256")
    a.raw("  .amdhsa_group_segment_fixed_size 0"); a.raw("  .amdhsa_kernarg_size 104"); a.raw("  .amdhsa_user_sgpr_count 2")
    a.raw("  .amdhsa_user_sgpr_kernarg_segment_ptr 1"); a.raw("  .amdhsa_system_sgpr_workgroup_id_x 1"); a.raw(".end_amdhsa_kernel")
    open(fn, "w").write(a.text())

if __name__ == "__main__":
    if len(sys.argv) > 2 and sys.argv[2] == "stamps": STAMPS = True
    main(sys.argv[1] if len(sys.argv) > 1 else "k3.s")
```

```python
import sys, math, os, struct
NAME = "concat_heads__mha_block_cached__gqa_block_cached__near_ridge"
E = os.environ.get

class Asm:
    def __init__(s):
        s.L = []; s.vmq = []; s.lq = []; s.stubs = []
    def __call__(s, t): s.L.append("  " + " ".join(t.split()))
    def label(s, t): s.L.append(t + ":")
    def raw(s, t): s.L.append(t)
    def vm(s, t, tag):
        s(t); s.vmq.append(tag)
    def vmwait(s, tags):
        if not isinstance(tags, (list, tuple, set)): tags = [tags]
        last = -1
        for i, t in enumerate(s.vmq):
            if t in tags: last = i
        if last < 0: return
        n = len(s.vmq) - 1 - last
        assert n <= 63, n
        s(f"s_waitcnt vmcnt({n})")
        s.vmq = s.vmq[last+1:]
    def vmall(s):
        s("s_waitcnt vmcnt(0)"); s.vmq = []
    def ds(s, t, tag):
        s(t); s.lq.append(tag)
        assert len(s.lq) <= 15, s.lq
    def dswait(s, tags, force=False):
        if not isinstance(tags, (list, tuple, set)): tags = [tags]
        last = -1
        for i, t in enumerate(s.lq):
            if t in tags: last = i
        if last < 0: return
        s(f"s_waitcnt lgkmcnt({len(s.lq) - 1 - last})")
        s.lq = s.lq[last+1:]
    def dsall(s):
        s("s_waitcnt lgkmcnt(0)"); s.lq = []
    def text(s): return "\n".join(s.L) + "\n"

def vr(b, n=1): return f"v{b}" if n == 1 else f"v[{b}:{b+n-1}]"
def sr(b, n=1): return f"s{b}" if n == 1 else f"s[{b}:{b+n-1}]"
def f2u(f): return struct.unpack("<I", struct.pack("<f", f))[0]
def u32(x): return f"{x & 0xffffffff:#x}"

V_LANE = 1
V_KA = 2
V_VA = 6
V_DK = 14
V_DV = 16
V_DW = 18
V_ONE = 20
V_FL = 20
V_L  = 22
V_E  = 24
V_TMP = 28
V_L16 = 30
V_ST = 31
V_Q  = 32
V_O  = 64
V_NM = 128
V_LA = 136
V_S  = [144, 160]
V_P  = [176, 184]
V_KF = 192
V_VF = 224
def XREG(s): return (128 + 4*s) if s < 24 else (32 + 4*(s-24))
def OREG(dt, qh): return V_O + 8*dt + 4*qh

S_K, S_V, S_X, S_WQ, S_WS, S_WO, S_OUT = 4, 8, 12, 16, 20, 24, 28
S_RET = 32
S_WV = 34; S_GRP = 35
S_DBG = 36
S_BR = 52; S_B = 53; S_J = 54; S_SET = 55
S_KOFF = 56; S_VOFF = 57; S_WOFF = 58; S_XOFF = 59; S_LDSW = 60
S_H2OFF = 61; S_CNT = 62; S_KD = 63; S_VD = 64; S_KS = 65; S_VS = 66
S_THR = 67; S_T0 = 68; S_T1 = 69; S_OOFF = 70; S_T2 = 71
S_C16K = 40; S_ROT = 41; S_WBASE = 42; S_XBASE = 43; S_HALF = 44; S_OSET = 45; S_FLG = 46; S_T3 = 47; S_WOB = 48
S_STAMP = 80
S_EP = 84
S_TOK = 86
S_RDY = 88
S_SC = 90
S_MSK = 49

KSLOT = lambda n: (n % 3) * 16384 if n < 16 else 16384 + ((n-16) % 3) * 16384
VSLOT = lambda n: 65536 + KSLOT(n)
WSLOT = lambda n: [49152, 114688, 131072, 147456][n % 4]
WSLOT2 = lambda n: [131072, 147456, 0, 65536][n % 4]
S_DL = 72
PLAG = 6
QSCALE = (1.0/math.sqrt(128.0)) * math.log2(math.e)

KV_FLAGS = E("KVF", "nt")
WQ_FLAGS = E("WQF", "")
WO_FLAGS = E("WOF", "")
X_FLAGS = E("XF", "")
OSF = E("OSF", "sc1")
OLF = E("OLF", "sc1")
PBF16 = E("PBF16", "0") == "1"
O_WS_OFF = 0
PART_WS_OFF = 16*1024*1024
FLAG_WS_OFF = 32*1024*1024
EPOCH_WS_OFF = 33*1024*1024
STAMP_WS_OFF = 64*1024*1024
STAMPS = False
SPIN_CAP = 0x40000

def stamp(a, idx):
    if not STAMPS: return
    a(f"s_memrealtime s[{S_STAMP}:{S_STAMP+1}]")
    if idx > 0: a(f"s_memtime s[{S_STAMP+2}:{S_STAMP+3}]")
    a("s_waitcnt lgkmcnt(0)")
    a(f"v_writelane_b32 v{V_ST}, s{S_STAMP}, {idx}")
    if idx > 0: a(f"v_writelane_b32 v0, s{S_STAMP+2}, {idx}")
def stamp_flush(a):
    if not STAMPS: return
    a(f"s_lshl_b32 s{S_STAMP}, s2, 3")
    a(f"s_lshl_b32 s{S_STAMP+1}, s{S_GRP}, 2")
    a(f"s_add_u32 s{S_STAMP}, s{S_STAMP}, s{S_STAMP+1}")
    a(f"s_add_u32 s{S_STAMP}, s{S_STAMP}, s{S_WV}")
    a(f"s_lshl_b32 s{S_STAMP}, s{S_STAMP}, 8")
    a(f"s_add_u32 s{S_STAMP}, s{S_STAMP}, {STAMP_WS_OFF}")
    a(f"v_lshlrev_b32 v{V_TMP}, 2, v{V_LANE}")
    a(f"buffer_store_dword v{V_ST}, v{V_TMP}, {sr(S_WS,4)}, s{S_STAMP} offen")
    a(f"s_add_u32 s{S_STAMP}, s{S_STAMP}, {256*8*256}")
    a(f"buffer_store_dword v0, v{V_TMP}, {sr(S_WS,4)}, s{S_STAMP} offen")

def setup_srds(a):
    a("s_load_dwordx16 s[36:51], s[0:1], 0")
    a("s_load_dwordx8 s[72:79], s[0:1], 64")
    a("s_load_dwordx2 s[20:21], s[0:1], 96")
    a("s_and_b32 s3, s2, 7")
    a(f"s_and_b32 s{S_SET}, s3, 3")
    if E("MAP", "1") == "1":
        a(f"s_lshr_b32 s{S_BR}, s3, 2")
        a(f"s_lshr_b32 s{S_B}, s2, 5")
    elif E("MAP") == "2":
        a(f"s_bfe_u32 s{S_BR}, s2, 0x10005")
        a(f"s_lshr_b32 s{S_B}, s2, 6")
        a(f"s_and_b32 s3, s3, 4")
        a(f"s_or_b32 s{S_B}, s{S_B}, s3")
    else:
        a(f"s_bfe_u32 s{S_BR}, s2, 0x10005")
        a(f"s_lshr_b32 s{S_B}, s2, 6")
        a(f"s_lshl_b32 s{S_B}, s{S_B}, 1")
        a(f"s_lshr_b32 s3, s3, 2")
        a(f"s_or_b32 s{S_B}, s{S_B}, s3")
    a(f"s_lshr_b32 s{S_J}, s2, 3")
    a(f"s_and_b32 s{S_J}, s{S_J}, 3")
    a(f"v_lshrrev_b32 v2, 6, v0")
    a(f"v_and_b32 v{V_LANE}, 63, v0")
    a(f"v_readfirstlane_b32 s{S_WV}, v2")
    for b, n in ((S_K, 1<<26), (S_V, 1<<26), (S_X, 1<<20), (S_WQ, 1<<22), (S_WS, 287309824), (S_WO, 1<<22), (S_OUT, 1<<21)):
        a(f"s_mov_b32 s{b+2}, {n}")
        a(f"s_mov_b32 s{b+3}, 0x20000")
    a(f"s_lshr_b32 s{S_GRP}, s{S_WV}, 2")
    a(f"s_and_b32 s{S_WV}, s{S_WV}, 3")
    a(f"s_lshl_b32 s{S_LDSW}, s{S_WV}, 12")

def finish_srds(a):
    a("s_waitcnt lgkmcnt(0)")
    a(f"s_cmp_eq_u32 s{S_BR}, 0")
    for b, sa, sb in ((S_X, 36, 46), (S_K, 38, 48), (S_V, 40, 50), (S_WQ, 42, 72), (S_WO, 44, 74)):
        a(f"s_cselect_b32 s{b}, s{sa}, s{sb}")
        a(f"s_cselect_b32 s{b+1}, s{sa+1}, s{sb+1}")
    a(f"s_mov_b32 s{S_OUT}, s76")
    a(f"s_mov_b32 s{S_OUT+1}, s77")
    a(f"s_mov_b32 s{S_DBG}, s78")
    a(f"s_mov_b32 s{S_DBG+1}, s79")
    a(f"s_mov_b32 s{S_DBG+2}, 256")
    a(f"s_mov_b32 s{S_DBG+3}, 0x20000")

def setup_vtype_addr(a, base_imm, xor_sgpr=None):
    t0, t1, t2 = V_TMP, V_TMP+1, V_E+3
    a(f"v_bfe_u32 v{t0}, v{V_LANE}, 2, 3")
    a(f"v_bfe_u32 v{t2}, v{V_LANE}, 2, 2")
    a(f"v_lshrrev_b32 v{t1}, 4, v{V_LANE}")
    a(f"v_lshl_add_u32 v{t1}, v{t1}, 3, v{t2}")
    a(f"v_lshlrev_b32 v{t1}, 8, v{t1}")
    a(f"v_and_b32 v{t2}, 3, v{V_LANE}")
    a(f"v_lshl_add_u32 v{t1}, v{t2}, 3, v{t1}")
    if base_imm: a(f"v_add_u32 v{t1}, {base_imm}, v{t1}")
    if xor_sgpr is not None: a(f"v_xor_b32 v{t0}, s{xor_sgpr}, v{t0}")
    for dt in range(8):
        a(f"v_xor_b32 v{t2}, {dt}, v{t0}")
        a(f"v_lshl_add_u32 v{V_VA+dt}, v{t2}, 5, v{t1}")

def setup_vtype_dma(a, dst, log2stride):
    t0, t1, t2 = V_TMP, V_TMP+1, V_E+3
    a(f"v_lshrrev_b32 v{t0}, 4, v{V_LANE}")
    a(f"v_and_b32 v{t1}, 15, v{V_LANE}")
    a(f"v_lshlrev_b32 v{t2}, 1, v{t0}")
    a(f"v_xor_b32 v{t1}, v{t1}, v{t2}")
    a(f"v_lshlrev_b32 v{t1}, 4, v{t1}")
    a(f"s_lshl_b32 s{S_T0}, s{S_WV}, 4")
    a(f"v_add_u32 v{t0}, s{S_T0}, v{t0}")
    a(f"v_lshl_add_u32 v{dst}, v{t0}, {log2stride}, v{t1}")
    a(f"v_xor_b32 v{dst+1}, 0x80, v{dst}")

def setup_ktype_dma(a, dst, log2stride):
    t0, t1, t2 = V_TMP, V_TMP+1, V_E+3
    a(f"v_lshrrev_b32 v{t0}, 4, v{V_LANE}")
    a(f"v_and_b32 v{t1}, 15, v{V_LANE}")
    a(f"v_xor_b32 v{t1}, v{t1}, v{t0}")
    a(f"s_and_b32 s{S_T0}, s{S_WV}, 1")
    a(f"s_lshl_b32 s{S_T0}, s{S_T0}, 3")
    a(f"v_xor_b32 v{t1}, s{S_T0}, v{t1}")
    a(f"v_lshlrev_b32 v{t1}, 4, v{t1}")
    a(f"s_lshl_b32 s{S_T0}, s{S_WV}, 4")
    a(f"v_add_u32 v{t0}, s{S_T0}, v{t0}")
    a(f"v_lshl_add_u32 v{dst}, v{t0}, {log2stride}, v{t1}")
    a(f"v_xor_b32 v{dst+1}, 0x40, v{dst}")

def row0(a, dst, tmp):
    a(f"v_bfe_u32 v{tmp}, v{V_LANE}, 2, 2")
    a(f"v_and_b32 v{dst}, 3, v{V_LANE}")
    a(f"v_lshl_or_b32 v{dst}, v{tmp}, 3, v{dst}")

def k_addr_setup(a):
    t0, t1, t2 = V_TMP, V_TMP+1, V_E+3
    row0(a, t0, t1)
    a(f"v_lshlrev_b32 v{t0}, 8, v{t0}")
    a(f"v_and_b32 v{t1}, 15, v{V_LANE}")
    a(f"v_lshrrev_b32 v{t2}, 4, v{V_LANE}")
    a(f"v_xor_b32 v{t1}, v{t1}, v{t2}")
    for ks in range(4):
        a(f"v_xor_b32 v{t2}, {4*ks}, v{t1}")
        a(f"v_lshl_add_u32 v{V_KA+ks}, v{t2}, 4, v{t0}")

WIN = [0]
def window(a):
    w = WIN[0]
    if w and len(a.vmq) >= w:
        a(f"s_waitcnt vmcnt({w-1})")
        a.vmq = a.vmq[len(a.vmq)-(w-1):]
def dma(a, srd, voff, soff, ldsbase, gstep, flags, tag, js=(0,1,2,3)):
    a(f"s_add_u32 m0, s{S_LDSW}, {ldsbase}")
    if gstep == 1024:
        a("s_nop 0")
        for j in js:
            window(a)
            a.vm(f"buffer_load_dwordx4 v{voff+(j>>1)}, {sr(srd,4)}, s{soff} offen offset:{j*1024} {flags} lds", tag)
    else:
        for j in js:
            if j == 0: a(f"s_mov_b32 s{S_T0}, s{soff}")
            else: a(f"s_add_u32 s{S_T0}, s{soff}, {j*(gstep-1024)}")
            window(a)
            a.vm(f"buffer_load_dwordx4 v{voff+(j>>1)}, {sr(srd,4)}, s{S_T0} offen offset:{j*1024} {flags} lds", tag)

def mfma(d, x, y, c): return f"v_mfma_f32_16x16x32_bf16 {vr(d,4)}, {vr(x,4)}, {vr(y,4)}, {c if isinstance(c,str) else vr(c,4)}"

def pj_mm(seg, idx):
    if idx < 0: seg, idx = (seg-1) % 8, idx + 16
    ks, dt = idx >> 3, idx & 7
    return [mfma(OREG(dt,qh), V_VF+4*dt, XREG(4*seg+2*ks+qh), OREG(dt,qh)) for qh in range(2)]

def seg_flush(a, seg):
    a("s_waitcnt lgkmcnt(0)")
    for idx in range(16-PLAG, 16):
        for x in pj_mm(seg, idx): a(x)

TAILW = {2: 20, 3: 16, 4: 12, 5: 8, 6: 4, 7: 0}
def proj_segs(a):
    def rdl(idx):
        ks, dt = idx >> 3, idx & 7
        d = V_VF + 4*dt
        return [f"ds_read_b64_tr_b16 {vr(d,2)}, v{V_VA+dt} offset:{ks*8192}", f"ds_read_b64_tr_b16 {vr(d+2,2)}, v{V_VA+dt} offset:{ks*8192+1024}"]
    a.label("PJ0f")
    a("s_waitcnt lgkmcnt(2)")
    for idx in range(PLAG):
        for x in rdl(idx): a(x)
    a(f"s_waitcnt lgkmcnt({2*(PLAG-1)})")
    a("s_branch PJ0m")
    for seg in range(8):
        a.label(f"PJ{seg}")
        for idx in range(16):
            if seg == 0 and idx == PLAG: a.label("PJ0m")
            m = pj_mm(seg, idx-PLAG); r = rdl(idx)
            a(m[0]); a(r[0])
            if idx >= 9: a(f"v_add_u32 v{V_VA+idx-9}, s{S_DL+seg}, v{V_VA+idx-9}")
            a(m[1]); a(f"s_waitcnt lgkmcnt({2*(PLAG-1)-1})"); a(r[1])
            if idx == 15: a(f"v_add_u32 v{V_VA+7}, s{S_DL+seg}, v{V_VA+7}")
        if seg < 7:
            a("s_cbranch_scc1 PJret")
            if seg+1 in TAILW: a(f"s_waitcnt vmcnt({TAILW[seg+1]})")
    a.label("PJret")
    a(f"s_setpc_b64 {sr(S_RET,2)}")

def call_seg(a, seg, fresh, delta=None, chain=False):
    if delta is not None: a(f"s_mov_b32 s{S_DL+seg}, {u32(delta)}")
    a(f"s_cmp_eq_u32 0, {1 if chain else 0}")
    a(f"s_call_b64 {sr(S_RET,2)}, PJ{seg}{'f' if fresh else ''}")

def proj_bench(a):
    for i in range(8): a(f"s_mov_b32 s{S_DL+i}, 0")
    call_seg(a, 0, True, chain=True); seg_flush(a, 7)
    for i in range(8): call_seg(a, i, i == 0)
    seg_flush(a, 7)

def acc_to_frags(a, dstf, scale):
    for f in range(8):
        ks, qh = f >> 1, f & 1
        for h in range(2):
            b = OREG(2*ks+h, qh)
            if scale is None:
                if E("PKL"):
                    for i in range(2): a(f"v_pk_mul_f32 {vr(b+2*i,2)}, {vr(b+2*i,2)}, {sr(S_SC,2)}")
                else:
                    for i in range(4): a(f"v_mul_f32 v{b+i}, s{S_SC}, v{b+i}")
            else:
                if E("PKL"):
                    for i in range(2): a(f"v_pk_mul_f32 {vr(b+2*i,2)}, {vr(b+2*i,2)}, {vr(V_E+2*qh,2)}")
                else:
                    for i in range(4): a(f"v_mul_f32 v{b+i}, v{V_E+2*qh}, v{b+i}")
            for i in range(2): a(f"v_cvt_pk_bf16_f32 v{dstf(f)+2*h+i}, v{b+2*i}, v{b+2*i+1}")
    for op in ("v_permlane32_swap_b32", "v_permlane16_swap_b32"):
        for f in range(8):
            for i in range(2): a(f"{op} v{dstf(f)+i}, v{dstf(f)+2+i}")

def xreduce(a, op, d0, d1, t0, t1):
    for sw in ("v_permlane32_swap_b32", "v_permlane16_swap_b32"):
        a(f"v_mov_b32 v{t0}, v{d0}")
        a(f"v_mov_b32 v{t1}, v{d1}")
        a("s_nop 1")
        a(f"{sw} v{d0}, v{t0}")
        a(f"{sw} v{d1}, v{t1}")
        a(f"{op} v{d0}, v{d0}, v{t0}")
        a(f"{op} v{d1}, v{d1}, v{t1}")

def rowmax(a, S, d, t):
    for qh in range(2):
        b0, b1 = S+4*qh, S+8+4*qh
        a(f"v_max3_f32 v{d+qh}, v{b0}, v{b0+1}, v{b0+2}")
        a(f"v_max3_f32 v{d+qh}, v{d+qh}, v{b0+3}, v{b1}")
        a(f"v_max3_f32 v{d+qh}, v{d+qh}, v{b1+1}, v{b1+2}")
        a(f"v_max_f32 v{d+qh}, v{d+qh}, v{b1+3}")
    xreduce(a, "v_max_f32", d, d+1, t, t+1)

QH = lambda i: (i >> 2) & 1
def pidx(j): return 4*QH(j) + 2*(j >> 3) + ((j & 3) >> 1)

def rare(a, par):
    Sc, Sn, Pc = V_S[par], V_S[1-par], V_P[par]
    d, t = V_E, V_E+2
    a.label(f"L_rare{par}")
    a("s_nop 15")
    rowmax(a, Sc, d, t)
    for qh in range(2): a(f"v_add_f32 v{d+qh}, s{S_THR}, v{d+qh}")
    for qh in range(2): a(f"v_max_f32 v{d+qh}, 0, v{d+qh}")
    for qh in range(2): a(f"v_exp_f32 v{t+qh}, -v{d+qh}")
    for i in range(8): a(f"v_sub_f32 v{V_NM+i}, v{V_NM+i}, v{d+QH(i)}")
    for i in range(16): a(f"v_sub_f32 v{Sc+i}, v{Sc+i}, v{d+QH(i)}")
    for i in range(16): a(f"v_sub_f32 v{Sn+i}, v{Sn+i}, v{d+QH(i)}")
    for i in range(64): a(f"v_mul_f32 v{V_O+i}, v{V_O+i}, v{t+QH(i)}")
    for i in range(8): a(f"v_mul_f32 v{V_LA+i}, v{V_LA+i}, v{t+QH(i)}")
    for i in range(16): a(f"v_exp_f32 v{Sc+i}, v{Sc+i}")
    a("s_nop 0")
    for j in range(1, 16, 2): a(f"v_cvt_pk_bf16_f32 v{Pc+pidx(j)}, v{Sc+j-1}, v{Sc+j}")
    a("s_nop 1")
    a(f"s_setpc_b64 {sr(S_RET,2)}")

def att_pairs(a, par, i0, i1, qk, pv, sm, koff, voff, uid, bar=None):
    Sc, Sn, Pc, Pp = V_S[par], V_S[1-par], V_P[par], V_P[1-par]
    T = V_TMP
    W = [Pc+pidx(2*n+1) for n in range(8)]
    for i in range(i0, i1):
        kt, ks = i >> 2, i & 3
        f = (i + 4) % 8
        mq = [mfma(Sn+8*kt+4*qh, V_KF+4*i, V_Q+4*(2*ks+qh), (V_NM+4*qh) if ks == 0 else Sn+8*kt+4*qh) for qh in range(2)] if qk else [None, None]
        mp = [mfma(OREG(i,qh), V_VF+4*i, Pp+4*qh, OREG(i,qh)) for qh in range(2)] if pv else [None, None]
        ml = [mfma(V_LA+4*qh, V_ONE, Pp+4*qh, V_LA+4*qh) for qh in range(2)] if pv else [None, None]
        ex = [f"v_exp_f32 v{V_E+n}, v{Sc+2*i+n}" for n in range(2)] if sm else [None, None]
        cv = f"v_cvt_pk_bf16_f32 v{W[i]}, v{V_E}, v{V_E+1}" if sm else None
        def e(x):
            if x: a(x)
        def vread():
            o = voff(i)
            if o is None: return
            a.ds(f"ds_read_b64_tr_b16 {vr(V_VF+4*f,2)}, v{V_VA+f} offset:{o}", f"v{f}")
            a.ds(f"ds_read_b64_tr_b16 {vr(V_VF+4*f+2,2)}, v{V_VA+f} offset:{o+1024}", f"v{f}")
        def kread():
            o = koff(i)
            if o is None: return
            a.ds(f"ds_read_b128 {vr(V_KF+4*f,4)}, v{V_KA+(f&3)} offset:{o+(f>>2)*1024}", f"k{f}")
        nxt = [f"k{(i+1)%8}", f"v{(i+1)%8}"]
        if i < 7:
            e(mq[0]); e(ex[0]); e(mq[1])
            if bar and i == i0: bar()
            vread()
            e(mp[0]); a.dswait(nxt); e(ex[1]); e(mp[1]); kread()
            if sm and not pv and koff(i) is None: a("s_nop 0")
            e(cv)
            if i == 5:
                e(ml[1])
                if sm:
                    a(f"v_or3_b32 v{T}, v{W[0]}, v{W[1]}, v{W[2]}")
                    a(f"v_or3_b32 v{T}, v{T}, v{W[3]}, v{W[4]}")
        else:
            e(mq[0]); e(ex[0]); e(mq[1]); a.dswait(nxt); e(ex[1]); e(mp[0]); kread()
            if sm: a(f"v_or3_b32 v{T}, v{T}, v{W[5]}, v{W[6]}")
            e(mp[1]); e(cv)
            if sm:
                a(f"v_bitop3_b32 v{T}, v{T}, v{W[7]}, s{S_MSK} bitop3:0xa8")
                a(f"v_cmp_ne_u32 vcc, 0, v{T}")
            e(ml[0]); vread()
            if sm:
                a(f"s_cbranch_vccnz L_st{uid}")
                a.label(f"L_ok{uid}")
                a.stubs.append((uid, par))

def att_stubs(a):
    for uid, par in a.stubs:
        a.label(f"L_st{uid}")
        a(f"s_call_b64 {sr(S_RET,2)}, L_rare{par}")
        a(f"s_branch L_ok{uid}")

def attention(a):
    S0 = V_S[0]
    a.lq = []
    for u in range(8): a.ds(f"ds_read_b128 {vr(V_KF+4*u,4)}, v{V_KA+(u&3)} offset:{(u>>2)*1024}", f"k{u}")
    for i in range(32): a(f"v_mov_b64 {vr(V_O+2*i,2)}, 0")
    for i in range(4): a(f"v_mov_b64 {vr(V_LA+2*i,2)}, 0")
    for i in range(4): a(f"v_mov_b64 {vr(V_P[1]+2*i,2)}, 0")
    for i in range(8): a(f"v_mov_b64 {vr(V_VF+16+2*i,2)}, 0")
    for i in range(4): a(f"v_mov_b32 v{V_ONE+i}, 0x3f803f80")
    for u in range(8):
        kt, ks = u >> 2, u & 3
        if u % 4 == 0: a.dswait(f"k{u+3}")
        for qh in range(2): a(mfma(S0+8*kt+4*qh, V_KF+4*u, V_Q+4*(2*ks+qh), "0" if ks == 0 else S0+8*kt+4*qh))
    for u in range(4): a.ds(f"ds_read_b128 {vr(V_KF+4*u,4)}, v{V_KA+u} offset:8192", f"k{u}")
    a(f"s_mov_b32 s{S_CNT}, 0")
    a("s_nop 3")
    rowmax(a, S0, V_E, V_E+2)
    for qh in range(2): a(f"v_add_f32 v{V_E+qh}, s{S_THR}, v{V_E+qh}")
    for i in range(8): a(f"v_sub_f32 v{V_NM+i}, 0, v{V_E+QH(i)}")
    for i in range(16): a(f"v_sub_f32 v{S0+i}, v{S0+i}, v{V_E+QH(i)}")
    a.dswait("k0")
    att_pairs(a, 0, 0, 4, True, False, True, lambda i: 8192, lambda i: None, "p")
    lq_entry = list(a.lq)
    a.raw(".p2align 3")
    a.label("L_att_loop")
    for p in range(3):
        ks, vs = ((p+1) % 3)*16384, p*16384
        def bar(p=p):
            a.dsall()
            if p == 0: a("s_waitcnt vmcnt(8)")
            if p == 1: a("s_waitcnt vmcnt(0)")
            a("s_barrier")
        att_pairs(a, 0, 4, 8, True, True, True, lambda i: ks, lambda i: vs, f"a{p}", bar)
        att_pairs(a, 1, 0, 8, True, True, True, lambda i: ks + (i >> 2)*8192, lambda i: vs + (i >> 2)*8192, f"b{p}")
        att_pairs(a, 0, 0, 4, True, True, True, lambda i: ks + 8192, lambda i: vs + 8192, f"c{p}")
    a(f"s_add_u32 s{S_CNT}, s{S_CNT}, 1")
    a(f"s_cmp_lt_u32 s{S_CNT}, 5")
    a("s_cbranch_scc1 L_att_loop")
    def bar():
        a.dsall(); a("s_barrier")
    att_pairs(a, 0, 4, 8, True, True, True, lambda i: None, lambda i: 0, "e0", bar)
    att_pairs(a, 1, 0, 8, False, True, True, lambda i: None, lambda i: (i >> 2)*8192, "e1")
    att_pairs(a, 0, 0, 8, False, True, False, lambda i: None, lambda i: 8192 if i < 4 else None, "e2")
    assert a.lq == [], a.lq

def normalize_o(a):
    a("s_nop 7")
    for i in range(4): a(f"v_rcp_f32 v{V_E+i}, v{V_LA+2*i}")
    a("s_nop 0")
    acc_to_frags(a, XREG, "l")

def store_o(a):
    a(f"s_add_u32 s{S_T0}, s{S_OOFF}, 4096")
    for m in range(8):
        so = S_OOFF if m < 4 else S_T0
        a.vm(f"buffer_store_dwordx4 {vr(XREG(m),4)}, v{V_L16}, {sr(S_WS,4)}, s{so} offen offset:{(m%4)*1024} {OSF}", "ost")

def load_o(a, head_sgpr_off, first_frag, tag):
    a(f"s_add_u32 s{S_T0}, s{head_sgpr_off}, 4096")
    for m in range(8):
        so = head_sgpr_off if m < 4 else S_T0
        a.vm(f"buffer_load_dwordx4 {vr(XREG(first_frag+m),4)}, v{V_L16}, {sr(S_WS,4)}, s{so} offen offset:{(m%4)*1024} {OLF}", tag + ("a" if m < 4 else "b"))

def set_flag(a, kind, tag="flag"):
    a(f"v_mov_b32 v{V_TMP}, s{S_TOK}")
    a(f"v_mov_b32 v{V_TMP+1}, s{S_TOK+1}")
    a("s_mov_b64 exec, 1")
    a.vm(f"buffer_store_dwordx2 {vr(V_TMP,2)}, off, {sr(S_WS,4)}, s{S_FLG} offset:{kind*128} sc1", tag)
    a("s_mov_b64 exec, -1")

def poll_issue(a, kind, dst, tag):
    a("s_mov_b64 exec, 7")
    a.vm(f"buffer_load_dwordx2 {vr(dst,2)}, v{V_FL}, {sr(S_WS,4)}, 0 offen offset:{kind*128} sc1", tag)
    a("s_mov_b64 exec, -1")

def poll_spin(a, kind, uid, dst):
    a(f"s_mov_b32 s{S_CNT}, {SPIN_CAP}")
    a("s_mov_b64 exec, 7")
    a(f"s_branch L_pollf{uid}")
    a.label(f"L_poll{uid}")
    a(f"s_sub_u32 s{S_CNT}, s{S_CNT}, 1")
    a(f"s_cbranch_scc1 L_pollx{uid}")
    if int(E("SLP", "2")): a(f"s_sleep {E('SLP','2')}")
    a.label(f"L_pollf{uid}")
    a(f"buffer_load_dwordx2 {vr(dst,2)}, v{V_FL}, {sr(S_WS,4)}, 0 offen offset:{kind*128} sc1")
    a("s_waitcnt vmcnt(0)")
    a(f"v_cmp_ne_u64 vcc, {sr(S_TOK,2)}, {vr(dst,2)}")
    a(f"s_cbranch_vccnz L_poll{uid}")
    a.label(f"L_pollx{uid}")
    a("s_mov_b64 exec, -1")
    a.vmq = []

def pkg(a, g):
    kn, vn = g+1, g
    if kn <= 31:
        if kn == 16: a(f"s_mov_b32 s{S_KOFF}, s{S_H2OFF}")
        dma(a, S_K, V_DK, S_KOFF, KSLOT(kn), 1024, KV_FLAGS, f"p{g}")
        a(f"s_add_u32 s{S_KOFF}, s{S_KOFF}, 16384")
    if 0 <= vn <= 31:
        if vn == 16: a(f"s_mov_b32 s{S_VOFF}, s{S_H2OFF}")
        dma(a, S_V, V_DV, S_VOFF, VSLOT(vn), 1024, KV_FLAGS, f"p{g}")
        a(f"s_add_u32 s{S_VOFF}, s{S_VOFF}, 16384")

XS = [(VSLOT(1), WSLOT(0)), (WSLOT(3), VSLOT(2)), (VSLOT(0), KSLOT(2)), (WSLOT(1), WSLOT(2))]
W1S = [WSLOT(1), WSLOT(2), KSLOT(0), KSLOT(1), VSLOT(1), WSLOT(0), WSLOT(3), VSLOT(2)]

def x_addr_move(a, q, prev_q):
    pa, pb = XS[prev_q] if prev_q is not None else (0, 0)
    a(f"s_cmp_lt_u32 s{S_WV}, 2")
    a(f"s_mov_b32 s{S_T1}, {u32(XS[q][0]-pa)}")
    a(f"s_cselect_b32 s{S_T1}, s{S_T1}, {u32(XS[q][1]-pb)}")
    if prev_q is None: a(f"s_add_u32 s{S_T1}, s{S_T1}, s{S_HALF}")
    for m in range(4): a(f"v_add_u32 v{V_KA+m}, s{S_T1}, v{V_KA+m}")
def x_frag_issue(a, q):
    for f in range(8): a(f"ds_read_b128 {vr(XREG(8*q+f),4)}, v{V_KA+(f>>1)} offset:{(f&1)*1024}")
def x_addr_finish(a, kbase):
    a(f"s_cmp_lt_u32 s{S_WV}, 2")
    a(f"s_mov_b32 s{S_T1}, {u32(kbase-XS[3][0])}")
    a(f"s_cselect_b32 s{S_T1}, s{S_T1}, {u32(kbase-XS[3][1])}")
    a(f"s_sub_u32 s{S_T1}, s{S_T1}, s{S_HALF}")
    for m in range(4): a(f"v_add_u32 v{V_KA+m}, s{S_T1}, v{V_KA+m}")

def own_o_lds_addr(a, dst):
    a(f"s_cmp_lt_u32 s{S_WV}, 2")
    a(f"s_mov_b32 s{S_T1}, {VSLOT(30)}")
    a(f"s_cselect_b32 s{S_T1}, s{S_T1}, {KSLOT(31)}")
    a(f"s_add_u32 s{S_T1}, s{S_T1}, s{S_HALF}")
    a(f"v_add_u32 v{dst}, s{S_T1}, v{V_L16}")

def q_finalize(a):
    a(f"s_mov_b32 s{S_SC}, {f2u(QSCALE):#x}")
    a(f"s_mov_b32 s{S_SC+1}, {f2u(QSCALE):#x}")
    a("s_nop 3")
    acc_to_frags(a, lambda f: V_Q+4*f, None)

def proj1_inline(a):
    L = 5
    a.lq = []
    def rd(n):
        idx = n & 15; ks, dt = idx >> 3, idx & 7
        d = V_VF + 4*dt
        return [(f"ds_read_b64_tr_b16 {vr(d+2*u,2)}, v{V_VA+dt} offset:{ks*8192+u*1024}", f"f{n}") for u in range(2)]
    def xrd(q, f): return (f"ds_read_b128 {vr(XREG(8*q+f),4)}, v{V_KA+(f>>1)} offset:{(f&1)*1024}", f"x{8*q+f}")
    def need(n):
        seg, idx = n >> 4, n & 15
        return [f"f{n}", f"x{4*seg+2*(idx>>3)}", f"x{4*seg+2*(idx>>3)+1}"]
    for n in range(128 + L):
        seg, idx = n >> 4, n & 15
        m = pj_mm((n-L) >> 4, (n-L) & 15) if n >= L else [None, None]
        r = rd(n) if n < 128 else []
        x = xrd(seg//2, idx) if (n < 128 and seg % 2 == 0 and idx < 8) else None
        v = []
        if n < 128:
            delta = (W1S[seg+1] if seg < 7 else VSLOT(0)) - W1S[seg]
            if idx == 8: a(f"s_mov_b32 s{S_DL}, {u32(delta)}")
            if idx >= 9: v.append(f"v_add_u32 v{V_VA+idx-9}, s{S_DL}, v{V_VA+idx-9}")
            if seg % 2 == 1 and idx < 4: v.append(f"v_add_u32 v{V_KA+idx}, s{S_T1}, v{V_KA+idx}")
            if seg % 2 == 0 and idx == 12:
                q = seg // 2
                tgt = XS[q+1] if q < 3 else (KSLOT(0), KSLOT(0))
                a(f"s_cmp_lt_u32 s{S_WV}, 2")
                a(f"s_mov_b32 s{S_T1}, {u32(tgt[0]-XS[q][0])}")
                a(f"s_cselect_b32 s{S_T1}, s{S_T1}, {u32(tgt[1]-XS[q][1])}")
                if q == 3: a(f"s_sub_u32 s{S_T1}, s{S_T1}, s{S_HALF}")
        if m[0]: a(m[0])
        if idx == 0 and n <= 128: a("s_barrier")
        if x: a.ds(*x)
        if r: a.ds(*r[0])
        if v and not x: a(v.pop(0))
        if m[1]: a(m[1])
        if L <= n+1 < 128 + L: a.dswait(need(n+1-L))
        if r: a.ds(*r[1])
        for y in v: a(y)
        if n < 128 and idx == 15: a(f"v_add_u32 v{V_VA+7}, s{S_DL}, v{V_VA+7}")
    assert a.lq == []

def kernel(a, name):
    a.raw(f".globl {name}"); a.raw(".p2align 8"); a.raw(f".type {name},@function"); a.label(name)
    a("s_cmp_ge_u32 s2, 256")
    a("s_cbranch_scc1 L_end")
    if STAMPS: a(f"v_mov_b32 v{V_ST}, 0")
    stamp(a, 0)
    setup_srds(a)
    a(f"s_lshl_b32 s{S_T1}, s{S_SET}, 3")
    a(f"s_add_u32 s{S_T1}, s{S_T1}, s{S_J}")
    a(f"s_lshl_b32 s{S_T2}, s{S_B}, 5")
    a(f"s_add_u32 s{S_T2}, s{S_T2}, s{S_T1}")
    a(f"s_lshl_b32 s{S_KOFF}, s{S_T2}, 18")
    a(f"s_mov_b32 s{S_VOFF}, s{S_KOFF}")
    a(f"s_add_u32 s{S_H2OFF}, s{S_KOFF}, {4<<18}")
    a(f"s_mov_b32 s{S_THR}, 0x41700000")
    a(f"v_lshlrev_b32 v{V_L16}, 4, v{V_LANE}")
    setup_ktype_dma(a, V_E, 10)
    setup_vtype_dma(a, V_DW, 13)
    finish_srds(a)
    stamp(a, 1)
    a(f"s_lshl_b32 s{S_WBASE}, s{S_T1}, 8")
    a(f"s_lshl_b32 s{S_XBASE}, s{S_B}, 17")
    if E("MAP") == "3":
        a(f"s_lshr_b32 s{S_ROT}, s{S_B}, 1")
        a(f"s_add_u32 s{S_ROT}, s{S_J}, s{S_ROT}")
    else: a(f"s_add_u32 s{S_ROT}, s{S_J}, s{S_B}")
    a(f"s_and_b32 s{S_ROT}, s{S_ROT}, {3 if E('NOROT') is None else 0}")
    a(f"s_cmp_eq_u32 s{S_GRP}, 0")
    a("s_cbranch_scc1 L_grpA")

    def common2():
        a(f"s_lshl_b32 s{S_T0}, s{S_BR}, 3")
        a(f"s_add_u32 s{S_T0}, s{S_T0}, s{S_B}")
        a(f"s_lshl_b32 s{S_T3}, s{S_T0}, 7")
        a(f"s_add_u32 s{S_T3}, s{S_T3}, {EPOCH_WS_OFF}")
        a(f"s_load_dwordx2 {sr(S_EP,2)}, {sr(S_WS,2)}, s{S_T3}")
        a(f"s_lshl_b32 s{S_T0}, s{S_T0}, 2")
        a(f"s_add_u32 s{S_T0}, s{S_T0}, s{S_SET}")
        a(f"s_lshl_b32 s{S_T0}, s{S_T0}, 5")
        a(f"s_add_u32 s{S_T0}, s{S_T0}, s{S_WV}")
        a(f"s_lshl_b32 s{S_OSET}, s{S_T0}, 13")
        a(f"s_lshl_b32 s{S_T0}, s{S_GRP}, 2")
        a(f"s_add_u32 s{S_T0}, s{S_T0}, s{S_J}")
        a(f"s_lshl_b32 s{S_T0}, s{S_T0}, 15")
        a(f"s_add_u32 s{S_OOFF}, s{S_OSET}, s{S_T0}")
        a(f"s_lshl_b32 s{S_T0}, s2, 2")
        a(f"s_add_u32 s{S_T0}, s{S_T0}, s{S_WV}")
        a(f"s_mul_i32 s{S_FLG}, s{S_T0}, 384")
        a(f"s_add_u32 s{S_FLG}, s{S_FLG}, {FLAG_WS_OFF}")
        a(f"s_mov_b32 s{S_MSK}, 0x40004000")
        a(f"s_and_b32 s{S_HALF}, s{S_WV}, 1")
        a(f"s_lshl_b32 s{S_HALF}, s{S_HALF}, 13")
        a(f"s_lshl_b32 s{S_WOB}, s{S_SET}, 20")
        a(f"s_lshl_b32 s{S_T0}, s{S_J}, 8")
        a(f"s_add_u32 s{S_WOB}, s{S_WOB}, s{S_T0}")
        setup_vtype_dma(a, V_DV, 8)
        setup_ktype_dma(a, V_DK, 8)
        k_addr_setup(a)
        x_addr_move(a, 0, None)
    def token():
        a("s_waitcnt lgkmcnt(0)")
        a(f"s_mul_i32 s{S_TOK}, s{S_EP}, 0x9E3779B1")
        a(f"s_add_u32 s{S_TOK}, s{S_TOK}, 0x7F4A7C15")
        a(f"s_mul_i32 s{S_TOK+1}, s{S_EP+1}, 0x85EBCA6D")
        a(f"s_add_u32 s{S_TOK+1}, s{S_TOK+1}, 0x27D4EB2F")

    TS = {t: WSLOT2(t) for t in range(6)}
    TS.update({6: KSLOT(29), 7: KSLOT(30), 8: VSLOT(29), 9: VSLOT(31), 10: TS[2], 11: TS[3], 12: TS[4], 13: TS[5], 14: KSLOT(29), 15: KSLOT(30)})
    def wo_off(t):
        d = (t >> 1) & 3
        a(f"s_add_u32 s{S_WOFF}, s{S_J}, {d}")
        a(f"s_and_b32 s{S_WOFF}, s{S_WOFF}, 3")
        a(f"s_lshl_b32 s{S_WOFF}, s{S_WOFF}, 17")
        a(f"s_add_u32 s{S_WOFF}, s{S_WOFF}, s{S_WOB}")
        add = (t >> 3)*4*131072 + (t & 1)*65536
        if add: a(f"s_add_u32 s{S_WOFF}, s{S_WOFF}, {add}")
    def wo_tile(t, js=(0,1,2,3)):
        if js[0] == 0: wo_off(t)
        dma(a, S_WO, V_DW, S_WOFF, TS[t], 4096, WO_FLAGS, f"wo{t}", js)

    a.vmq = []
    def rot_off(dst, q, shift, base):
        a(f"s_add_u32 s{dst}, s{S_ROT}, {q}")
        a(f"s_and_b32 s{dst}, s{dst}, 3")
        a(f"s_lshl_b32 s{dst}, s{dst}, {shift}")
        a(f"s_add_u32 s{dst}, s{dst}, s{base}")
    def xt(q, half):
        rot_off(S_XOFF, q, 8, S_XBASE)
        if half: a(f"s_add_u32 s{S_XOFF}, s{S_XOFF}, 65536")
        dma(a, S_X, V_E, S_XOFF, XS[q][half], 4096, X_FLAGS, f"s{2*q}")
    def wq(i, slot, tag, js=(0,1,2,3)):
        if js[0] == 0:
            rot_off(S_WOFF, i//2, 20, S_WBASE)
            if i % 2: a(f"s_add_u32 s{S_WOFF}, s{S_WOFF}, {64*8192}")
        dma(a, S_WQ, V_DW, S_WOFF, slot, 4*8192, WQ_FLAGS, tag, js)
    def ktile(n, tag):
        dma(a, S_K, V_DK, S_KOFF, KSLOT(n), 1024, KV_FLAGS, tag)
        a(f"s_add_u32 s{S_KOFF}, s{S_KOFF}, 16384")
    def vtile(n, tag):
        dma(a, S_V, V_DV, S_VOFF, VSLOT(n), 1024, KV_FLAGS, tag)
        a(f"s_add_u32 s{S_VOFF}, s{S_VOFF}, 16384")
    seq = []
    for q in range(4):
        seq += [lambda q=q: xt(q,0), lambda q=q: xt(q,1), lambda q=q: wq(2*q, W1S[2*q], f"s{2*q}"), lambda q=q: wq(2*q+1, W1S[2*q+1], f"s{2*q+1}")]
    seq += [lambda: ktile(0, "p-1"), lambda: ktile(1, "p0"), lambda: vtile(0, "p0"), lambda: ktile(2, "p1"), lambda: vtile(1, "p1")]
    free_after = [-1]*10 + [2, 2, 2, 3, 4, 4, 4, 5, 6, 6, 6]
    cum = eval(E("CUM", "[5,8,10,13,14,17,18,19,19]"))
    pos = [0]
    def issue_to(n, after):
        while pos[0] < n:
            assert free_after[pos[0]] <= after, (pos[0], after)
            seq[pos[0]](); pos[0] += 1
    issue_to(2, -1)
    common2()
    issue_to(cum[0], -1)
    setup_vtype_addr(a, WSLOT(0))
    token()
    for i in range(8):
        a.vmwait(f"s{i}")
        a("s_barrier")
        stamp(a, 2+i)
        if i % 2 == 1: x_frag_issue(a, i//2)
        issue_to(cum[i+1], i)
        if i == 6:
            for r in range(32): a(f"v_mov_b64 {vr(V_O+2*r,2)}, 0")
        if i % 2 == 1:
            a("s_waitcnt lgkmcnt(0)")
            if i < 6: x_addr_move(a, i//2+1, i//2)
            else: x_addr_finish(a, KSLOT(16))
    a(f"s_add_u32 s{S_WBASE}, s{S_WBASE}, {4*256}")
    a.vmwait("p-1")
    stamp(a, 10)
    a("s_barrier")
    stamp(a, 11)
    issue_to(21, 8)
    halves = eval(E("W2H", "{0:[0],1:[1],2:[2],3:[3],4:[4],5:[5],6:[6,7],7:[8],8:[9],9:[10,11],10:[12],11:[13],12:[14],13:[15]}"))
    cons = eval(E("W2C", "{2:0,4:1,6:2,7:3,9:4,10:5,12:6,14:7}"))
    def w2h(h): wq(h//2, WSLOT(h//2), f"w2_{h//2}", (0,1) if h % 2 == 0 else (2,3))
    for g in range(0, 16):
        WIN[0] = int(E("WIN1", "0"))
        tags = [f"p{g}"]
        if g in cons: tags.append(f"w2_{cons[g]}")
        a.vmwait(tags)
        stamp(a, 2*g+12)
        a("s_barrier")
        stamp(a, 2*g+13)
        for h in halves.get(g, []): w2h(h)
        pkg(a, g+2)
        if g in cons:
            i = cons[g]
            call_seg(a, i, i == 0, (WSLOT(i+1) if i < 7 else VSLOT(16)) - WSLOT(i))
            if i < 7: a("s_waitcnt lgkmcnt(0)")
        if g == 14:
            seg_flush(a, 7)
            q_finalize(a)
    WIN[0] = 0
    a("s_branch L_att_entry")

    a.label("L_grpA")
    a.vmq = []
    if not E("NOPF"):
        a(f"s_getpc_b64 {sr(S_SC,2)}")
        a.label("L_pc")
        a(f"s_sub_u32 s{S_SC}, s{S_SC}, L_pc-{name}")
        a(f"s_subb_u32 s{S_SC+1}, s{S_SC+1}, 0")
        a(f"s_lshr_b32 s{S_T0}, s2, 3")
        a(f"s_lshl_b32 s{S_T0}, s{S_T0}, 2")
        a(f"s_add_u32 s{S_T0}, s{S_T0}, s{S_WV}")
        a(f"s_lshl_b32 s{S_T0}, s{S_T0}, 2")
        a(f"v_and_b32 v{V_TMP}, 3, v{V_LANE}")
        a(f"v_add_lshl_u32 v{V_TMP}, v{V_TMP}, s{S_T0}, 7")
        a(f"v_min_u32 v{V_TMP}, L_code_end-{name}-4, v{V_TMP}")
        a(f"global_load_dword v{V_Q}, v{V_TMP}, {sr(S_SC,2)}")
    common2()
    setup_vtype_dma(a, V_DW, 10)
    setup_vtype_addr(a, W1S[0])
    for i in range(32): a(f"v_mov_b64 {vr(V_O+2*i,2)}, 0")
    token()
    a("s_waitcnt vmcnt(0)")
    proj1_inline(a)
    q_finalize(a)
    a.label("L_att_entry")
    attention(a)
    a(f"s_cmp_eq_u32 s{S_GRP}, 0")
    a("s_cbranch_scc0 L_B_fin")
    a.vmq = []
    a(f"s_add_u32 s{S_KOFF}, s{S_H2OFF}, {3*16384}")
    a(f"s_add_u32 s{S_VOFF}, s{S_H2OFF}, {2*16384}")
    def o_off(dst, d, second):
        a(f"s_add_u32 s{dst}, s{S_J}, {d}")
        a(f"s_and_b32 s{dst}, s{dst}, 3")
        a(f"s_lshl_b32 s{dst}, s{dst}, 15")
        a(f"s_add_u32 s{dst}, s{dst}, s{S_OSET}")
        if second: a(f"s_add_u32 s{dst}, s{dst}, {4*32768}")
    PUB = int(E("PUB", "29"))
    normalize_o(a)
    for i in range(32): a(f"v_mov_b64 {vr(V_O+2*i,2)}, 0")
    a(f"s_lshl_b32 s{S_T1}, s{S_SET}, 1")
    setup_vtype_addr(a, TS[0], xor_sgpr=S_T1)
    a(f"s_add_u32 s{S_T1}, s{S_J}, 1")
    a(f"v_add_u32 v{V_FL}, s{S_T1}, v{V_LANE}")
    a(f"v_and_b32 v{V_FL}, 3, v{V_FL}")
    a(f"v_lshlrev_b32 v{V_FL}, 5, v{V_FL}")
    a(f"s_and_b32 s{S_T1}, s2, 0xe7")
    a(f"s_lshl_b32 s{S_T1}, s{S_T1}, 2")
    a(f"s_add_u32 s{S_T1}, s{S_T1}, s{S_WV}")
    a(f"v_add_u32 v{V_FL}, s{S_T1}, v{V_FL}")
    a(f"v_mul_u32_u24 v{V_FL}, 384, v{V_FL}")
    a(f"v_add_u32 v{V_FL}, {FLAG_WS_OFF}, v{V_FL}")
    seg_at = {19: 0, 21: 1}
    for g in range(16, 32):
        WIN[0] = int(E("WIN2", "0")) if g <= 29 else 0
        tags = [f"p{g}"]
        if g in seg_at: tags.append(f"wo{seg_at[g]}")
        if g == PUB+1: tags.append("ost")
        a.vmwait(tags)
        if g == PUB+1: set_flag(a, 0)
        stamp(a, 2*(g-16)+10)
        a("s_barrier")
        stamp(a, 2*(g-16)+11)
        if g <= 27: wo_tile((g-16)//2, (0,1) if g % 2 == 0 else (2,3))
        if g + 2 <= 31: pkg(a, g+2)
        if g == 29: WIN[0] = 0
        if g == PUB: store_o(a)
        if g == 29: wo_tile(6)
        if g == 30:
            wo_tile(7); wo_tile(8)
            if not E("NOWPF"):
                a(f"v_lshrrev_b32 v{V_TMP}, 4, v{V_LANE}")
                a(f"v_and_b32 v{V_TMP+1}, 15, v{V_LANE}")
                a(f"v_lshlrev_b32 v{V_TMP+1}, 4, v{V_TMP+1}")
                a(f"v_lshl_add_u32 v{V_TMP}, v{V_TMP}, 10, v{V_TMP+1}")
                a(f"s_add_u32 s{S_T1}, s{S_J}, s{S_WV}")
                a(f"s_and_b32 s{S_T1}, s{S_T1}, 3")
                a(f"s_lshl_b32 s{S_T1}, s{S_T1}, 17")
                a(f"s_add_u32 s{S_T1}, s{S_T1}, s{S_WOB}")
                a(f"s_lshl_b32 s{S_T0}, s{S_B}, 14")
                a(f"s_add_u32 s{S_T1}, s{S_T1}, s{S_T0}")
                a(f"s_add_u32 s{S_T1}, s{S_T1}, {4*131072}")
                for r in range(4):
                    a.vm(f"buffer_load_dwordx4 {vr(XREG(8+r),4)}, v{V_TMP}, {sr(S_WO,4)}, s{S_T1} offen", "wpf")
                    if r < 3: a(f"s_add_u32 s{S_T1}, s{S_T1}, 4096")
        if g in seg_at:
            s_ = seg_at[g]
            call_seg(a, s_, s_ == 0, TS[s_+1] - TS[s_])
            a("s_waitcnt lgkmcnt(0)")
    if PUB == 31:
        a.vmwait("ost"); set_flag(a, 0)
    poll_spin(a, 0, "1", V_E)
    stamp(a, 44)
    for d in (1, 2, 3):
        o_off(S_T1, d, False)
        load_o(a, S_T1, 8*d, f"oa{d}")
    own_o_lds_addr(a, V_E+2)
    def seg(t, wait=None):
        if wait: a.vmwait(wait)
        call_seg(a, t % 8, False, (TS[t+1] - TS[t]) if t < 15 else 0)
    a.vmwait("oa1a")
    stamp(a, 45)
    seg(2); seg(3, "oa1b"); seg(4, "oa2a")
    a("s_waitcnt lgkmcnt(0)")
    stamp(a, 46)
    a("s_barrier")
    stamp(a, 47)
    poll_issue(a, 1, V_E, "pl2")
    for m in range(8): a(f"ds_read_b128 {vr(XREG(m),4)}, v{V_E+2} offset:{m*1024}")
    seg(5, "oa2b")
    a.vmall()
    a("s_mov_b64 exec, 7")
    a(f"v_cmp_ne_u64 vcc, {sr(S_TOK,2)}, {vr(V_E,2)}")
    a("s_mov_b64 exec, -1")
    a(f"s_mov_b32 s{S_RDY}, 0")
    a("s_cbranch_vccnz L_nrdy1")
    a(f"s_mov_b32 s{S_RDY}, 1")
    o_off(S_T1, 1, True); load_o(a, S_T1, 8, "ob1")
    a.label("L_nrdy1")
    seg(6)
    a(f"s_cmp_eq_u32 s{S_RDY}, 0")
    a("s_cbranch_scc1 L_nrdy2")
    o_off(S_T1, 2, True); load_o(a, S_T1, 16, "ob2")
    a.label("L_nrdy2")
    seg(7); seg(8)
    a("s_waitcnt lgkmcnt(0)")
    stamp(a, 48)
    a("s_barrier")
    stamp(a, 49)
    a(f"s_cmp_eq_u32 s{S_RDY}, 0")
    a("s_cbranch_scc0 L_rdy3")
    q = list(a.vmq)
    poll_spin(a, 1, "2", V_E)
    for d in (1, 2):
        o_off(S_T1, d, True); load_o(a, S_T1, 8*d, f"ob{d}")
    assert a.vmq == q, (a.vmq, q)
    a.label("L_rdy3")
    o_off(S_T1, 3, True); load_o(a, S_T1, 24, "ob3")
    stamp(a, 50)
    seg(9); seg(10, "ob1a"); seg(11, "ob1b"); seg(12, "ob2a")
    stamp(a, 51)
    a("s_barrier")
    seg(13, "ob2b"); seg(14, "ob3a"); seg(15, "ob3b")
    seg_flush(a, 7)
    stamp(a, 52)
    a(f"s_lshl_b32 s{S_T1}, s2, 2")
    a(f"s_add_u32 s{S_T1}, s{S_T1}, s{S_WV}")
    a(f"s_lshl_b32 s{S_T1}, s{S_T1}, 14")
    a(f"s_add_u32 s{S_T1}, s{S_T1}, {PART_WS_OFF}")
    a(f"v_add_u32 v{V_FL}, 1, v{V_LANE}")
    a(f"v_and_b32 v{V_FL}, 3, v{V_FL}")
    a(f"v_xor_b32 v{V_FL}, s2, v{V_FL}")
    a(f"v_lshlrev_b32 v{V_FL}, 2, v{V_FL}")
    a(f"v_add_u32 v{V_FL}, s{S_WV}, v{V_FL}")
    a(f"v_mul_u32_u24 v{V_FL}, 384, v{V_FL}")
    a(f"v_add_u32 v{V_FL}, {FLAG_WS_OFF}, v{V_FL}")
    PB = 128
    for beta in (1, 2, 3):
        a(f"s_add_u32 s{S_T1}, s{S_T1}, 4096")
        if PBF16:
            for i in range(8): a(f"v_cvt_pk_bf16_f32 v{PB+8*beta+i}, v{V_O+16*beta+2*i}, v{V_O+16*beta+2*i+1}")
            for i in range(2):
                a.vm(f"buffer_store_dwordx4 {vr(PB+8*beta+4*i,4)}, v{V_L16}, {sr(S_WS,4)}, s{S_T1} offen offset:{i*1024} sc1", "pst")
        else:
            for i in range(4):
                a.vm(f"buffer_store_dwordx4 {vr(V_O+16*beta+4*i,4)}, v{V_L16}, {sr(S_WS,4)}, s{S_T1} offen offset:{i*1024} sc1", "pst")
    t0, t1 = V_E+2, V_E+3
    row0(a, t0, t1)
    a(f"v_and_b32 v{t1}, 0x30, v{V_LANE}")
    a(f"v_lshl_add_u32 v{t0}, v{t0}, 11, v{t1}")
    a(f"s_lshl_b32 s{S_T2}, s{S_B}, 2")
    a(f"s_add_u32 s{S_T2}, s{S_T2}, s{S_WV}")
    a(f"s_lshl_b32 s{S_T2}, s{S_T2}, 16")
    a(f"s_lshl_b32 s{S_T0}, s{S_BR}, 10")
    a(f"s_add_u32 s{S_T2}, s{S_T2}, s{S_T0}")
    a(f"s_lshl_b32 s{S_T0}, s{S_J}, 8")
    a(f"s_add_u32 s{S_T2}, s{S_T2}, s{S_T0}")
    a(f"s_lshl_b32 s{S_T0}, s{S_SET}, 6")
    a(f"s_add_u32 s{S_T2}, s{S_T2}, s{S_T0}")
    a(f"s_add_u32 s{S_KD}, s{S_T2}, 8192")
    a.vmall()
    stamp(a, 53)
    set_flag(a, 2)
    poll_spin(a, 2, "3", V_E)
    stamp(a, 54)
    for beta in (1, 2, 3):
        a(f"s_xor_b32 s{S_T1}, s2, {beta}")
        a(f"s_lshl_b32 s{S_T1}, s{S_T1}, 2")
        a(f"s_add_u32 s{S_T1}, s{S_T1}, s{S_WV}")
        a(f"s_lshl_b32 s{S_T1}, s{S_T1}, 14")
        a(f"s_add_u32 s{S_T1}, s{S_T1}, {PART_WS_OFF + beta*4096}")
        if PBF16:
            for i in range(2):
                a.vm(f"buffer_load_dwordx4 {vr(PB+8*beta+4*i,4)}, v{V_L16}, {sr(S_WS,4)}, s{S_T1} offen offset:{i*1024} sc1", f"pl{beta}")
        else:
            for i in range(4):
                a.vm(f"buffer_load_dwordx4 {vr(V_O+16*beta+4*i,4)}, v{V_L16}, {sr(S_WS,4)}, s{S_T1} offen offset:{i*1024} sc1", f"pl{beta}")
    for beta in (1, 2, 3):
        a.vmwait(f"pl{beta}")
        if PBF16:
            for i in range(8):
                a(f"v_lshlrev_b32 v{V_TMP}, 16, v{PB+8*beta+i}")
                a(f"v_and_b32 v{V_TMP+1}, 0xffff0000, v{PB+8*beta+i}")
                a(f"v_add_f32 v{V_O+2*i}, v{V_O+2*i}, v{V_TMP}")
                a(f"v_add_f32 v{V_O+2*i+1}, v{V_O+2*i+1}, v{V_TMP+1}")
        else:
            for i in range(16): a(f"v_add_f32 v{V_O+i}, v{V_O+i}, v{V_O+16*beta+i}")
    for qh in range(2):
        for h in range(2):
            for i in range(2): a(f"v_cvt_pk_bf16_f32 v{V_Q+4*qh+2*h+i}, v{OREG(h,qh)+2*i}, v{OREG(h,qh)+2*i+1}")
    a("s_nop 1")
    for op in ("v_permlane32_swap_b32", "v_permlane16_swap_b32"):
        for qh in range(2):
            for i in range(2): a(f"{op} v{V_Q+4*qh+i}, v{V_Q+4*qh+2+i}")
    a(f"buffer_store_dwordx4 {vr(V_Q,4)}, v{t0}, {sr(S_OUT,4)}, s{S_T2} offen")
    a(f"buffer_store_dwordx4 {vr(V_Q+4,4)}, v{t0}, {sr(S_OUT,4)}, s{S_KD} offen")
    a(f"s_or_b32 s{S_T0}, s{S_SET}, s{S_J}")
    a(f"s_or_b32 s{S_T0}, s{S_T0}, s{S_WV}")
    a("s_cbranch_scc1 L_noep")
    a(f"v_mov_b32 v{V_TMP}, s{S_TOK}")
    a(f"v_mov_b32 v{V_TMP+1}, s{S_TOK+1}")
    a("s_mov_b64 exec, 1")
    a(f"buffer_store_dwordx2 {vr(V_TMP,2)}, off, {sr(S_WS,4)}, s{S_T3} sc1")
    a("s_mov_b64 exec, -1")
    a.label("L_noep")
    if STAMPS: a("s_waitcnt vmcnt(0)")
    stamp(a, 55)
    stamp_flush(a)
    a("s_endpgm")

    a.label("L_B_fin")
    a.vmq = []
    stamp(a, 58)
    normalize_o(a)
    store_o(a)
    own_o_lds_addr(a, V_E)
    for m in range(8): a(f"ds_write_b128 v{V_E}, {vr(XREG(m),4)} offset:{m*1024}")
    setup_vtype_dma(a, V_DW, 10)
    stamp(a, 59)
    a.vmall()
    set_flag(a, 1)
    a("s_waitcnt lgkmcnt(0)")
    stamp(a, 60)
    a("s_barrier")
    for t in (9, 10, 11, 12): wo_tile(t)
    a.vmall()
    stamp(a, 61)
    a("s_barrier")
    for t in (13, 14, 15): wo_tile(t)
    a.vmall()
    stamp(a, 62)
    a("s_barrier")
    stamp_flush(a)
    a.label("L_end")
    a("s_endpgm")
    att_stubs(a)
    rare(a, 0); rare(a, 1)
    proj_segs(a)
    a.label("L_code_end")

def main(fn):
    a = Asm()
    name = NAME + "_kernel"
    a.raw(f"; @launch grid=(256,1,1) block=(512,1,1) lds=163840")
    a.raw('.amdgcn_target "amdgcn-amd-amdhsa--gfx950"')
    a.raw(".text")
    kernel(a, name)
    a.raw('.section .rodata,"a"')
    a.raw(".p2align 6")
    a.raw(f".amdhsa_kernel {name}")
    a.raw(f"  .amdhsa_next_free_vgpr 256"); a.raw(f"  .amdhsa_next_free_sgpr 96"); a.raw(f"  .amdhsa_accum_offset 256")
    a.raw("  .amdhsa_group_segment_fixed_size 0"); a.raw("  .amdhsa_kernarg_size 104"); a.raw("  .amdhsa_user_sgpr_count 2")
    a.raw("  .amdhsa_user_sgpr_kernarg_segment_ptr 1"); a.raw("  .amdhsa_system_sgpr_workgroup_id_x 1"); a.raw(".end_amdhsa_kernel")
    open(fn, "w").write(a.text())

if __name__ == "__main__":
    if len(sys.argv) > 2 and sys.argv[2] == "stamps": STAMPS = True
    main(sys.argv[1] if len(sys.argv) > 1 else "k3.s")
```

```python
import sys, math, os, struct
NAME = "concat_heads__mha_block_cached__gqa_block_cached__near_ridge"
E = os.environ.get

class Asm:
    def __init__(s):
        s.L = []; s.vmq = []; s.lq = []; s.stubs = []
    def __call__(s, t): s.L.append("  " + " ".join(t.split()))
    def label(s, t): s.L.append(t + ":")
    def raw(s, t): s.L.append(t)
    def vm(s, t, tag):
        s(t); s.vmq.append(tag)
    def vmwait(s, tags):
        if not isinstance(tags, (list, tuple, set)): tags = [tags]
        last = -1
        for i, t in enumerate(s.vmq):
            if t in tags: last = i
        if last < 0: return
        n = len(s.vmq) - 1 - last
        assert n <= 63, n
        s(f"s_waitcnt vmcnt({n})")
        s.vmq = s.vmq[last+1:]
    def vmall(s):
        s("s_waitcnt vmcnt(0)"); s.vmq = []
    def ds(s, t, tag):
        s(t); s.lq.append(tag)
        assert len(s.lq) <= 15, s.lq
    def dswait(s, tags, force=False):
        if not isinstance(tags, (list, tuple, set)): tags = [tags]
        last = -1
        for i, t in enumerate(s.lq):
            if t in tags: last = i
        if last < 0: return
        s(f"s_waitcnt lgkmcnt({len(s.lq) - 1 - last})")
        s.lq = s.lq[last+1:]
    def dsall(s):
        s("s_waitcnt lgkmcnt(0)"); s.lq = []
    def text(s): return "\n".join(s.L) + "\n"

def vr(b, n=1): return f"v{b}" if n == 1 else f"v[{b}:{b+n-1}]"
def sr(b, n=1): return f"s{b}" if n == 1 else f"s[{b}:{b+n-1}]"
def f2u(f): return struct.unpack("<I", struct.pack("<f", f))[0]
def u32(x): return f"{x & 0xffffffff:#x}"

V_LANE = 1
V_KA = 2
V_VA = 6
V_DK = 14
V_DV = 16
V_DW = 18
V_ONE = 20
V_FL = 20
V_L  = 22
V_E  = 24
V_TMP = 28
V_L16 = 30
V_ST = 31
V_Q  = 32
V_O  = 64
V_NM = 128
V_LA = 136
V_S  = [144, 160]
V_P  = [176, 184]
V_KF = 192
V_VF = 224
def XREG(s): return (128 + 4*s) if s < 24 else (32 + 4*(s-24))
def OREG(dt, qh): return V_O + 8*dt + 4*qh

S_K, S_V, S_X, S_WQ, S_WS, S_WO, S_OUT = 4, 8, 12, 16, 20, 24, 28
S_RET = 32
S_WV = 34; S_GRP = 35
S_DBG = 36
S_BR = 52; S_B = 53; S_J = 54; S_SET = 55
S_KOFF = 56; S_VOFF = 57; S_WOFF = 58; S_XOFF = 59; S_LDSW = 60
S_H2OFF = 61; S_CNT = 62; S_KD = 63; S_VD = 64; S_KS = 65; S_VS = 66
S_THR = 67; S_T0 = 68; S_T1 = 69; S_OOFF = 70; S_T2 = 71
S_C16K = 40; S_ROT = 41; S_WBASE = 42; S_XBASE = 43; S_HALF = 44; S_OSET = 45; S_FLG = 46; S_T3 = 47; S_WOB = 48
S_STAMP = 80
S_EP = 84
S_TOK = 86
S_RDY = 88
S_SC = 90
S_MSK = 49

KSLOT = lambda n: (n % 3) * 16384 if n < 16 else 16384 + ((n-16) % 3) * 16384
VSLOT = lambda n: 65536 + KSLOT(n)
WSLOT = lambda n: [49152, 114688, 131072, 147456][n % 4]
WSLOT2 = lambda n: [131072, 147456, 0, 65536][n % 4]
S_DL = 72
PLAG = 6
QSCALE = (1.0/math.sqrt(128.0)) * math.log2(math.e)

KV_FLAGS = E("KVF", "nt")
WQ_FLAGS = E("WQF", "")
WO_FLAGS = E("WOF", "")
X_FLAGS = E("XF", "")
OSF = E("OSF", "sc1")
OLF = E("OLF", "sc1")
PBF16 = E("PBF16", "0") == "1"
O_WS_OFF = 0
PART_WS_OFF = 16*1024*1024
FLAG_WS_OFF = 32*1024*1024
EPOCH_WS_OFF = 33*1024*1024
STAMP_WS_OFF = 64*1024*1024
STAMPS = False
SPIN_CAP = 0x40000

def stamp(a, idx):
    if not STAMPS: return
    a(f"s_memrealtime s[{S_STAMP}:{S_STAMP+1}]")
    if idx > 0: a(f"s_memtime s[{S_STAMP+2}:{S_STAMP+3}]")
    a("s_waitcnt lgkmcnt(0)")
    a(f"v_writelane_b32 v{V_ST}, s{S_STAMP}, {idx}")
    if idx > 0: a(f"v_writelane_b32 v0, s{S_STAMP+2}, {idx}")
def stamp_flush(a):
    if not STAMPS: return
    a(f"s_lshl_b32 s{S_STAMP}, s2, 3")
    a(f"s_lshl_b32 s{S_STAMP+1}, s{S_GRP}, 2")
    a(f"s_add_u32 s{S_STAMP}, s{S_STAMP}, s{S_STAMP+1}")
    a(f"s_add_u32 s{S_STAMP}, s{S_STAMP}, s{S_WV}")
    a(f"s_lshl_b32 s{S_STAMP}, s{S_STAMP}, 8")
    a(f"s_add_u32 s{S_STAMP}, s{S_STAMP}, {STAMP_WS_OFF}")
    a(f"v_lshlrev_b32 v{V_TMP}, 2, v{V_LANE}")
    a(f"buffer_store_dword v{V_ST}, v{V_TMP}, {sr(S_WS,4)}, s{S_STAMP} offen")
    a(f"s_add_u32 s{S_STAMP}, s{S_STAMP}, {256*8*256}")
    a(f"buffer_store_dword v0, v{V_TMP}, {sr(S_WS,4)}, s{S_STAMP} offen")

def setup_srds(a):
    a("s_load_dwordx16 s[36:51], s[0:1], 0")
    a("s_load_dwordx8 s[72:79], s[0:1], 64")
    a("s_load_dwordx2 s[20:21], s[0:1], 96")
    a("s_and_b32 s3, s2, 7")
    a(f"s_and_b32 s{S_SET}, s3, 3")
    if E("MAP", "1") == "1":
        a(f"s_lshr_b32 s{S_BR}, s3, 2")
        a(f"s_lshr_b32 s{S_B}, s2, 5")
    elif E("MAP") == "2":
        a(f"s_bfe_u32 s{S_BR}, s2, 0x10005")
        a(f"s_lshr_b32 s{S_B}, s2, 6")
        a(f"s_and_b32 s3, s3, 4")
        a(f"s_or_b32 s{S_B}, s{S_B}, s3")
    else:
        a(f"s_bfe_u32 s{S_BR}, s2, 0x10005")
        a(f"s_lshr_b32 s{S_B}, s2, 6")
        a(f"s_lshl_b32 s{S_B}, s{S_B}, 1")
        a(f"s_lshr_b32 s3, s3, 2")
        a(f"s_or_b32 s{S_B}, s{S_B}, s3")
    a(f"s_lshr_b32 s{S_J}, s2, 3")
    a(f"s_and_b32 s{S_J}, s{S_J}, 3")
    a(f"v_lshrrev_b32 v2, 6, v0")
    a(f"v_and_b32 v{V_LANE}, 63, v0")
    a(f"v_readfirstlane_b32 s{S_WV}, v2")
    for b, n in ((S_K, 1<<26), (S_V, 1<<26), (S_X, 1<<20), (S_WQ, 1<<22), (S_WS, 287309824), (S_WO, 1<<22), (S_OUT, 1<<21)):
        a(f"s_mov_b32 s{b+2}, {n}")
        a(f"s_mov_b32 s{b+3}, 0x20000")
    a(f"s_lshr_b32 s{S_GRP}, s{S_WV}, 2")
    a(f"s_and_b32 s{S_WV}, s{S_WV}, 3")
    a(f"s_lshl_b32 s{S_LDSW}, s{S_WV}, 12")

def finish_srds(a):
    a("s_waitcnt lgkmcnt(0)")
    a(f"s_cmp_eq_u32 s{S_BR}, 0")
    for b, sa, sb in ((S_X, 36, 46), (S_K, 38, 48), (S_V, 40, 50), (S_WQ, 42, 72), (S_WO, 44, 74)):
        a(f"s_cselect_b32 s{b}, s{sa}, s{sb}")
        a(f"s_cselect_b32 s{b+1}, s{sa+1}, s{sb+1}")
    a(f"s_mov_b32 s{S_OUT}, s76")
    a(f"s_mov_b32 s{S_OUT+1}, s77")
    a(f"s_mov_b32 s{S_DBG}, s78")
    a(f"s_mov_b32 s{S_DBG+1}, s79")
    a(f"s_mov_b32 s{S_DBG+2}, 256")
    a(f"s_mov_b32 s{S_DBG+3}, 0x20000")

def setup_vtype_addr(a, base_imm, xor_sgpr=None):
    t0, t1, t2 = V_TMP, V_TMP+1, V_E+3
    a(f"v_bfe_u32 v{t0}, v{V_LANE}, 2, 3")
    a(f"v_bfe_u32 v{t2}, v{V_LANE}, 2, 2")
    a(f"v_lshrrev_b32 v{t1}, 4, v{V_LANE}")
    a(f"v_lshl_add_u32 v{t1}, v{t1}, 3, v{t2}")
    a(f"v_lshlrev_b32 v{t1}, 8, v{t1}")
    a(f"v_and_b32 v{t2}, 3, v{V_LANE}")
    a(f"v_lshl_add_u32 v{t1}, v{t2}, 3, v{t1}")
    if base_imm: a(f"v_add_u32 v{t1}, {base_imm}, v{t1}")
    if xor_sgpr is not None: a(f"v_xor_b32 v{t0}, s{xor_sgpr}, v{t0}")
    for dt in range(8):
        a(f"v_xor_b32 v{t2}, {dt}, v{t0}")
        a(f"v_lshl_add_u32 v{V_VA+dt}, v{t2}, 5, v{t1}")

def setup_vtype_dma(a, dst, log2stride):
    t0, t1, t2 = V_TMP, V_TMP+1, V_E+3
    a(f"v_lshrrev_b32 v{t0}, 4, v{V_LANE}")
    a(f"v_and_b32 v{t1}, 15, v{V_LANE}")
    a(f"v_lshlrev_b32 v{t2}, 1, v{t0}")
    a(f"v_xor_b32 v{t1}, v{t1}, v{t2}")
    a(f"v_lshlrev_b32 v{t1}, 4, v{t1}")
    a(f"s_lshl_b32 s{S_T0}, s{S_WV}, 4")
    a(f"v_add_u32 v{t0}, s{S_T0}, v{t0}")
    a(f"v_lshl_add_u32 v{dst}, v{t0}, {log2stride}, v{t1}")
    a(f"v_xor_b32 v{dst+1}, 0x80, v{dst}")

def setup_ktype_dma(a, dst, log2stride):
    t0, t1, t2 = V_TMP, V_TMP+1, V_E+3
    a(f"v_lshrrev_b32 v{t0}, 4, v{V_LANE}")
    a(f"v_and_b32 v{t1}, 15, v{V_LANE}")
    a(f"v_xor_b32 v{t1}, v{t1}, v{t0}")
    a(f"s_and_b32 s{S_T0}, s{S_WV}, 1")
    a(f"s_lshl_b32 s{S_T0}, s{S_T0}, 3")
    a(f"v_xor_b32 v{t1}, s{S_T0}, v{t1}")
    a(f"v_lshlrev_b32 v{t1}, 4, v{t1}")
    a(f"s_lshl_b32 s{S_T0}, s{S_WV}, 4")
    a(f"v_add_u32 v{t0}, s{S_T0}, v{t0}")
    a(f"v_lshl_add_u32 v{dst}, v{t0}, {log2stride}, v{t1}")
    a(f"v_xor_b32 v{dst+1}, 0x40, v{dst}")

def row0(a, dst, tmp):
    a(f"v_bfe_u32 v{tmp}, v{V_LANE}, 2, 2")
    a(f"v_and_b32 v{dst}, 3, v{V_LANE}")
    a(f"v_lshl_or_b32 v{dst}, v{tmp}, 3, v{dst}")

def k_addr_setup(a):
    t0, t1, t2 = V_TMP, V_TMP+1, V_E+3
    row0(a, t0, t1)
    a(f"v_lshlrev_b32 v{t0}, 8, v{t0}")
    a(f"v_and_b32 v{t1}, 15, v{V_LANE}")
    a(f"v_lshrrev_b32 v{t2}, 4, v{V_LANE}")
    a(f"v_xor_b32 v{t1}, v{t1}, v{t2}")
    for ks in range(4):
        a(f"v_xor_b32 v{t2}, {4*ks}, v{t1}")
        a(f"v_lshl_add_u32 v{V_KA+ks}, v{t2}, 4, v{t0}")

WIN = [0]
def window(a):
    w = WIN[0]
    if w and len(a.vmq) >= w:
        a(f"s_waitcnt vmcnt({w-1})")
        a.vmq = a.vmq[len(a.vmq)-(w-1):]
def dma(a, srd, voff, soff, ldsbase, gstep, flags, tag, js=(0,1,2,3)):
    a(f"s_add_u32 m0, s{S_LDSW}, {ldsbase}")
    if gstep == 1024:
        a("s_nop 0")
        for j in js:
            window(a)
            a.vm(f"buffer_load_dwordx4 v{voff+(j>>1)}, {sr(srd,4)}, s{soff} offen offset:{j*1024} {flags} lds", tag)
    else:
        for j in js:
            if j == 0: a(f"s_mov_b32 s{S_T0}, s{soff}")
            else: a(f"s_add_u32 s{S_T0}, s{soff}, {j*(gstep-1024)}")
            window(a)
            a.vm(f"buffer_load_dwordx4 v{voff+(j>>1)}, {sr(srd,4)}, s{S_T0} offen offset:{j*1024} {flags} lds", tag)

def mfma(d, x, y, c): return f"v_mfma_f32_16x16x32_bf16 {vr(d,4)}, {vr(x,4)}, {vr(y,4)}, {c if isinstance(c,str) else vr(c,4)}"

def pj_mm(seg, idx):
    if idx < 0: seg, idx = (seg-1) % 8, idx + 16
    ks, dt = idx >> 3, idx & 7
    return [mfma(OREG(dt,qh), V_VF+4*dt, XREG(4*seg+2*ks+qh), OREG(dt,qh)) for qh in range(2)]

def seg_flush(a, seg):
    a("s_waitcnt lgkmcnt(0)")
    for idx in range(16-PLAG, 16):
        for x in pj_mm(seg, idx): a(x)

TAILW = {2: 20, 3: 16, 4: 12, 5: 8, 6: 4, 7: 0}
def proj_segs(a):
    def rdl(idx):
        ks, dt = idx >> 3, idx & 7
        d = V_VF + 4*dt
        return [f"ds_read_b64_tr_b16 {vr(d,2)}, v{V_VA+dt} offset:{ks*8192}", f"ds_read_b64_tr_b16 {vr(d+2,2)}, v{V_VA+dt} offset:{ks*8192+1024}"]
    a.label("PJ0f")
    a("s_waitcnt lgkmcnt(2)")
    for idx in range(PLAG):
        for x in rdl(idx): a(x)
    a(f"s_waitcnt lgkmcnt({2*(PLAG-1)})")
    a("s_branch PJ0m")
    for seg in range(8):
        a.label(f"PJ{seg}")
        for idx in range(16):
            if seg == 0 and idx == PLAG: a.label("PJ0m")
            m = pj_mm(seg, idx-PLAG); r = rdl(idx)
            a(m[0]); a(r[0])
            if idx >= 9: a(f"v_add_u32 v{V_VA+idx-9}, s{S_DL+seg}, v{V_VA+idx-9}")
            a(m[1]); a(f"s_waitcnt lgkmcnt({2*(PLAG-1)-1})"); a(r[1])
            if idx == 15: a(f"v_add_u32 v{V_VA+7}, s{S_DL+seg}, v{V_VA+7}")
        if seg < 7:
            a("s_cbranch_scc1 PJret")
            if seg+1 in TAILW: a(f"s_waitcnt vmcnt({TAILW[seg+1]})")
    a.label("PJret")
    a(f"s_setpc_b64 {sr(S_RET,2)}")

def call_seg(a, seg, fresh, delta=None, chain=False):
    if delta is not None: a(f"s_mov_b32 s{S_DL+seg}, {u32(delta)}")
    a(f"s_cmp_eq_u32 0, {1 if chain else 0}")
    a(f"s_call_b64 {sr(S_RET,2)}, PJ{seg}{'f' if fresh else ''}")

def proj_bench(a):
    for i in range(8): a(f"s_mov_b32 s{S_DL+i}, 0")
    call_seg(a, 0, True, chain=True); seg_flush(a, 7)
    for i in range(8): call_seg(a, i, i == 0)
    seg_flush(a, 7)

def acc_to_frags(a, dstf, scale):
    for f in range(8):
        ks, qh = f >> 1, f & 1
        for h in range(2):
            b = OREG(2*ks+h, qh)
            if scale is None:
                if E("PKL"):
                    for i in range(2): a(f"v_pk_mul_f32 {vr(b+2*i,2)}, {vr(b+2*i,2)}, {sr(S_SC,2)}")
                else:
                    for i in range(4): a(f"v_mul_f32 v{b+i}, s{S_SC}, v{b+i}")
            else:
                if E("PKL"):
                    for i in range(2): a(f"v_pk_mul_f32 {vr(b+2*i,2)}, {vr(b+2*i,2)}, {vr(V_E+2*qh,2)}")
                else:
                    for i in range(4): a(f"v_mul_f32 v{b+i}, v{V_E+2*qh}, v{b+i}")
            for i in range(2): a(f"v_cvt_pk_bf16_f32 v{dstf(f)+2*h+i}, v{b+2*i}, v{b+2*i+1}")
    for op in ("v_permlane32_swap_b32", "v_permlane16_swap_b32"):
        for f in range(8):
            for i in range(2): a(f"{op} v{dstf(f)+i}, v{dstf(f)+2+i}")

def xreduce(a, op, d0, d1, t0, t1):
    for sw in ("v_permlane32_swap_b32", "v_permlane16_swap_b32"):
        a(f"v_mov_b32 v{t0}, v{d0}")
        a(f"v_mov_b32 v{t1}, v{d1}")
        a("s_nop 1")
        a(f"{sw} v{d0}, v{t0}")
        a(f"{sw} v{d1}, v{t1}")
        a(f"{op} v{d0}, v{d0}, v{t0}")
        a(f"{op} v{d1}, v{d1}, v{t1}")

def rowmax(a, S, d, t):
    for qh in range(2):
        b0, b1 = S+4*qh, S+8+4*qh
        a(f"v_max3_f32 v{d+qh}, v{b0}, v{b0+1}, v{b0+2}")
        a(f"v_max3_f32 v{d+qh}, v{d+qh}, v{b0+3}, v{b1}")
        a(f"v_max3_f32 v{d+qh}, v{d+qh}, v{b1+1}, v{b1+2}")
        a(f"v_max_f32 v{d+qh}, v{d+qh}, v{b1+3}")
    xreduce(a, "v_max_f32", d, d+1, t, t+1)

QH = lambda i: (i >> 2) & 1
def pidx(j): return 4*QH(j) + 2*(j >> 3) + ((j & 3) >> 1)

def rare(a, par):
    Sc, Sn, Pc = V_S[par], V_S[1-par], V_P[par]
    d, t = V_E, V_E+2
    a.label(f"L_rare{par}")
    a("s_nop 15")
    rowmax(a, Sc, d, t)
    for qh in range(2): a(f"v_add_f32 v{d+qh}, s{S_THR}, v{d+qh}")
    for qh in range(2): a(f"v_max_f32 v{d+qh}, 0, v{d+qh}")
    for qh in range(2): a(f"v_exp_f32 v{t+qh}, -v{d+qh}")
    for i in range(8): a(f"v_sub_f32 v{V_NM+i}, v{V_NM+i}, v{d+QH(i)}")
    for i in range(16): a(f"v_sub_f32 v{Sc+i}, v{Sc+i}, v{d+QH(i)}")
    for i in range(16): a(f"v_sub_f32 v{Sn+i}, v{Sn+i}, v{d+QH(i)}")
    for i in range(64): a(f"v_mul_f32 v{V_O+i}, v{V_O+i}, v{t+QH(i)}")
    for i in range(8): a(f"v_mul_f32 v{V_LA+i}, v{V_LA+i}, v{t+QH(i)}")
    for i in range(16): a(f"v_exp_f32 v{Sc+i}, v{Sc+i}")
    a("s_nop 0")
    for j in range(1, 16, 2): a(f"v_cvt_pk_bf16_f32 v{Pc+pidx(j)}, v{Sc+j-1}, v{Sc+j}")
    a("s_nop 1")
    a(f"s_setpc_b64 {sr(S_RET,2)}")

def att_pairs(a, par, i0, i1, qk, pv, sm, koff, voff, uid, bar=None):
    Sc, Sn, Pc, Pp = V_S[par], V_S[1-par], V_P[par], V_P[1-par]
    T = V_TMP
    W = [Pc+pidx(2*n+1) for n in range(8)]
    for i in range(i0, i1):
        kt, ks = i >> 2, i & 3
        f = (i + 4) % 8
        mq = [mfma(Sn+8*kt+4*qh, V_KF+4*i, V_Q+4*(2*ks+qh), (V_NM+4*qh) if ks == 0 else Sn+8*kt+4*qh) for qh in range(2)] if qk else [None, None]
        mp = [mfma(OREG(i,qh), V_VF+4*i, Pp+4*qh, OREG(i,qh)) for qh in range(2)] if pv else [None, None]
        ml = [mfma(V_LA+4*qh, V_ONE, Pp+4*qh, V_LA+4*qh) for qh in range(2)] if pv else [None, None]
        ex = [f"v_exp_f32 v{V_E+n}, v{Sc+2*i+n}" for n in range(2)] if sm else [None, None]
        cv = f"v_cvt_pk_bf16_f32 v{W[i]}, v{V_E}, v{V_E+1}" if sm else None
        def e(x):
            if x: a(x)
        def vread():
            o = voff(i)
            if o is None: return
            a.ds(f"ds_read_b64_tr_b16 {vr(V_VF+4*f,2)}, v{V_VA+f} offset:{o}", f"v{f}")
            a.ds(f"ds_read_b64_tr_b16 {vr(V_VF+4*f+2,2)}, v{V_VA+f} offset:{o+1024}", f"v{f}")
        def kread():
            o = koff(i)
            if o is None: return
            a.ds(f"ds_read_b128 {vr(V_KF+4*f,4)}, v{V_KA+(f&3)} offset:{o+(f>>2)*1024}", f"k{f}")
        nxt = [f"k{(i+1)%8}", f"v{(i+1)%8}"]
        if i < 7:
            e(mq[0]); e(ex[0]); e(mq[1])
            if bar and i == i0: bar()
            vread()
            e(mp[0]); a.dswait(nxt); e(ex[1]); e(mp[1]); kread()
            if sm and not pv and koff(i) is None: a("s_nop 0")
            e(cv)
            if i == 5:
                e(ml[1])
                if sm:
                    a(f"v_or3_b32 v{T}, v{W[0]}, v{W[1]}, v{W[2]}")
                    a(f"v_or3_b32 v{T}, v{T}, v{W[3]}, v{W[4]}")
        else:
            e(mq[0]); e(ex[0]); e(mq[1]); a.dswait(nxt); e(ex[1]); e(mp[0]); kread()
            if sm: a(f"v_or3_b32 v{T}, v{T}, v{W[5]}, v{W[6]}")
            e(mp[1]); e(cv)
            if sm:
                a(f"v_bitop3_b32 v{T}, v{T}, v{W[7]}, s{S_MSK} bitop3:0xa8")
                a(f"v_cmp_ne_u32 vcc, 0, v{T}")
            e(ml[0]); vread()
            if sm:
                a(f"s_cbranch_vccnz L_st{uid}")
                a.label(f"L_ok{uid}")
                a.stubs.append((uid, par))

def att_stubs(a):
    for uid, par in a.stubs:
        a.label(f"L_st{uid}")
        a(f"s_call_b64 {sr(S_RET,2)}, L_rare{par}")
        a(f"s_branch L_ok{uid}")

def attention(a):
    S0 = V_S[0]
    a.lq = []
    for u in range(8): a.ds(f"ds_read_b128 {vr(V_KF+4*u,4)}, v{V_KA+(u&3)} offset:{(u>>2)*1024}", f"k{u}")
    for i in range(32): a(f"v_mov_b64 {vr(V_O+2*i,2)}, 0")
    for i in range(4): a(f"v_mov_b64 {vr(V_LA+2*i,2)}, 0")
    for i in range(4): a(f"v_mov_b64 {vr(V_P[1]+2*i,2)}, 0")
    for i in range(8): a(f"v_mov_b64 {vr(V_VF+16+2*i,2)}, 0")
    for i in range(4): a(f"v_mov_b32 v{V_ONE+i}, 0x3f803f80")
    for u in range(8):
        kt, ks = u >> 2, u & 3
        if u % 4 == 0: a.dswait(f"k{u+3}")
        for qh in range(2): a(mfma(S0+8*kt+4*qh, V_KF+4*u, V_Q+4*(2*ks+qh), "0" if ks == 0 else S0+8*kt+4*qh))
    for u in range(4): a.ds(f"ds_read_b128 {vr(V_KF+4*u,4)}, v{V_KA+u} offset:8192", f"k{u}")
    a(f"s_mov_b32 s{S_CNT}, 0")
    a("s_nop 3")
    rowmax(a, S0, V_E, V_E+2)
    for qh in range(2): a(f"v_add_f32 v{V_E+qh}, s{S_THR}, v{V_E+qh}")
    for i in range(8): a(f"v_sub_f32 v{V_NM+i}, 0, v{V_E+QH(i)}")
    for i in range(16): a(f"v_sub_f32 v{S0+i}, v{S0+i}, v{V_E+QH(i)}")
    a.dswait("k0")
    att_pairs(a, 0, 0, 4, True, False, True, lambda i: 8192, lambda i: None, "p")
    lq_entry = list(a.lq)
    a.raw(".p2align 3")
    a.label("L_att_loop")
    for p in range(3):
        ks, vs = ((p+1) % 3)*16384, p*16384
        def bar(p=p):
            a.dsall()
            if p == 0: a("s_waitcnt vmcnt(8)")
            if p == 1: a("s_waitcnt vmcnt(0)")
            a("s_barrier")
        att_pairs(a, 0, 4, 8, True, True, True, lambda i: ks, lambda i: vs, f"a{p}", bar)
        att_pairs(a, 1, 0, 8, True, True, True, lambda i: ks + (i >> 2)*8192, lambda i: vs + (i >> 2)*8192, f"b{p}")
        att_pairs(a, 0, 0, 4, True, True, True, lambda i: ks + 8192, lambda i: vs + 8192, f"c{p}")
    a(f"s_add_u32 s{S_CNT}, s{S_CNT}, 1")
    a(f"s_cmp_lt_u32 s{S_CNT}, 5")
    a("s_cbranch_scc1 L_att_loop")
    def bar():
        a.dsall(); a("s_barrier")
    att_pairs(a, 0, 4, 8, True, True, True, lambda i: None, lambda i: 0, "e0", bar)
    att_pairs(a, 1, 0, 8, False, True, True, lambda i: None, lambda i: (i >> 2)*8192, "e1")
    att_pairs(a, 0, 0, 8, False, True, False, lambda i: None, lambda i: 8192 if i < 4 else None, "e2")
    assert a.lq == [], a.lq

def normalize_o(a):
    a("s_nop 7")
    for i in range(4): a(f"v_rcp_f32 v{V_E+i}, v{V_LA+2*i}")
    a("s_nop 0")
    acc_to_frags(a, XREG, "l")

def store_o(a):
    a(f"s_add_u32 s{S_T0}, s{S_OOFF}, 4096")
    for m in range(8):
        so = S_OOFF if m < 4 else S_T0
        a.vm(f"buffer_store_dwordx4 {vr(XREG(m),4)}, v{V_L16}, {sr(S_WS,4)}, s{so} offen offset:{(m%4)*1024} {OSF}", "ost")

def load_o(a, head_sgpr_off, first_frag, tag):
    a(f"s_add_u32 s{S_T0}, s{head_sgpr_off}, 4096")
    for m in range(8):
        so = head_sgpr_off if m < 4 else S_T0
        a.vm(f"buffer_load_dwordx4 {vr(XREG(first_frag+m),4)}, v{V_L16}, {sr(S_WS,4)}, s{so} offen offset:{(m%4)*1024} {OLF}", tag + ("a" if m < 4 else "b"))

def set_flag(a, kind, tag="flag"):
    a(f"v_mov_b32 v{V_TMP}, s{S_TOK}")
    a(f"v_mov_b32 v{V_TMP+1}, s{S_TOK+1}")
    a("s_mov_b64 exec, 1")
    a.vm(f"buffer_store_dwordx2 {vr(V_TMP,2)}, off, {sr(S_WS,4)}, s{S_FLG} offset:{kind*128} sc1", tag)
    a("s_mov_b64 exec, -1")

def poll_issue(a, kind, dst, tag):
    a("s_mov_b64 exec, 7")
    a.vm(f"buffer_load_dwordx2 {vr(dst,2)}, v{V_FL}, {sr(S_WS,4)}, 0 offen offset:{kind*128} sc1", tag)
    a("s_mov_b64 exec, -1")

def poll_spin(a, kind, uid, dst):
    a(f"s_mov_b32 s{S_CNT}, {SPIN_CAP}")
    a("s_mov_b64 exec, 7")
    a(f"s_branch L_pollf{uid}")
    a.label(f"L_poll{uid}")
    a(f"s_sub_u32 s{S_CNT}, s{S_CNT}, 1")
    a(f"s_cbranch_scc1 L_pollx{uid}")
    if int(E("SLP", "2")): a(f"s_sleep {E('SLP','2')}")
    a.label(f"L_pollf{uid}")
    a(f"buffer_load_dwordx2 {vr(dst,2)}, v{V_FL}, {sr(S_WS,4)}, 0 offen offset:{kind*128} sc1")
    a("s_waitcnt vmcnt(0)")
    a(f"v_cmp_ne_u64 vcc, {sr(S_TOK,2)}, {vr(dst,2)}")
    a(f"s_cbranch_vccnz L_poll{uid}")
    a.label(f"L_pollx{uid}")
    a("s_mov_b64 exec, -1")
    a.vmq = []

def pkg(a, g):
    kn, vn = g+1, g
    if kn <= 31:
        if kn == 16: a(f"s_mov_b32 s{S_KOFF}, s{S_H2OFF}")
        dma(a, S_K, V_DK, S_KOFF, KSLOT(kn), 1024, KV_FLAGS, f"p{g}")
        a(f"s_add_u32 s{S_KOFF}, s{S_KOFF}, 16384")
    if 0 <= vn <= 31:
        if vn == 16: a(f"s_mov_b32 s{S_VOFF}, s{S_H2OFF}")
        dma(a, S_V, V_DV, S_VOFF, VSLOT(vn), 1024, KV_FLAGS, f"p{g}")
        a(f"s_add_u32 s{S_VOFF}, s{S_VOFF}, 16384")

XS = [(VSLOT(1), WSLOT(0)), (WSLOT(3), VSLOT(2)), (VSLOT(0), KSLOT(2)), (WSLOT(1), WSLOT(2))]
W1S = [WSLOT(1), WSLOT(2), KSLOT(0), KSLOT(1), VSLOT(1), WSLOT(0), WSLOT(3), VSLOT(2)]

def x_addr_move(a, q, prev_q):
    pa, pb = XS[prev_q] if prev_q is not None else (0, 0)
    a(f"s_cmp_lt_u32 s{S_WV}, 2")
    a(f"s_mov_b32 s{S_T1}, {u32(XS[q][0]-pa)}")
    a(f"s_cselect_b32 s{S_T1}, s{S_T1}, {u32(XS[q][1]-pb)}")
    if prev_q is None: a(f"s_add_u32 s{S_T1}, s{S_T1}, s{S_HALF}")
    for m in range(4): a(f"v_add_u32 v{V_KA+m}, s{S_T1}, v{V_KA+m}")
def x_frag_issue(a, q):
    for f in range(8): a(f"ds_read_b128 {vr(XREG(8*q+f),4)}, v{V_KA+(f>>1)} offset:{(f&1)*1024}")
def x_addr_finish(a, kbase):
    a(f"s_cmp_lt_u32 s{S_WV}, 2")
    a(f"s_mov_b32 s{S_T1}, {u32(kbase-XS[3][0])}")
    a(f"s_cselect_b32 s{S_T1}, s{S_T1}, {u32(kbase-XS[3][1])}")
    a(f"s_sub_u32 s{S_T1}, s{S_T1}, s{S_HALF}")
    for m in range(4): a(f"v_add_u32 v{V_KA+m}, s{S_T1}, v{V_KA+m}")

def own_o_lds_addr(a, dst):
    a(f"s_cmp_lt_u32 s{S_WV}, 2")
    a(f"s_mov_b32 s{S_T1}, {VSLOT(30)}")
    a(f"s_cselect_b32 s{S_T1}, s{S_T1}, {KSLOT(31)}")
    a(f"s_add_u32 s{S_T1}, s{S_T1}, s{S_HALF}")
    a(f"v_add_u32 v{dst}, s{S_T1}, v{V_L16}")

def tspin(a, us, uid):
    a.label(f"L_ts{uid}")
    a("s_sleep 2")
    a("s_memrealtime s[94:95]")
    a("s_waitcnt lgkmcnt(0)")
    a("s_sub_u32 s94, s94, s92")
    a(f"s_cmp_lt_u32 s94, {int(us)*100}")
    a(f"s_cbranch_scc1 L_ts{uid}")

def q_finalize(a):
    a(f"s_mov_b32 s{S_SC}, {f2u(QSCALE):#x}")
    a(f"s_mov_b32 s{S_SC+1}, {f2u(QSCALE):#x}")
    a("s_nop 3")
    acc_to_frags(a, lambda f: V_Q+4*f, None)

def proj1_inline(a):
    L = 5
    a.lq = []
    def rd(n):
        idx = n & 15; ks, dt = idx >> 3, idx & 7
        d = V_VF + 4*dt
        return [(f"ds_read_b64_tr_b16 {vr(d+2*u,2)}, v{V_VA+dt} offset:{ks*8192+u*1024}", f"f{n}") for u in range(2)]
    def xrd(q, f): return (f"ds_read_b128 {vr(XREG(8*q+f),4)}, v{V_KA+(f>>1)} offset:{(f&1)*1024}", f"x{8*q+f}")
    def need(n):
        seg, idx = n >> 4, n & 15
        return [f"f{n}", f"x{4*seg+2*(idx>>3)}", f"x{4*seg+2*(idx>>3)+1}"]
    for n in range(128 + L):
        seg, idx = n >> 4, n & 15
        m = pj_mm((n-L) >> 4, (n-L) & 15) if n >= L else [None, None]
        r = rd(n) if n < 128 else []
        x = xrd(seg//2, idx) if (n < 128 and seg % 2 == 0 and idx < 8) else None
        v = []
        if n < 128:
            delta = (W1S[seg+1] if seg < 7 else VSLOT(0)) - W1S[seg]
            if idx == 8: a(f"s_mov_b32 s{S_DL}, {u32(delta)}")
            if idx >= 9: v.append(f"v_add_u32 v{V_VA+idx-9}, s{S_DL}, v{V_VA+idx-9}")
            if seg % 2 == 1 and idx < 4: v.append(f"v_add_u32 v{V_KA+idx}, s{S_T1}, v{V_KA+idx}")
            if seg % 2 == 0 and idx == 12:
                q = seg // 2
                tgt = XS[q+1] if q < 3 else (KSLOT(0), KSLOT(0))
                a(f"s_cmp_lt_u32 s{S_WV}, 2")
                a(f"s_mov_b32 s{S_T1}, {u32(tgt[0]-XS[q][0])}")
                a(f"s_cselect_b32 s{S_T1}, s{S_T1}, {u32(tgt[1]-XS[q][1])}")
                if q == 3: a(f"s_sub_u32 s{S_T1}, s{S_T1}, s{S_HALF}")
        if m[0]: a(m[0])
        if idx == 0 and n <= 128: a("s_barrier")
        if x: a.ds(*x)
        if r: a.ds(*r[0])
        if v and not x: a(v.pop(0))
        if m[1]: a(m[1])
        if L <= n+1 < 128 + L: a.dswait(need(n+1-L))
        if r: a.ds(*r[1])
        for y in v: a(y)
        if n < 128 and idx == 15: a(f"v_add_u32 v{V_VA+7}, s{S_DL}, v{V_VA+7}")
    assert a.lq == []

def kernel(a, name):
    a.raw(f".globl {name}"); a.raw(".p2align 8"); a.raw(f".type {name},@function"); a.label(name)
    a("s_cmp_ge_u32 s2, 256")
    a("s_cbranch_scc1 L_end")
    if STAMPS: a(f"v_mov_b32 v{V_ST}, 0")
    stamp(a, 0)
    if E("ENDSPIN") or E("MIDSPIN") or E("LATESPIN"): a("s_memrealtime s[92:93]")
    setup_srds(a)
    a(f"s_lshl_b32 s{S_T1}, s{S_SET}, 3")
    a(f"s_add_u32 s{S_T1}, s{S_T1}, s{S_J}")
    a(f"s_lshl_b32 s{S_T2}, s{S_B}, 5")
    a(f"s_add_u32 s{S_T2}, s{S_T2}, s{S_T1}")
    a(f"s_lshl_b32 s{S_KOFF}, s{S_T2}, 18")
    a(f"s_mov_b32 s{S_VOFF}, s{S_KOFF}")
    a(f"s_add_u32 s{S_H2OFF}, s{S_KOFF}, {4<<18}")
    a(f"s_mov_b32 s{S_THR}, 0x41700000")
    a(f"v_lshlrev_b32 v{V_L16}, 4, v{V_LANE}")
    setup_ktype_dma(a, V_E, 10)
    setup_vtype_dma(a, V_DW, 13)
    finish_srds(a)
    stamp(a, 1)
    a(f"s_lshl_b32 s{S_WBASE}, s{S_T1}, 8")
    a(f"s_lshl_b32 s{S_XBASE}, s{S_B}, 17")
    if E("MAP") == "3":
        a(f"s_lshr_b32 s{S_ROT}, s{S_B}, 1")
        a(f"s_add_u32 s{S_ROT}, s{S_J}, s{S_ROT}")
    else: a(f"s_add_u32 s{S_ROT}, s{S_J}, s{S_B}")
    a(f"s_and_b32 s{S_ROT}, s{S_ROT}, {3 if E('NOROT') is None else 0}")
    a(f"s_cmp_eq_u32 s{S_GRP}, 0")
    a("s_cbranch_scc1 L_grpA")

    def common2():
        a(f"s_lshl_b32 s{S_T0}, s{S_BR}, 3")
        a(f"s_add_u32 s{S_T0}, s{S_T0}, s{S_B}")
        a(f"s_lshl_b32 s{S_T3}, s{S_T0}, 7")
        a(f"s_add_u32 s{S_T3}, s{S_T3}, {EPOCH_WS_OFF}")
        a(f"s_load_dwordx2 {sr(S_EP,2)}, {sr(S_WS,2)}, s{S_T3}")
        a(f"s_lshl_b32 s{S_T0}, s{S_T0}, 2")
        a(f"s_add_u32 s{S_T0}, s{S_T0}, s{S_SET}")
        a(f"s_lshl_b32 s{S_T0}, s{S_T0}, 5")
        a(f"s_add_u32 s{S_T0}, s{S_T0}, s{S_WV}")
        a(f"s_lshl_b32 s{S_OSET}, s{S_T0}, 13")
        a(f"s_lshl_b32 s{S_T0}, s{S_GRP}, 2")
        a(f"s_add_u32 s{S_T0}, s{S_T0}, s{S_J}")
        a(f"s_lshl_b32 s{S_T0}, s{S_T0}, 15")
        a(f"s_add_u32 s{S_OOFF}, s{S_OSET}, s{S_T0}")
        a(f"s_lshl_b32 s{S_T0}, s2, 2")
        a(f"s_add_u32 s{S_T0}, s{S_T0}, s{S_WV}")
        a(f"s_mul_i32 s{S_FLG}, s{S_T0}, 384")
        a(f"s_add_u32 s{S_FLG}, s{S_FLG}, {FLAG_WS_OFF}")
        a(f"s_mov_b32 s{S_MSK}, 0x40004000")
        a(f"s_and_b32 s{S_HALF}, s{S_WV}, 1")
        a(f"s_lshl_b32 s{S_HALF}, s{S_HALF}, 13")
        a(f"s_lshl_b32 s{S_WOB}, s{S_SET}, 20")
        a(f"s_lshl_b32 s{S_T0}, s{S_J}, 8")
        a(f"s_add_u32 s{S_WOB}, s{S_WOB}, s{S_T0}")
        setup_vtype_dma(a, V_DV, 8)
        setup_ktype_dma(a, V_DK, 8)
        k_addr_setup(a)
        x_addr_move(a, 0, None)
    def token():
        a("s_waitcnt lgkmcnt(0)")
        a(f"s_mul_i32 s{S_TOK}, s{S_EP}, 0x9E3779B1")
        a(f"s_add_u32 s{S_TOK}, s{S_TOK}, 0x7F4A7C15")
        a(f"s_mul_i32 s{S_TOK+1}, s{S_EP+1}, 0x85EBCA6D")
        a(f"s_add_u32 s{S_TOK+1}, s{S_TOK+1}, 0x27D4EB2F")

    TS = {t: WSLOT2(t) for t in range(6)}
    TS.update({6: KSLOT(29), 7: KSLOT(30), 8: VSLOT(29), 9: VSLOT(31), 10: TS[2], 11: TS[3], 12: TS[4], 13: TS[5], 14: KSLOT(29), 15: KSLOT(30)})
    def wo_off(t):
        d = (t >> 1) & 3
        a(f"s_add_u32 s{S_WOFF}, s{S_J}, {d}")
        a(f"s_and_b32 s{S_WOFF}, s{S_WOFF}, 3")
        a(f"s_lshl_b32 s{S_WOFF}, s{S_WOFF}, 17")
        a(f"s_add_u32 s{S_WOFF}, s{S_WOFF}, s{S_WOB}")
        add = (t >> 3)*4*131072 + (t & 1)*65536
        if add: a(f"s_add_u32 s{S_WOFF}, s{S_WOFF}, {add}")
    def wo_tile(t, js=(0,1,2,3)):
        if js[0] == 0: wo_off(t)
        dma(a, S_WO, V_DW, S_WOFF, TS[t], 4096, WO_FLAGS, f"wo{t}", js)

    a.vmq = []
    def rot_off(dst, q, shift, base):
        a(f"s_add_u32 s{dst}, s{S_ROT}, {q}")
        a(f"s_and_b32 s{dst}, s{dst}, 3")
        a(f"s_lshl_b32 s{dst}, s{dst}, {shift}")
        a(f"s_add_u32 s{dst}, s{dst}, s{base}")
    def xt(q, half):
        rot_off(S_XOFF, q, 8, S_XBASE)
        if half: a(f"s_add_u32 s{S_XOFF}, s{S_XOFF}, 65536")
        dma(a, S_X, V_E, S_XOFF, XS[q][half], 4096, X_FLAGS, f"s{2*q}")
    def wq(i, slot, tag, js=(0,1,2,3)):
        if js[0] == 0:
            rot_off(S_WOFF, i//2, 20, S_WBASE)
            if i % 2: a(f"s_add_u32 s{S_WOFF}, s{S_WOFF}, {64*8192}")
        dma(a, S_WQ, V_DW, S_WOFF, slot, 4*8192, WQ_FLAGS, tag, js)
    def ktile(n, tag):
        dma(a, S_K, V_DK, S_KOFF, KSLOT(n), 1024, KV_FLAGS, tag)
        a(f"s_add_u32 s{S_KOFF}, s{S_KOFF}, 16384")
    def vtile(n, tag):
        dma(a, S_V, V_DV, S_VOFF, VSLOT(n), 1024, KV_FLAGS, tag)
        a(f"s_add_u32 s{S_VOFF}, s{S_VOFF}, 16384")
    seq = []
    for q in range(4):
        seq += [lambda q=q: xt(q,0), lambda q=q: xt(q,1), lambda q=q: wq(2*q, W1S[2*q], f"s{2*q}"), lambda q=q: wq(2*q+1, W1S[2*q+1], f"s{2*q+1}")]
    seq += [lambda: ktile(0, "p-1"), lambda: ktile(1, "p0"), lambda: vtile(0, "p0"), lambda: ktile(2, "p1"), lambda: vtile(1, "p1")]
    free_after = [-1]*10 + [2, 2, 2, 3, 4, 4, 4, 5, 6, 6, 6]
    cum = eval(E("CUM", "[5,8,10,13,14,17,18,19,19]"))
    pos = [0]
    def issue_to(n, after):
        while pos[0] < n:
            assert free_after[pos[0]] <= after, (pos[0], after)
            seq[pos[0]](); pos[0] += 1
    issue_to(2, -1)
    common2()
    issue_to(cum[0], -1)
    setup_vtype_addr(a, WSLOT(0))
    token()
    for i in range(8):
        a.vmwait(f"s{i}")
        a("s_barrier")
        stamp(a, 2+i)
        if i % 2 == 1: x_frag_issue(a, i//2)
        issue_to(cum[i+1], i)
        if i == 6:
            for r in range(32): a(f"v_mov_b64 {vr(V_O+2*r,2)}, 0")
        if i % 2 == 1:
            a("s_waitcnt lgkmcnt(0)")
            if i < 6: x_addr_move(a, i//2+1, i//2)
            else: x_addr_finish(a, KSLOT(16))
    a(f"s_add_u32 s{S_WBASE}, s{S_WBASE}, {4*256}")
    a.vmwait("p-1")
    stamp(a, 10)
    a("s_barrier")
    stamp(a, 11)
    issue_to(21, 8)
    halves = eval(E("W2H", "{0:[0],1:[1],2:[2],3:[3],4:[4],5:[5],6:[6,7],7:[8],8:[9],9:[10,11],10:[12],11:[13],12:[14],13:[15]}"))
    cons = eval(E("W2C", "{2:0,4:1,6:2,7:3,9:4,10:5,12:6,14:7}"))
    def w2h(h): wq(h//2, WSLOT(h//2), f"w2_{h//2}", (0,1) if h % 2 == 0 else (2,3))
    for g in range(0, 16):
        WIN[0] = int(E("WIN1", "0"))
        tags = [f"p{g}"]
        if g in cons: tags.append(f"w2_{cons[g]}")
        a.vmwait(tags)
        if g == 1 and E("MIDSPIN"): tspin(a, E("MIDSPIN"), "m")
        stamp(a, 2*g+12)
        a("s_barrier")
        stamp(a, 2*g+13)
        for h in halves.get(g, []): w2h(h)
        pkg(a, g+2)
        if g in cons:
            i = cons[g]
            call_seg(a, i, i == 0, (WSLOT(i+1) if i < 7 else VSLOT(16)) - WSLOT(i))
            if i < 7: a("s_waitcnt lgkmcnt(0)")
        if g == 14:
            seg_flush(a, 7)
            q_finalize(a)
    WIN[0] = 0
    a("s_branch L_att_entry")

    a.label("L_grpA")
    a.vmq = []
    if not E("NOPF"):
        a(f"s_getpc_b64 {sr(S_SC,2)}")
        a.label("L_pc")
        a(f"s_sub_u32 s{S_SC}, s{S_SC}, L_pc-{name}")
        a(f"s_subb_u32 s{S_SC+1}, s{S_SC+1}, 0")
        a(f"s_lshr_b32 s{S_T0}, s2, 3")
        a(f"s_lshl_b32 s{S_T0}, s{S_T0}, 2")
        a(f"s_add_u32 s{S_T0}, s{S_T0}, s{S_WV}")
        a(f"s_lshl_b32 s{S_T0}, s{S_T0}, 2")
        a(f"v_and_b32 v{V_TMP}, 3, v{V_LANE}")
        a(f"v_add_lshl_u32 v{V_TMP}, v{V_TMP}, s{S_T0}, 7")
        a(f"v_min_u32 v{V_TMP}, L_code_end-{name}-4, v{V_TMP}")
        a(f"global_load_dword v{V_Q}, v{V_TMP}, {sr(S_SC,2)}")
    common2()
    setup_vtype_dma(a, V_DW, 10)
    setup_vtype_addr(a, W1S[0])
    for i in range(32): a(f"v_mov_b64 {vr(V_O+2*i,2)}, 0")
    token()
    a("s_waitcnt vmcnt(0)")
    proj1_inline(a)
    q_finalize(a)
    a.label("L_att_entry")
    attention(a)
    a(f"s_cmp_eq_u32 s{S_GRP}, 0")
    a("s_cbranch_scc0 L_B_fin")
    a.vmq = []
    a(f"s_add_u32 s{S_KOFF}, s{S_H2OFF}, {3*16384}")
    a(f"s_add_u32 s{S_VOFF}, s{S_H2OFF}, {2*16384}")
    def o_off(dst, d, second):
        a(f"s_add_u32 s{dst}, s{S_J}, {d}")
        a(f"s_and_b32 s{dst}, s{dst}, 3")
        a(f"s_lshl_b32 s{dst}, s{dst}, 15")
        a(f"s_add_u32 s{dst}, s{dst}, s{S_OSET}")
        if second: a(f"s_add_u32 s{dst}, s{dst}, {4*32768}")
    PUB = int(E("PUB", "29"))
    normalize_o(a)
    for i in range(32): a(f"v_mov_b64 {vr(V_O+2*i,2)}, 0")
    a(f"s_lshl_b32 s{S_T1}, s{S_SET}, 1")
    setup_vtype_addr(a, TS[0], xor_sgpr=S_T1)
    a(f"s_add_u32 s{S_T1}, s{S_J}, 1")
    a(f"v_add_u32 v{V_FL}, s{S_T1}, v{V_LANE}")
    a(f"v_and_b32 v{V_FL}, 3, v{V_FL}")
    a(f"v_lshlrev_b32 v{V_FL}, 5, v{V_FL}")
    a(f"s_and_b32 s{S_T1}, s2, 0xe7")
    a(f"s_lshl_b32 s{S_T1}, s{S_T1}, 2")
    a(f"s_add_u32 s{S_T1}, s{S_T1}, s{S_WV}")
    a(f"v_add_u32 v{V_FL}, s{S_T1}, v{V_FL}")
    a(f"v_mul_u32_u24 v{V_FL}, 384, v{V_FL}")
    a(f"v_add_u32 v{V_FL}, {FLAG_WS_OFF}, v{V_FL}")
    seg_at = {19: 0, 21: 1}
    for g in range(16, 32):
        WIN[0] = int(E("WIN2", "0")) if g <= 29 else 0
        tags = [f"p{g}"]
        if g in seg_at: tags.append(f"wo{seg_at[g]}")
        if g == PUB+1: tags.append("ost")
        a.vmwait(tags)
        if g == PUB+1: set_flag(a, 0)
        if g == 29 and E("LATESPIN"): tspin(a, E("LATESPIN"), "l")
        stamp(a, 2*(g-16)+10)
        a("s_barrier")
        stamp(a, 2*(g-16)+11)
        if g <= 27: wo_tile((g-16)//2, (0,1) if g % 2 == 0 else (2,3))
        if g + 2 <= 31: pkg(a, g+2)
        if g == 29: WIN[0] = 0
        if g == PUB: store_o(a)
        if g == 29: wo_tile(6)
        if g == 30:
            wo_tile(7); wo_tile(8)
            if not E("NOWPF"):
                a(f"v_lshrrev_b32 v{V_TMP}, 4, v{V_LANE}")
                a(f"v_and_b32 v{V_TMP+1}, 15, v{V_LANE}")
                a(f"v_lshlrev_b32 v{V_TMP+1}, 4, v{V_TMP+1}")
                a(f"v_lshl_add_u32 v{V_TMP}, v{V_TMP}, 10, v{V_TMP+1}")
                a(f"s_add_u32 s{S_T1}, s{S_J}, s{S_WV}")
                a(f"s_and_b32 s{S_T1}, s{S_T1}, 3")
                a(f"s_lshl_b32 s{S_T1}, s{S_T1}, 17")
                a(f"s_add_u32 s{S_T1}, s{S_T1}, s{S_WOB}")
                a(f"s_lshl_b32 s{S_T0}, s{S_B}, 14")
                a(f"s_add_u32 s{S_T1}, s{S_T1}, s{S_T0}")
                a(f"s_add_u32 s{S_T1}, s{S_T1}, {4*131072}")
                for r in range(4):
                    a.vm(f"buffer_load_dwordx4 {vr(XREG(8+r),4)}, v{V_TMP}, {sr(S_WO,4)}, s{S_T1} offen", "wpf")
                    if r < 3: a(f"s_add_u32 s{S_T1}, s{S_T1}, 4096")
        if g in seg_at:
            s_ = seg_at[g]
            call_seg(a, s_, s_ == 0, TS[s_+1] - TS[s_])
            a("s_waitcnt lgkmcnt(0)")
    if PUB == 31:
        a.vmwait("ost"); set_flag(a, 0)
    poll_spin(a, 0, "1", V_E)
    stamp(a, 44)
    for d in (1, 2, 3):
        o_off(S_T1, d, False)
        load_o(a, S_T1, 8*d, f"oa{d}")
    own_o_lds_addr(a, V_E+2)
    def seg(t, wait=None):
        if wait: a.vmwait(wait)
        call_seg(a, t % 8, False, (TS[t+1] - TS[t]) if t < 15 else 0)
    a.vmwait("oa1a")
    stamp(a, 45)
    seg(2); seg(3, "oa1b"); seg(4, "oa2a")
    a("s_waitcnt lgkmcnt(0)")
    stamp(a, 46)
    a("s_barrier")
    stamp(a, 47)
    poll_issue(a, 1, V_E, "pl2")
    for m in range(8): a(f"ds_read_b128 {vr(XREG(m),4)}, v{V_E+2} offset:{m*1024}")
    seg(5, "oa2b")
    a.vmall()
    a("s_mov_b64 exec, 7")
    a(f"v_cmp_ne_u64 vcc, {sr(S_TOK,2)}, {vr(V_E,2)}")
    a("s_mov_b64 exec, -1")
    a(f"s_mov_b32 s{S_RDY}, 0")
    a("s_cbranch_vccnz L_nrdy1")
    a(f"s_mov_b32 s{S_RDY}, 1")
    o_off(S_T1, 1, True); load_o(a, S_T1, 8, "ob1")
    a.label("L_nrdy1")
    seg(6)
    a(f"s_cmp_eq_u32 s{S_RDY}, 0")
    a("s_cbranch_scc1 L_nrdy2")
    o_off(S_T1, 2, True); load_o(a, S_T1, 16, "ob2")
    a.label("L_nrdy2")
    seg(7); seg(8)
    a("s_waitcnt lgkmcnt(0)")
    stamp(a, 48)
    a("s_barrier")
    stamp(a, 49)
    a(f"s_cmp_eq_u32 s{S_RDY}, 0")
    a("s_cbranch_scc0 L_rdy3")
    q = list(a.vmq)
    poll_spin(a, 1, "2", V_E)
    for d in (1, 2):
        o_off(S_T1, d, True); load_o(a, S_T1, 8*d, f"ob{d}")
    assert a.vmq == q, (a.vmq, q)
    a.label("L_rdy3")
    o_off(S_T1, 3, True); load_o(a, S_T1, 24, "ob3")
    stamp(a, 50)
    seg(9); seg(10, "ob1a"); seg(11, "ob1b"); seg(12, "ob2a")
    stamp(a, 51)
    a("s_barrier")
    seg(13, "ob2b"); seg(14, "ob3a"); seg(15, "ob3b")
    seg_flush(a, 7)
    stamp(a, 52)
    a(f"s_lshl_b32 s{S_T1}, s2, 2")
    a(f"s_add_u32 s{S_T1}, s{S_T1}, s{S_WV}")
    a(f"s_lshl_b32 s{S_T1}, s{S_T1}, 14")
    a(f"s_add_u32 s{S_T1}, s{S_T1}, {PART_WS_OFF}")
    a(f"v_add_u32 v{V_FL}, 1, v{V_LANE}")
    a(f"v_and_b32 v{V_FL}, 3, v{V_FL}")
    a(f"v_xor_b32 v{V_FL}, s2, v{V_FL}")
    a(f"v_lshlrev_b32 v{V_FL}, 2, v{V_FL}")
    a(f"v_add_u32 v{V_FL}, s{S_WV}, v{V_FL}")
    a(f"v_mul_u32_u24 v{V_FL}, 384, v{V_FL}")
    a(f"v_add_u32 v{V_FL}, {FLAG_WS_OFF}, v{V_FL}")
    PB = 128
    for beta in (1, 2, 3):
        a(f"s_add_u32 s{S_T1}, s{S_T1}, 4096")
        if PBF16:
            for i in range(8): a(f"v_cvt_pk_bf16_f32 v{PB+8*beta+i}, v{V_O+16*beta+2*i}, v{V_O+16*beta+2*i+1}")
            for i in range(2):
                a.vm(f"buffer_store_dwordx4 {vr(PB+8*beta+4*i,4)}, v{V_L16}, {sr(S_WS,4)}, s{S_T1} offen offset:{i*1024} sc1", "pst")
        else:
            for i in range(4):
                a.vm(f"buffer_store_dwordx4 {vr(V_O+16*beta+4*i,4)}, v{V_L16}, {sr(S_WS,4)}, s{S_T1} offen offset:{i*1024} sc1", "pst")
    t0, t1 = V_E+2, V_E+3
    row0(a, t0, t1)
    a(f"v_and_b32 v{t1}, 0x30, v{V_LANE}")
    a(f"v_lshl_add_u32 v{t0}, v{t0}, 11, v{t1}")
    a(f"s_lshl_b32 s{S_T2}, s{S_B}, 2")
    a(f"s_add_u32 s{S_T2}, s{S_T2}, s{S_WV}")
    a(f"s_lshl_b32 s{S_T2}, s{S_T2}, 16")
    a(f"s_lshl_b32 s{S_T0}, s{S_BR}, 10")
    a(f"s_add_u32 s{S_T2}, s{S_T2}, s{S_T0}")
    a(f"s_lshl_b32 s{S_T0}, s{S_J}, 8")
    a(f"s_add_u32 s{S_T2}, s{S_T2}, s{S_T0}")
    a(f"s_lshl_b32 s{S_T0}, s{S_SET}, 6")
    a(f"s_add_u32 s{S_T2}, s{S_T2}, s{S_T0}")
    a(f"s_add_u32 s{S_KD}, s{S_T2}, 8192")
    a.vmall()
    stamp(a, 53)
    set_flag(a, 2)
    poll_spin(a, 2, "3", V_E)
    stamp(a, 54)
    for beta in (1, 2, 3):
        a(f"s_xor_b32 s{S_T1}, s2, {beta}")
        a(f"s_lshl_b32 s{S_T1}, s{S_T1}, 2")
        a(f"s_add_u32 s{S_T1}, s{S_T1}, s{S_WV}")
        a(f"s_lshl_b32 s{S_T1}, s{S_T1}, 14")
        a(f"s_add_u32 s{S_T1}, s{S_T1}, {PART_WS_OFF + beta*4096}")
        if PBF16:
            for i in range(2):
                a.vm(f"buffer_load_dwordx4 {vr(PB+8*beta+4*i,4)}, v{V_L16}, {sr(S_WS,4)}, s{S_T1} offen offset:{i*1024} sc1", f"pl{beta}")
        else:
            for i in range(4):
                a.vm(f"buffer_load_dwordx4 {vr(V_O+16*beta+4*i,4)}, v{V_L16}, {sr(S_WS,4)}, s{S_T1} offen offset:{i*1024} sc1", f"pl{beta}")
    for beta in (1, 2, 3):
        a.vmwait(f"pl{beta}")
        if PBF16:
            for i in range(8):
                a(f"v_lshlrev_b32 v{V_TMP}, 16, v{PB+8*beta+i}")
                a(f"v_and_b32 v{V_TMP+1}, 0xffff0000, v{PB+8*beta+i}")
                a(f"v_add_f32 v{V_O+2*i}, v{V_O+2*i}, v{V_TMP}")
                a(f"v_add_f32 v{V_O+2*i+1}, v{V_O+2*i+1}, v{V_TMP+1}")
        else:
            for i in range(16): a(f"v_add_f32 v{V_O+i}, v{V_O+i}, v{V_O+16*beta+i}")
    for qh in range(2):
        for h in range(2):
            for i in range(2): a(f"v_cvt_pk_bf16_f32 v{V_Q+4*qh+2*h+i}, v{OREG(h,qh)+2*i}, v{OREG(h,qh)+2*i+1}")
    a("s_nop 1")
    for op in ("v_permlane32_swap_b32", "v_permlane16_swap_b32"):
        for qh in range(2):
            for i in range(2): a(f"{op} v{V_Q+4*qh+i}, v{V_Q+4*qh+2+i}")
    a(f"buffer_store_dwordx4 {vr(V_Q,4)}, v{t0}, {sr(S_OUT,4)}, s{S_T2} offen")
    a(f"buffer_store_dwordx4 {vr(V_Q+4,4)}, v{t0}, {sr(S_OUT,4)}, s{S_KD} offen")
    a(f"s_or_b32 s{S_T0}, s{S_SET}, s{S_J}")
    a(f"s_or_b32 s{S_T0}, s{S_T0}, s{S_WV}")
    a("s_cbranch_scc1 L_noep")
    a(f"v_mov_b32 v{V_TMP}, s{S_TOK}")
    a(f"v_mov_b32 v{V_TMP+1}, s{S_TOK+1}")
    a("s_mov_b64 exec, 1")
    a(f"buffer_store_dwordx2 {vr(V_TMP,2)}, off, {sr(S_WS,4)}, s{S_T3} sc1")
    a("s_mov_b64 exec, -1")
    a.label("L_noep")
    if E("ENDSPIN"): tspin(a, E("ENDSPIN"), "e")
    if STAMPS: a("s_waitcnt vmcnt(0)")
    stamp(a, 55)
    stamp_flush(a)
    a("s_endpgm")

    a.label("L_B_fin")
    a.vmq = []
    stamp(a, 58)
    normalize_o(a)
    store_o(a)
    own_o_lds_addr(a, V_E)
    for m in range(8): a(f"ds_write_b128 v{V_E}, {vr(XREG(m),4)} offset:{m*1024}")
    setup_vtype_dma(a, V_DW, 10)
    stamp(a, 59)
    a.vmall()
    set_flag(a, 1)
    a("s_waitcnt lgkmcnt(0)")
    stamp(a, 60)
    a("s_barrier")
    for t in (9, 10, 11, 12): wo_tile(t)
    a.vmall()
    stamp(a, 61)
    a("s_barrier")
    for t in (13, 14, 15): wo_tile(t)
    a.vmall()
    stamp(a, 62)
    a("s_barrier")
    stamp_flush(a)
    a.label("L_end")
    a("s_endpgm")
    att_stubs(a)
    rare(a, 0); rare(a, 1)
    proj_segs(a)
    a.label("L_code_end")

def main(fn):
    a = Asm()
    name = NAME + "_kernel"
    a.raw(f"; @launch grid=(256,1,1) block=(512,1,1) lds=163840")
    a.raw('.amdgcn_target "amdgcn-amd-amdhsa--gfx950"')
    a.raw(".text")
    kernel(a, name)
    a.raw('.section .rodata,"a"')
    a.raw(".p2align 6")
    a.raw(f".amdhsa_kernel {name}")
    a.raw(f"  .amdhsa_next_free_vgpr 256"); a.raw(f"  .amdhsa_next_free_sgpr 96"); a.raw(f"  .amdhsa_accum_offset 256")
    a.raw("  .amdhsa_group_segment_fixed_size 0"); a.raw("  .amdhsa_kernarg_size 104"); a.raw("  .amdhsa_user_sgpr_count 2")
    a.raw("  .amdhsa_user_sgpr_kernarg_segment_ptr 1"); a.raw("  .amdhsa_system_sgpr_workgroup_id_x 1"); a.raw(".end_amdhsa_kernel")
    open(fn, "w").write(a.text())

if __name__ == "__main__":
    if len(sys.argv) > 2 and sys.argv[2] == "stamps": STAMPS = True
    main(sys.argv[1] if len(sys.argv) > 1 else "k3.s")
```

```python
import sys, math, os, struct
NAME = "concat_heads__mha_block_cached__gqa_block_cached__near_ridge"
E = os.environ.get

class Asm:
    def __init__(s):
        s.L = []; s.vmq = []; s.lq = []; s.stubs = []
    def __call__(s, t): s.L.append("  " + " ".join(t.split()))
    def label(s, t): s.L.append(t + ":")
    def raw(s, t): s.L.append(t)
    def vm(s, t, tag):
        s(t); s.vmq.append(tag)
    def vmwait(s, tags):
        if not isinstance(tags, (list, tuple, set)): tags = [tags]
        last = -1
        for i, t in enumerate(s.vmq):
            if t in tags: last = i
        if last < 0: return
        n = len(s.vmq) - 1 - last
        assert n <= 63, n
        s(f"s_waitcnt vmcnt({n})")
        s.vmq = s.vmq[last+1:]
    def vmall(s):
        s("s_waitcnt vmcnt(0)"); s.vmq = []
    def ds(s, t, tag):
        s(t); s.lq.append(tag)
        assert len(s.lq) <= 15, s.lq
    def dswait(s, tags, force=False):
        if not isinstance(tags, (list, tuple, set)): tags = [tags]
        last = -1
        for i, t in enumerate(s.lq):
            if t in tags: last = i
        if last < 0: return
        s(f"s_waitcnt lgkmcnt({len(s.lq) - 1 - last})")
        s.lq = s.lq[last+1:]
    def dsall(s):
        s("s_waitcnt lgkmcnt(0)"); s.lq = []
    def text(s): return "\n".join(s.L) + "\n"

def vr(b, n=1): return f"v{b}" if n == 1 else f"v[{b}:{b+n-1}]"
def sr(b, n=1): return f"s{b}" if n == 1 else f"s[{b}:{b+n-1}]"
def f2u(f): return struct.unpack("<I", struct.pack("<f", f))[0]
def u32(x): return f"{x & 0xffffffff:#x}"

V_LANE = 1
V_KA = 2
V_VA = 6
V_DK = 14
V_DV = 16
V_DW = 18
V_ONE = 20
V_FL = 20
V_L  = 22
V_E  = 24
V_TMP = 28
V_L16 = 30
V_ST = 31
V_Q  = 32
V_O  = 64
V_NM = 128
V_LA = 136
V_S  = [144, 160]
V_P  = [176, 184]
V_KF = 192
V_VF = 224
def XREG(s): return (128 + 4*s) if s < 24 else (32 + 4*(s-24))
def OREG(dt, qh): return V_O + 8*dt + 4*qh

S_K, S_V, S_X, S_WQ, S_WS, S_WO, S_OUT = 4, 8, 12, 16, 20, 24, 28
S_RET = 32
S_WV = 34; S_GRP = 35
S_DBG = 36
S_BR = 52; S_B = 53; S_J = 54; S_SET = 55
S_KOFF = 56; S_VOFF = 57; S_WOFF = 58; S_XOFF = 59; S_LDSW = 60
S_H2OFF = 61; S_CNT = 62; S_KD = 63; S_VD = 64; S_KS = 65; S_VS = 66
S_THR = 67; S_T0 = 68; S_T1 = 69; S_OOFF = 70; S_T2 = 71
S_C16K = 40; S_ROT = 41; S_WBASE = 42; S_XBASE = 43; S_HALF = 44; S_OSET = 45; S_FLG = 46; S_T3 = 47; S_WOB = 48
S_STAMP = 80
S_EP = 84
S_TOK = 86
S_RDY = 88
S_SC = 90
S_MSK = 49

KSLOT = lambda n: (n % 3) * 16384 if n < 16 else 16384 + ((n-16) % 3) * 16384
VSLOT = lambda n: 65536 + KSLOT(n)
WSLOT = lambda n: [49152, 114688, 131072, 147456][n % 4]
WSLOT2 = lambda n: [131072, 147456, 0, 65536][n % 4]
S_DL = 72
PLAG = 6
QSCALE = (1.0/math.sqrt(128.0)) * math.log2(math.e)

KV_FLAGS = E("KVF", "nt")
WQ_FLAGS = E("WQF", "")
WO_FLAGS = E("WOF", "")
X_FLAGS = E("XF", "")
FSF = E("FSF", "sc1")
SC1 = "sc1"
OSF = E("OSF", "sc1")
OLF = E("OLF", "sc1")
PBF16 = E("PBF16", "1") == "1"
O_WS_OFF = 0
PART_WS_OFF = 16*1024*1024
FLAG_WS_OFF = 32*1024*1024
EPOCH_WS_OFF = 33*1024*1024
STAMP_WS_OFF = 64*1024*1024
STAMPS = False
SPIN_CAP = 0x40000

def stamp(a, idx):
    if not STAMPS: return
    if E("STONLY") and idx not in eval(E("STONLY")): return
    a(f"s_memrealtime s[{S_STAMP}:{S_STAMP+1}]")
    if idx > 0: a(f"s_memtime s[{S_STAMP+2}:{S_STAMP+3}]")
    a("s_waitcnt lgkmcnt(0)")
    a(f"v_writelane_b32 v{V_ST}, s{S_STAMP}, {idx}")
    if idx > 0: a(f"v_writelane_b32 v0, s{S_STAMP+2}, {idx}")
def stamp_flush(a):
    if not STAMPS: return
    a(f"s_lshl_b32 s{S_STAMP}, s2, 3")
    a(f"s_lshl_b32 s{S_STAMP+1}, s{S_GRP}, 2")
    a(f"s_add_u32 s{S_STAMP}, s{S_STAMP}, s{S_STAMP+1}")
    a(f"s_add_u32 s{S_STAMP}, s{S_STAMP}, s{S_WV}")
    a(f"s_lshl_b32 s{S_STAMP}, s{S_STAMP}, 8")
    a(f"s_add_u32 s{S_STAMP}, s{S_STAMP}, {STAMP_WS_OFF}")
    a(f"v_lshlrev_b32 v{V_TMP}, 2, v{V_LANE}")
    a(f"buffer_store_dword v{V_ST}, v{V_TMP}, {sr(S_WS,4)}, s{S_STAMP} offen")
    a(f"s_add_u32 s{S_STAMP}, s{S_STAMP}, {256*8*256}")
    a(f"buffer_store_dword v0, v{V_TMP}, {sr(S_WS,4)}, s{S_STAMP} offen")

def setup_srds(a):
    a("s_load_dwordx16 s[36:51], s[0:1], 0")
    a("s_load_dwordx8 s[72:79], s[0:1], 64")
    a("s_load_dwordx2 s[20:21], s[0:1], 96")
    a("s_and_b32 s3, s2, 7")
    a(f"s_and_b32 s{S_SET}, s3, 3")
    if E("MAP", "1") == "1":
        a(f"s_lshr_b32 s{S_BR}, s3, 2")
        a(f"s_lshr_b32 s{S_B}, s2, 5")
    elif E("MAP") == "2":
        a(f"s_bfe_u32 s{S_BR}, s2, 0x10005")
        a(f"s_lshr_b32 s{S_B}, s2, 6")
        a(f"s_and_b32 s3, s3, 4")
        a(f"s_or_b32 s{S_B}, s{S_B}, s3")
    else:
        a(f"s_bfe_u32 s{S_BR}, s2, 0x10005")
        a(f"s_lshr_b32 s{S_B}, s2, 6")
        a(f"s_lshl_b32 s{S_B}, s{S_B}, 1")
        a(f"s_lshr_b32 s3, s3, 2")
        a(f"s_or_b32 s{S_B}, s{S_B}, s3")
    a(f"s_lshr_b32 s{S_J}, s2, 3")
    a(f"s_and_b32 s{S_J}, s{S_J}, 3")
    a(f"v_lshrrev_b32 v2, 6, v0")
    a(f"v_and_b32 v{V_LANE}, 63, v0")
    a(f"v_readfirstlane_b32 s{S_WV}, v2")
    for b, n in ((S_K, 1<<26), (S_V, 1<<26), (S_X, 1<<20), (S_WQ, 1<<22), (S_WS, 287309824), (S_WO, 1<<22), (S_OUT, 1<<21)):
        a(f"s_mov_b32 s{b+2}, {n}")
        a(f"s_mov_b32 s{b+3}, 0x20000")
    a(f"s_lshr_b32 s{S_GRP}, s{S_WV}, 2")
    a(f"s_and_b32 s{S_WV}, s{S_WV}, 3")
    a(f"s_lshl_b32 s{S_LDSW}, s{S_WV}, 12")

def finish_srds(a):
    a("s_waitcnt lgkmcnt(0)")
    a(f"s_cmp_eq_u32 s{S_BR}, 0")
    for b, sa, sb in ((S_X, 36, 46), (S_K, 38, 48), (S_V, 40, 50), (S_WQ, 42, 72), (S_WO, 44, 74)):
        a(f"s_cselect_b32 s{b}, s{sa}, s{sb}")
        a(f"s_cselect_b32 s{b+1}, s{sa+1}, s{sb+1}")
    a(f"s_mov_b32 s{S_OUT}, s76")
    a(f"s_mov_b32 s{S_OUT+1}, s77")
    a(f"s_mov_b32 s{S_DBG}, s78")
    a(f"s_mov_b32 s{S_DBG+1}, s79")
    a(f"s_mov_b32 s{S_DBG+2}, 256")
    a(f"s_mov_b32 s{S_DBG+3}, 0x20000")

def setup_vtype_addr(a, base_imm, xor_sgpr=None):
    t0, t1, t2 = V_TMP, V_TMP+1, V_E+3
    a(f"v_bfe_u32 v{t0}, v{V_LANE}, 2, 3")
    a(f"v_bfe_u32 v{t2}, v{V_LANE}, 2, 2")
    a(f"v_lshrrev_b32 v{t1}, 4, v{V_LANE}")
    a(f"v_lshl_add_u32 v{t1}, v{t1}, 3, v{t2}")
    a(f"v_lshlrev_b32 v{t1}, 8, v{t1}")
    a(f"v_and_b32 v{t2}, 3, v{V_LANE}")
    a(f"v_lshl_add_u32 v{t1}, v{t2}, 3, v{t1}")
    if base_imm: a(f"v_add_u32 v{t1}, {base_imm}, v{t1}")
    if xor_sgpr is not None: a(f"v_xor_b32 v{t0}, s{xor_sgpr}, v{t0}")
    for dt in range(8):
        a(f"v_xor_b32 v{t2}, {dt}, v{t0}")
        a(f"v_lshl_add_u32 v{V_VA+dt}, v{t2}, 5, v{t1}")

def setup_vtype_dma(a, dst, log2stride):
    t0, t1, t2 = V_TMP, V_TMP+1, V_E+3
    a(f"v_lshrrev_b32 v{t0}, 4, v{V_LANE}")
    a(f"v_and_b32 v{t1}, 15, v{V_LANE}")
    a(f"v_lshlrev_b32 v{t2}, 1, v{t0}")
    a(f"v_xor_b32 v{t1}, v{t1}, v{t2}")
    a(f"v_lshlrev_b32 v{t1}, 4, v{t1}")
    a(f"s_lshl_b32 s{S_T0}, s{S_WV}, 4")
    a(f"v_add_u32 v{t0}, s{S_T0}, v{t0}")
    a(f"v_lshl_add_u32 v{dst}, v{t0}, {log2stride}, v{t1}")
    a(f"v_xor_b32 v{dst+1}, 0x80, v{dst}")

def setup_ktype_dma(a, dst, log2stride):
    t0, t1, t2 = V_TMP, V_TMP+1, V_E+3
    a(f"v_lshrrev_b32 v{t0}, 4, v{V_LANE}")
    a(f"v_and_b32 v{t1}, 15, v{V_LANE}")
    a(f"v_xor_b32 v{t1}, v{t1}, v{t0}")
    a(f"s_and_b32 s{S_T0}, s{S_WV}, 1")
    a(f"s_lshl_b32 s{S_T0}, s{S_T0}, 3")
    a(f"v_xor_b32 v{t1}, s{S_T0}, v{t1}")
    a(f"v_lshlrev_b32 v{t1}, 4, v{t1}")
    a(f"s_lshl_b32 s{S_T0}, s{S_WV}, 4")
    a(f"v_add_u32 v{t0}, s{S_T0}, v{t0}")
    a(f"v_lshl_add_u32 v{dst}, v{t0}, {log2stride}, v{t1}")
    a(f"v_xor_b32 v{dst+1}, 0x40, v{dst}")

def row0(a, dst, tmp):
    a(f"v_bfe_u32 v{tmp}, v{V_LANE}, 2, 2")
    a(f"v_and_b32 v{dst}, 3, v{V_LANE}")
    a(f"v_lshl_or_b32 v{dst}, v{tmp}, 3, v{dst}")

def k_addr_setup(a):
    t0, t1, t2 = V_TMP, V_TMP+1, V_E+3
    row0(a, t0, t1)
    a(f"v_lshlrev_b32 v{t0}, 8, v{t0}")
    a(f"v_and_b32 v{t1}, 15, v{V_LANE}")
    a(f"v_lshrrev_b32 v{t2}, 4, v{V_LANE}")
    a(f"v_xor_b32 v{t1}, v{t1}, v{t2}")
    for ks in range(4):
        a(f"v_xor_b32 v{t2}, {4*ks}, v{t1}")
        a(f"v_lshl_add_u32 v{V_KA+ks}, v{t2}, 4, v{t0}")

WIN = [0]
def window(a):
    w = WIN[0]
    if w and len(a.vmq) >= w:
        a(f"s_waitcnt vmcnt({w-1})")
        a.vmq = a.vmq[len(a.vmq)-(w-1):]
def dma(a, srd, voff, soff, ldsbase, gstep, flags, tag, js=(0,1,2,3), setm0=True):
    if setm0: a(f"s_add_u32 m0, s{S_LDSW}, {ldsbase}")
    if gstep == 1024:
        if setm0: a("s_nop 0")
        for j in js:
            window(a)
            a.vm(f"buffer_load_dwordx4 v{voff+(j>>1)}, {sr(srd,4)}, s{soff} offen offset:{j*1024} {flags} lds", tag)
    else:
        for j in js:
            if j == 0: a(f"s_mov_b32 s{S_T0}, s{soff}")
            else: a(f"s_add_u32 s{S_T0}, s{soff}, {j*(gstep-1024)}")
            window(a)
            a.vm(f"buffer_load_dwordx4 v{voff+(j>>1)}, {sr(srd,4)}, s{S_T0} offen offset:{j*1024} {flags} lds", tag)

def mfma(d, x, y, c): return f"v_mfma_f32_16x16x32_bf16 {vr(d,4)}, {vr(x,4)}, {vr(y,4)}, {c if isinstance(c,str) else vr(c,4)}"

def pj_mm(seg, idx):
    if idx < 0: seg, idx = (seg-1) % 8, idx + 16
    ks, dt = idx >> 3, idx & 7
    return [mfma(OREG(dt,qh), V_VF+4*dt, XREG(4*seg+2*ks+qh), OREG(dt,qh)) for qh in range(2)]

class Stream:
    L = 5
    def __init__(s, a, slots, late):
        s.a, s.slots, s.late, s.n, s.nt = a, slots, late, 0, len(slots)-1
        s.seg = [t % 8 for t in range(s.nt)]
        s.skip = 0
        s.xneed = {}
        s.vneed = {}
    def reads(s, n):
        t, idx = n >> 4, n & 15
        if t >= s.nt: return []
        fr = [idx]
        if t in s.late: fr = {0: [], 1: [], 2: [0, 1], 3: [2, 3]}.get(idx, [idx])
        r = []
        for f in fr:
            ks, dt = f >> 3, f & 7
            r += [(f"ds_read_b64_tr_b16 {vr(V_VF+4*dt+2*u,2)}, v{V_VA+dt} offset:{ks*8192+u*1024}", f"f{16*t+f}") for u in range(2)]
        return r
    def done(s): return s.n >= 16*s.nt + s.L
    def unit(s, mid=None, xds=(), valu=()):
        a, n, L = s.a, s.n, s.L
        t, idx = n >> 4, n & 15
        f = n - L
        m = pj_mm(s.seg[f >> 4], f & 15) if f >= s.skip else [None, None]
        r = list(xds) + s.reads(n)
        v = list(valu)
        if t < s.nt:
            if idx == 8: a(f"s_mov_b32 s{S_DL}, {u32(s.slots[t+1]-s.slots[t])}")
            if idx >= 9: v.append(f"v_add_u32 v{V_VA+idx-9}, s{S_DL}, v{V_VA+idx-9}")
        if f in s.vneed: a.vmwait(s.vneed[f])
        if m[0]: a(m[0])
        if mid: mid()
        h = (len(r)+1)//2
        for x in r[:h]: a.ds(*x)
        if v and h < 2: a(v.pop(0))
        if m[1]: a(m[1])
        if 0 <= f+1 < 16*s.nt: a.dswait([f"f{f+1}"] + s.xneed.get(f+1, []))
        for x in r[h:]: a.ds(*x)
        for y in v: a(y)
        if t < s.nt and idx == 15: a(f"v_add_u32 v{V_VA+7}, s{S_DL}, v{V_VA+7}")
        s.n += 1
    def reads_done(s, t):
        return s.n > 16*t + 15 and not any(x.startswith("f") and int(x[1:]) >> 4 == t for x in s.a.lq)

def spread(ops, k, span):
    lo, hi = (len(ops)*k + span-1)//span, (len(ops)*(k+1) + span-1)//span
    return ops[min(lo,len(ops)):min(hi,len(ops))]

def acc_to_frags(a, dstf, scale):
    for f in range(8):
        ks, qh = f >> 1, f & 1
        for h in range(2):
            b = OREG(2*ks+h, qh)
            if scale is None:
                if E("PKL"):
                    for i in range(2): a(f"v_pk_mul_f32 {vr(b+2*i,2)}, {vr(b+2*i,2)}, {sr(S_SC,2)}")
                else:
                    for i in range(4): a(f"v_mul_f32 v{b+i}, s{S_SC}, v{b+i}")
            else:
                if E("PKL"):
                    for i in range(2): a(f"v_pk_mul_f32 {vr(b+2*i,2)}, {vr(b+2*i,2)}, {vr(V_E+2*qh,2)}")
                else:
                    for i in range(4): a(f"v_mul_f32 v{b+i}, v{V_E+2*qh}, v{b+i}")
            for i in range(2): a(f"v_cvt_pk_bf16_f32 v{dstf(f)+2*h+i}, v{b+2*i}, v{b+2*i+1}")
    for op in ("v_permlane32_swap_b32", "v_permlane16_swap_b32"):
        for f in range(8):
            for i in range(2): a(f"{op} v{dstf(f)+i}, v{dstf(f)+2+i}")

def xreduce(a, op, d0, d1, t0, t1):
    for sw in ("v_permlane32_swap_b32", "v_permlane16_swap_b32"):
        a(f"v_mov_b32 v{t0}, v{d0}")
        a(f"v_mov_b32 v{t1}, v{d1}")
        a("s_nop 1")
        a(f"{sw} v{d0}, v{t0}")
        a(f"{sw} v{d1}, v{t1}")
        a(f"{op} v{d0}, v{d0}, v{t0}")
        a(f"{op} v{d1}, v{d1}, v{t1}")

def rowmax(a, S, d, t):
    for qh in range(2):
        b0, b1 = S+4*qh, S+8+4*qh
        a(f"v_max3_f32 v{d+qh}, v{b0}, v{b0+1}, v{b0+2}")
        a(f"v_max3_f32 v{d+qh}, v{d+qh}, v{b0+3}, v{b1}")
        a(f"v_max3_f32 v{d+qh}, v{d+qh}, v{b1+1}, v{b1+2}")
        a(f"v_max_f32 v{d+qh}, v{d+qh}, v{b1+3}")
    xreduce(a, "v_max_f32", d, d+1, t, t+1)

QH = lambda i: (i >> 2) & 1
def pidx(j): return 4*QH(j) + 2*(j >> 3) + ((j & 3) >> 1)

def rare(a, par):
    Sc, Sn, Pc = V_S[par], V_S[1-par], V_P[par]
    d, t = V_E, V_E+2
    a.label(f"L_rare{par}")
    a("s_nop 15")
    rowmax(a, Sc, d, t)
    for qh in range(2): a(f"v_add_f32 v{d+qh}, s{S_THR}, v{d+qh}")
    for qh in range(2): a(f"v_max_f32 v{d+qh}, 0, v{d+qh}")
    for qh in range(2): a(f"v_exp_f32 v{t+qh}, -v{d+qh}")
    for i in range(8): a(f"v_sub_f32 v{V_NM+i}, v{V_NM+i}, v{d+QH(i)}")
    for i in range(16): a(f"v_sub_f32 v{Sc+i}, v{Sc+i}, v{d+QH(i)}")
    for i in range(16): a(f"v_sub_f32 v{Sn+i}, v{Sn+i}, v{d+QH(i)}")
    for i in range(64): a(f"v_mul_f32 v{V_O+i}, v{V_O+i}, v{t+QH(i)}")
    for i in range(8): a(f"v_mul_f32 v{V_LA+i}, v{V_LA+i}, v{t+QH(i)}")
    for i in range(16): a(f"v_exp_f32 v{Sc+i}, v{Sc+i}")
    a("s_nop 0")
    for j in range(1, 16, 2): a(f"v_cvt_pk_bf16_f32 v{Pc+pidx(j)}, v{Sc+j-1}, v{Sc+j}")
    a("s_nop 1")
    a(f"s_setpc_b64 {sr(S_RET,2)}")

def att_pairs(a, par, i0, i1, qk, pv, sm, koff, voff, uid, bar=None):
    Sc, Sn, Pc, Pp = V_S[par], V_S[1-par], V_P[par], V_P[1-par]
    T = V_TMP
    W = [Pc+pidx(2*n+1) for n in range(8)]
    for i in range(i0, i1):
        kt, ks = i >> 2, i & 3
        f = (i + 4) % 8
        mq = [mfma(Sn+8*kt+4*qh, V_KF+4*i, V_Q+4*(2*ks+qh), (V_NM+4*qh) if ks == 0 else Sn+8*kt+4*qh) for qh in range(2)] if qk else [None, None]
        mp = [mfma(OREG(i,qh), V_VF+4*i, Pp+4*qh, OREG(i,qh)) for qh in range(2)] if pv else [None, None]
        ml = [mfma(V_LA+4*qh, V_ONE, Pp+4*qh, V_LA+4*qh) for qh in range(2)] if pv else [None, None]
        ex = [f"v_exp_f32 v{V_E+n}, v{Sc+2*i+n}" for n in range(2)] if sm else [None, None]
        cv = f"v_cvt_pk_bf16_f32 v{W[i]}, v{V_E}, v{V_E+1}" if sm else None
        def e(x):
            if x: a(x)
        def vread():
            o = voff(i)
            if o is None: return
            a.ds(f"ds_read_b64_tr_b16 {vr(V_VF+4*f,2)}, v{V_VA+f} offset:{o}", f"v{f}")
            a.ds(f"ds_read_b64_tr_b16 {vr(V_VF+4*f+2,2)}, v{V_VA+f} offset:{o+1024}", f"v{f}")
        def kread():
            o = koff(i)
            if o is None: return
            a.ds(f"ds_read_b128 {vr(V_KF+4*f,4)}, v{V_KA+(f&3)} offset:{o+(f>>2)*1024}", f"k{f}")
        nxt = [f"k{(i+1)%8}", f"v{(i+1)%8}"]
        if i < 7:
            e(mq[0]); e(ex[0]); e(mq[1])
            if bar and i == i0: bar()
            vread()
            e(mp[0]); a.dswait(nxt); e(ex[1]); e(mp[1]); kread()
            if sm and not pv and koff(i) is None: a("s_nop 0")
            e(cv)
            if i == 5:
                e(ml[1])
                if sm:
                    a(f"v_or3_b32 v{T}, v{W[0]}, v{W[1]}, v{W[2]}")
                    a(f"v_or3_b32 v{T}, v{T}, v{W[3]}, v{W[4]}")
        else:
            e(mq[0]); e(ex[0]); e(mq[1]); a.dswait(nxt); e(ex[1]); e(mp[0]); kread()
            if sm: a(f"v_or3_b32 v{T}, v{T}, v{W[5]}, v{W[6]}")
            e(mp[1]); e(cv)
            if sm:
                a(f"v_bitop3_b32 v{T}, v{T}, v{W[7]}, s{S_MSK} bitop3:0xa8")
                a(f"v_cmp_ne_u32 vcc, 0, v{T}")
            e(ml[0]); vread()
            if sm:
                a(f"s_cbranch_vccnz L_st{uid}")
                a.label(f"L_ok{uid}")
                a.stubs.append((uid, par))

def att_stubs(a):
    for uid, par in a.stubs:
        a.label(f"L_st{uid}")
        a(f"s_call_b64 {sr(S_RET,2)}, L_rare{par}")
        a(f"s_branch L_ok{uid}")

def attention(a):
    S0 = V_S[0]
    a.lq = []
    for u in range(8): a.ds(f"ds_read_b128 {vr(V_KF+4*u,4)}, v{V_KA+(u&3)} offset:{(u>>2)*1024}", f"k{u}")
    for i in range(32): a(f"v_mov_b64 {vr(V_O+2*i,2)}, 0")
    for i in range(4): a(f"v_mov_b64 {vr(V_LA+2*i,2)}, 0")
    for i in range(4): a(f"v_mov_b64 {vr(V_P[1]+2*i,2)}, 0")
    for i in range(8): a(f"v_mov_b64 {vr(V_VF+16+2*i,2)}, 0")
    for i in range(4): a(f"v_mov_b32 v{V_ONE+i}, 0x3f803f80")
    for u in range(8):
        kt, ks = u >> 2, u & 3
        if u % 4 == 0: a.dswait(f"k{u+3}")
        for qh in range(2): a(mfma(S0+8*kt+4*qh, V_KF+4*u, V_Q+4*(2*ks+qh), "0" if ks == 0 else S0+8*kt+4*qh))
    for u in range(4): a.ds(f"ds_read_b128 {vr(V_KF+4*u,4)}, v{V_KA+u} offset:8192", f"k{u}")
    a(f"s_mov_b32 s{S_CNT}, 0")
    a("s_nop 3")
    rowmax(a, S0, V_E, V_E+2)
    for qh in range(2): a(f"v_add_f32 v{V_E+qh}, s{S_THR}, v{V_E+qh}")
    for i in range(8): a(f"v_sub_f32 v{V_NM+i}, 0, v{V_E+QH(i)}")
    for i in range(16): a(f"v_sub_f32 v{S0+i}, v{S0+i}, v{V_E+QH(i)}")
    a.dswait("k0")
    att_pairs(a, 0, 0, 4, True, False, True, lambda i: 8192, lambda i: None, "p")
    lq_entry = list(a.lq)
    a.raw(".p2align 3")
    a.label("L_att_loop")
    for p in range(3):
        ks, vs = ((p+1) % 3)*16384, p*16384
        def bar(p=p):
            a.dsall()
            if p == 0: a("s_waitcnt vmcnt(8)")
            if p == 1: a("s_waitcnt vmcnt(0)")
            a("s_barrier")
        att_pairs(a, 0, 4, 8, True, True, True, lambda i: ks, lambda i: vs, f"a{p}", bar)
        att_pairs(a, 1, 0, 8, True, True, True, lambda i: ks + (i >> 2)*8192, lambda i: vs + (i >> 2)*8192, f"b{p}")
        att_pairs(a, 0, 0, 4, True, True, True, lambda i: ks + 8192, lambda i: vs + 8192, f"c{p}")
    a(f"s_add_u32 s{S_CNT}, s{S_CNT}, 1")
    a(f"s_cmp_lt_u32 s{S_CNT}, 5")
    a("s_cbranch_scc1 L_att_loop")
    def bar():
        a.dsall(); a("s_barrier")
    att_pairs(a, 0, 4, 8, True, True, True, lambda i: None, lambda i: 0, "e0", bar)
    att_pairs(a, 1, 0, 8, False, True, True, lambda i: None, lambda i: (i >> 2)*8192, "e1")
    att_pairs(a, 0, 0, 8, False, True, False, lambda i: None, lambda i: 8192 if i < 4 else None, "e2")
    assert a.lq == [], a.lq

def normalize_o(a):
    a("s_nop 7")
    for i in range(4): a(f"v_rcp_f32 v{V_E+i}, v{V_LA+2*i}")
    a("s_nop 0")
    acc_to_frags(a, XREG, "l")

def store_o(a, ms=range(8)):
    for m in ms:
        if m == 4: a(f"s_add_u32 s{S_OOFF}, s{S_OOFF}, 4096")
        so = S_OOFF
        a.vm(f"buffer_store_dwordx4 {vr(XREG(m),4)}, v{V_L16}, {sr(S_WS,4)}, s{so} offen offset:{(m%4)*1024} {OSF}", "ost")

def load_o(a, head_sgpr_off, first_frag, tag):
    a(f"s_add_u32 s{S_T0}, s{head_sgpr_off}, 4096")
    for m in range(8):
        so = head_sgpr_off if m < 4 else S_T0
        a.vm(f"buffer_load_dwordx4 {vr(XREG(first_frag+m),4)}, v{V_L16}, {sr(S_WS,4)}, s{so} offen offset:{(m%4)*1024} {OLF}", tag + ("a" if m < 4 else "b"))

def set_flag(a, kind, tag="flag"):
    a(f"v_mov_b32 v{V_TMP}, s{S_TOK}")
    a(f"v_mov_b32 v{V_TMP+1}, s{S_TOK+1}")
    a("s_mov_b64 exec, 1")
    a.vm(f"buffer_store_dwordx2 {vr(V_TMP,2)}, off, {sr(S_WS,4)}, s{S_FLG} offset:{kind*128} {FSF if kind < 2 else SC1}", tag)
    a("s_mov_b64 exec, -1")

def poll_issue(a, kind, dst, tag):
    a("s_mov_b64 exec, 7")
    a.vm(f"buffer_load_dwordx2 {vr(dst,2)}, v{V_FL}, {sr(S_WS,4)}, 0 offen offset:{kind*128} sc1", tag)
    a("s_mov_b64 exec, -1")

def poll_spin(a, kind, uid, dst, have_first=False):
    a(f"s_mov_b32 s{S_CNT}, {SPIN_CAP}")
    a("s_mov_b64 exec, 7")
    a(f"s_branch L_poll{'c' if have_first else 'f'}{uid}")
    a.label(f"L_poll{uid}")
    a(f"s_sub_u32 s{S_CNT}, s{S_CNT}, 1")
    a(f"s_cbranch_scc1 L_pollx{uid}")
    if int(E("SLP", "2")): a(f"s_sleep {E('SLP','2')}")
    a.label(f"L_pollf{uid}")
    a(f"buffer_load_dwordx2 {vr(dst,2)}, v{V_FL}, {sr(S_WS,4)}, 0 offen offset:{kind*128} sc1")
    a("s_waitcnt vmcnt(0)")
    a.label(f"L_pollc{uid}")
    a(f"v_cmp_ne_u64 vcc, {sr(S_TOK,2)}, {vr(dst,2)}")
    a(f"s_cbranch_vccnz L_poll{uid}")
    a.label(f"L_pollx{uid}")
    a("s_mov_b64 exec, -1")
    if not have_first: a.vmq = []

def pkg(a, g):
    kn, vn = g+1, g
    if kn <= 31:
        if kn == 16: a(f"s_mov_b32 s{S_KOFF}, s{S_H2OFF}")
        dma(a, S_K, V_DK, S_KOFF, KSLOT(kn), 1024, KV_FLAGS, f"p{g}")
        a(f"s_add_u32 s{S_KOFF}, s{S_KOFF}, 16384")
    if 0 <= vn <= 31:
        if vn == 16: a(f"s_mov_b32 s{S_VOFF}, s{S_H2OFF}")
        dma(a, S_V, V_DV, S_VOFF, VSLOT(vn), 1024, KV_FLAGS, f"p{g}")
        a(f"s_add_u32 s{S_VOFF}, s{S_VOFF}, 16384")

XS = [(VSLOT(1), WSLOT(0)), (WSLOT(3), VSLOT(2)), (VSLOT(0), KSLOT(2)), (WSLOT(1), WSLOT(2))]
W1S = [WSLOT(1), WSLOT(2), KSLOT(0), KSLOT(1), VSLOT(1), WSLOT(0), WSLOT(3), VSLOT(2)]
SLOT = {f"X{q}{'ab'[h]}": XS[q][h] for q in range(4) for h in range(2)}
SLOT.update({f"A{i}": W1S[i] for i in range(8)})
SLOT.update({f"K{i}": KSLOT(i) for i in range(3)}); SLOT.update({f"V{i}": VSLOT(i) for i in range(2)})
FREE = {"A4": 1, "A5": 1, "X3a": 1, "X3b": 2, "A6": 3, "A7": 3, "K0": 3, "K1": 4, "V0": 5, "K2": 5, "V1": 5}

def x_addr_move(a, q, prev_q):
    pa, pb = XS[prev_q] if prev_q is not None else (0, 0)
    a(f"s_cmp_lt_u32 s{S_WV}, 2")
    a(f"s_mov_b32 s{S_T1}, {u32(XS[q][0]-pa)}")
    a(f"s_cselect_b32 s{S_T1}, s{S_T1}, {u32(XS[q][1]-pb)}")
    if prev_q is None: a(f"s_add_u32 s{S_T1}, s{S_T1}, s{S_HALF}")
    for m in range(4): a(f"v_add_u32 v{V_KA+m}, s{S_T1}, v{V_KA+m}")
def x_frag_issue(a, q):
    for f in range(8): a(f"ds_read_b128 {vr(XREG(8*q+f),4)}, v{V_KA+(f>>1)} offset:{(f&1)*1024}")
def x_addr_finish(a, kbase):
    a(f"s_cmp_lt_u32 s{S_WV}, 2")
    a(f"s_mov_b32 s{S_T1}, {u32(kbase-XS[3][0])}")
    a(f"s_cselect_b32 s{S_T1}, s{S_T1}, {u32(kbase-XS[3][1])}")
    a(f"s_sub_u32 s{S_T1}, s{S_T1}, s{S_HALF}")
    for m in range(4): a(f"v_add_u32 v{V_KA+m}, s{S_T1}, v{V_KA+m}")

def own_o_lds_addr(a, dst):
    a(f"s_cmp_lt_u32 s{S_WV}, 2")
    a(f"s_mov_b32 s{S_T1}, {VSLOT(30)}")
    a(f"s_cselect_b32 s{S_T1}, s{S_T1}, {KSLOT(31)}")
    a(f"s_add_u32 s{S_T1}, s{S_T1}, s{S_HALF}")
    a(f"v_add_u32 v{dst}, s{S_T1}, v{V_L16}")

def tspin(a, us, uid):
    a.label(f"L_ts{uid}")
    a("s_sleep 2")
    a("s_memrealtime s[94:95]")
    a("s_waitcnt lgkmcnt(0)")
    a("s_sub_u32 s94, s94, s92")
    a(f"s_cmp_lt_u32 s94, {int(us)*100}")
    a(f"s_cbranch_scc1 L_ts{uid}")

def q_finalize(a):
    a(f"s_mov_b32 s{S_SC}, {f2u(QSCALE):#x}")
    a(f"s_mov_b32 s{S_SC+1}, {f2u(QSCALE):#x}")
    a("s_nop 3")
    acc_to_frags(a, lambda f: V_Q+4*f, None)

def kernel(a, name):
    a.raw(f".globl {name}"); a.raw(".p2align 8"); a.raw(f".type {name},@function"); a.label(name)
    a("s_cmp_ge_u32 s2, 256")
    a("s_cbranch_scc1 L_end")
    if STAMPS: a(f"v_mov_b32 v{V_ST}, 0")
    stamp(a, 0)
    if E("ENDSPIN") or E("MIDSPIN") or E("LATESPIN"): a("s_memrealtime s[92:93]")
    setup_srds(a)
    a(f"s_lshl_b32 s{S_T1}, s{S_SET}, 3")
    a(f"s_add_u32 s{S_T1}, s{S_T1}, s{S_J}")
    a(f"s_lshl_b32 s{S_T2}, s{S_B}, 5")
    a(f"s_add_u32 s{S_T2}, s{S_T2}, s{S_T1}")
    a(f"s_lshl_b32 s{S_KOFF}, s{S_T2}, 18")
    a(f"s_mov_b32 s{S_VOFF}, s{S_KOFF}")
    a(f"s_add_u32 s{S_H2OFF}, s{S_KOFF}, {4<<18}")
    a(f"s_mov_b32 s{S_THR}, 0x41700000")
    a(f"v_lshlrev_b32 v{V_L16}, 4, v{V_LANE}")
    setup_ktype_dma(a, V_E, 10)
    setup_vtype_dma(a, V_DW, 13)
    finish_srds(a)
    stamp(a, 1)
    a(f"s_lshl_b32 s{S_WBASE}, s{S_T1}, 8")
    a(f"s_lshl_b32 s{S_XBASE}, s{S_B}, 17")
    if E("MAP") == "3":
        a(f"s_lshr_b32 s{S_ROT}, s{S_B}, 1")
        a(f"s_add_u32 s{S_ROT}, s{S_J}, s{S_ROT}")
    else: a(f"s_add_u32 s{S_ROT}, s{S_J}, s{S_B}")
    a(f"s_and_b32 s{S_ROT}, s{S_ROT}, {3 if E('NOROT') is None else 0}")
    def common2():
        a(f"s_lshl_b32 s{S_T0}, s{S_BR}, 3")
        a(f"s_add_u32 s{S_T0}, s{S_T0}, s{S_B}")
        a(f"s_lshl_b32 s{S_T3}, s{S_T0}, 7")
        a(f"s_add_u32 s{S_T3}, s{S_T3}, {EPOCH_WS_OFF}")
        a(f"s_load_dwordx2 {sr(S_EP,2)}, {sr(S_WS,2)}, s{S_T3}")
        a(f"s_lshl_b32 s{S_T0}, s{S_T0}, 2")
        a(f"s_add_u32 s{S_T0}, s{S_T0}, s{S_SET}")
        a(f"s_lshl_b32 s{S_T0}, s{S_T0}, 5")
        a(f"s_add_u32 s{S_T0}, s{S_T0}, s{S_WV}")
        a(f"s_lshl_b32 s{S_OSET}, s{S_T0}, 13")
        a(f"s_lshl_b32 s{S_T0}, s{S_GRP}, 2")
        a(f"s_add_u32 s{S_T0}, s{S_T0}, s{S_J}")
        a(f"s_lshl_b32 s{S_T0}, s{S_T0}, 15")
        a(f"s_add_u32 s{S_OOFF}, s{S_OSET}, s{S_T0}")
        a(f"s_lshl_b32 s{S_T0}, s2, 2")
        a(f"s_add_u32 s{S_T0}, s{S_T0}, s{S_WV}")
        a(f"s_mul_i32 s{S_FLG}, s{S_T0}, 384")
        a(f"s_add_u32 s{S_FLG}, s{S_FLG}, {FLAG_WS_OFF}")
        a(f"s_mov_b32 s{S_MSK}, 0x40004000")
        a(f"s_and_b32 s{S_HALF}, s{S_WV}, 1")
        a(f"s_lshl_b32 s{S_HALF}, s{S_HALF}, 13")
        a(f"s_lshl_b32 s{S_WOB}, s{S_SET}, 20")
        a(f"s_lshl_b32 s{S_T0}, s{S_J}, 8")
        a(f"s_add_u32 s{S_WOB}, s{S_WOB}, s{S_T0}")
        setup_vtype_dma(a, V_DV, 8)
        setup_ktype_dma(a, V_DK, 8)
        k_addr_setup(a)
        x_addr_move(a, 0, None)
    def token():
        a("s_waitcnt lgkmcnt(0)")
        a(f"s_mul_i32 s{S_TOK}, s{S_EP}, 0x9E3779B1")
        a(f"s_add_u32 s{S_TOK}, s{S_TOK}, 0x7F4A7C15")
        a(f"s_mul_i32 s{S_TOK+1}, s{S_EP+1}, 0x85EBCA6D")
        a(f"s_add_u32 s{S_TOK+1}, s{S_TOK+1}, 0x27D4EB2F")

    TS = {t: WSLOT2(t) for t in range(6)}
    TS.update({8: KSLOT(29), 9: KSLOT(30), 6: VSLOT(29), 7: VSLOT(31), 10: KSLOT(29), 11: KSLOT(30), 12: TS[2], 13: TS[3], 14: TS[4], 15: TS[5]})
    ORD = [0, 1, 8, 9, 2, 3, 4, 5, 6, 7, 10, 11, 12, 13, 14, 15]
    def wo_off(t):
        d = (t >> 1) & 3
        a(f"s_add_u32 s{S_WOFF}, s{S_J}, {d}")
        a(f"s_and_b32 s{S_WOFF}, s{S_WOFF}, 3")
        a(f"s_lshl_b32 s{S_WOFF}, s{S_WOFF}, 17")
        a(f"s_add_u32 s{S_WOFF}, s{S_WOFF}, s{S_WOB}")
        add = (t >> 3)*4*131072 + (t & 1)*65536
        if add: a(f"s_add_u32 s{S_WOFF}, s{S_WOFF}, {add}")
    def wo_ops(t):
        def op(j):
            if j == 0: wo_off(t)
            dma(a, S_WO, V_DW, S_WOFF, TS[t], 4096, WO_FLAGS, f"wo{t}", (j,))
        return [lambda j=j: op(j) for j in range(4)]
    def rot_off(dst, q, shift, base, add=0):
        a(f"s_add_u32 s{dst}, s{S_ROT}, {q}")
        a(f"s_and_b32 s{dst}, s{dst}, 3")
        a(f"s_lshl_b32 s{dst}, s{dst}, {shift}")
        a(f"s_add_u32 s{dst}, s{dst}, s{base}")
        if add: a(f"s_add_u32 s{dst}, s{dst}, {add}")
    def kv_ops(kind, n, tag):
        srd, voff, soff, slot = (S_K, V_DK, S_KOFF, KSLOT(n)) if kind == "K" else (S_V, V_DV, S_VOFF, VSLOT(n))
        def op(j):
            if j == 0 and n == 16: a(f"s_mov_b32 s{soff}, s{S_H2OFF}")
            dma(a, srd, voff, soff, slot, 1024, KV_FLAGS, tag, (j,), setm0=(j == 0))
            if j == 3: a(f"s_add_u32 s{soff}, s{soff}, 16384")
        return [lambda j=j: op(j) for j in range(4)]
    def pkg_ops(g):
        return (kv_ops("K", g+1, f"p{g}") if g+1 <= 31 else []) + kv_ops("V", g, f"p{g}")
    def tile_ops(nm):
        if nm[0] == "K": return kv_ops("K", int(nm[1]), f"p{int(nm[1])-1}")
        if nm[0] == "V": return kv_ops("V", int(nm[1]), f"p{nm[1]}")
        def op(j):
            if nm[0] == "X":
                if j == 0: rot_off(S_XOFF, int(nm[1]), 8, S_XBASE, 65536 if nm[2] == "b" else 0)
                dma(a, S_X, V_E, S_XOFF, SLOT[nm], 4096, X_FLAGS, nm, (j,))
            else:
                i = int(nm[1])
                if j == 0: rot_off(S_WOFF, i//2, 20, S_WBASE, (i % 2)*64*8192 + (1024 if nm[0] == "B" else 0))
                dma(a, S_WQ, V_DW, S_WOFF, SLOT[nm] if nm[0] == "A" else WSLOT(i), 4*8192, WQ_FLAGS, nm, (j,))
        return [lambda j=j: op(j) for j in range(4)]
    planA = eval(E("SUA", "{-1:['A0','A1'],0:['A2','A3'],1:['A4'],2:['A5'],3:['A6'],4:['A7']}"))
    planB = eval(E("SUB", "{-1:['X1a'],0:['X1b'],1:['X2a','X2b'],2:['X3a'],3:['X3b'],4:['K0'],5:['K1'],6:['V0'],8:['K2','V1']}"))
    for pl in (planA, planB):
        for k, l in pl.items():
            for nm in l: assert FREE.get(nm, -1) <= k, (nm, k)

    rot_off(S_XOFF, 0, 8, S_XBASE)
    a(f"s_lshl_b32 s{S_T0}, s{S_GRP}, 16")
    a(f"s_add_u32 s{S_XOFF}, s{S_XOFF}, s{S_T0}")
    a(f"s_cmp_eq_u32 s{S_GRP}, 0")
    a(f"s_mov_b32 s{S_T0}, {XS[0][0]}")
    a(f"s_cselect_b32 s{S_T0}, s{S_T0}, {XS[0][1]}")
    a(f"s_add_u32 m0, s{S_LDSW}, s{S_T0}")
    for jj in range(4):
        if jj: a(f"s_add_u32 s{S_XOFF}, s{S_XOFF}, 3072")
        else: a("s_nop 0")
        a(f"buffer_load_dwordx4 v{V_E+(jj>>1)}, {sr(S_X,4)}, s{S_XOFF} offen offset:{jj*1024} {X_FLAGS} lds")
    a(f"s_cmp_eq_u32 s{S_GRP}, 0")
    a("s_cbranch_scc0 L_grpB")

    a.vmq = ["X0a"]*4
    for nm in planA[-1][:1]:
        for op in tile_ops(nm): op()
    if not E("NOPF"):
        a(f"s_getpc_b64 {sr(S_SC,2)}")
        a.label("L_pc")
        a(f"s_sub_u32 s{S_SC}, s{S_SC}, L_pc-{name}")
        a(f"s_subb_u32 s{S_SC+1}, s{S_SC+1}, 0")
        a(f"s_lshr_b32 s{S_T0}, s2, 3")
        a(f"s_lshl_b32 s{S_T0}, s{S_T0}, 2")
        a(f"s_add_u32 s{S_T0}, s{S_T0}, s{S_WV}")
        a(f"s_lshl_b32 s{S_T0}, s{S_T0}, 2")
        a(f"v_and_b32 v{V_TMP}, 3, v{V_LANE}")
        a(f"v_add_lshl_u32 v{V_TMP}, v{V_TMP}, s{S_T0}, 7")
        a(f"v_min_u32 v{V_TMP}, L_code_end-{name}-4, v{V_TMP}")
        a.vm(f"global_load_dword v{V_Q}, v{V_TMP}, {sr(S_SC,2)}", "A1")
    common2()
    setup_vtype_addr(a, W1S[0])
    for i in range(32): a(f"v_mov_b64 {vr(V_O+2*i,2)}, 0")
    for nm in planA[-1][1:]:
        for op in tile_ops(nm): op()
    token()
    a.lq = []
    st = Stream(a, W1S + [VSLOT(0)], set(range(8)))
    for n in range(128):
        seg, idx = n >> 4, n & 15
        st.xneed[n] = [f"x{4*seg+2*(idx>>3)}", f"x{4*seg+2*(idx>>3)+1}"]
    opsA = {k: sum((tile_ops(nm) for nm in l), []) for k, l in planA.items() if k >= 0}
    st.n = 2
    while not st.done():
        n = st.n; seg, idx = n >> 4, n & 15
        xds, valu = [], []
        if seg < 8 and seg % 2 == 0:
            for f in {2: [0, 1]}.get(idx, [idx-2] if 4 <= idx < 10 else []):
                xds.append((f"ds_read_b128 {vr(XREG(4*seg+f),4)}, v{V_KA+(f>>1)} offset:{(f&1)*1024}", f"x{4*seg+f}"))
            if idx == 12:
                q = seg // 2
                tgt = XS[q+1] if q < 3 else (KSLOT(0), KSLOT(0))
                a(f"s_cmp_lt_u32 s{S_WV}, 2")
                a(f"s_mov_b32 s{S_DL+1}, {u32(tgt[0]-XS[q][0])}")
                a(f"s_cselect_b32 s{S_DL+1}, s{S_DL+1}, {u32(tgt[1]-XS[q][1])}")
                if q == 3: a(f"s_sub_u32 s{S_DL+1}, s{S_DL+1}, s{S_HALF}")
        if seg < 8 and seg % 2 == 1 and 4 <= idx < 8: valu.append(f"v_add_u32 v{V_KA+idx-4}, s{S_DL+1}, v{V_KA+idx-4}")
        def bar():
            if a.lq: a.dsall()
            a.vmwait([f"A{seg}", f"X{seg//2}a", f"X{seg//2}b"])
            a("s_barrier")
        st.unit(bar if idx == 2 else None, xds, valu)
        for op in spread(opsA.get((n-2) >> 4, []), (n-2) & 15, 14): op()
    assert a.vmq == [] and a.lq == []
    q_finalize(a)
    a.label("L_att_entry")
    attention(a)
    a(f"s_cmp_eq_u32 s{S_GRP}, 0")
    a("s_cbranch_scc0 L_B_fin")
    a.vmq = []; a.lq = []
    a(f"s_add_u32 s{S_KOFF}, s{S_H2OFF}, {3*16384}")
    a(f"s_add_u32 s{S_VOFF}, s{S_H2OFF}, {2*16384}")
    def o_ops(d, second, tag):
        def op(m):
            if m == 0:
                a(f"s_add_u32 s{S_T1}, s{S_J}, {d}")
                a(f"s_and_b32 s{S_T1}, s{S_T1}, 3")
                a(f"s_lshl_b32 s{S_T1}, s{S_T1}, 15")
                a(f"s_add_u32 s{S_T1}, s{S_T1}, s{S_OSET}")
                if second: a(f"s_add_u32 s{S_T1}, s{S_T1}, {4*32768}")
            if m == 4: a(f"s_add_u32 s{S_T1}, s{S_T1}, 4096")
            a.vm(f"buffer_load_dwordx4 {vr(XREG(8*d+m),4)}, v{V_L16}, {sr(S_WS,4)}, s{S_T1} offen offset:{(m%4)*1024} {OLF}", f"{tag}{4*d+m//2}")
        return [lambda m=m: op(m) for m in range(8)]
    PUB = int(E("PUB", "30"))
    normalize_o(a)
    setup_vtype_dma(a, V_DW, 10)
    for i in range(32): a(f"v_mov_b64 {vr(V_O+2*i,2)}, 0")
    a(f"s_lshl_b32 s{S_T1}, s{S_SET}, 1")
    setup_vtype_addr(a, TS[0], xor_sgpr=S_T1)
    a(f"s_add_u32 s{S_T1}, s{S_J}, 1")
    a(f"v_add_u32 v{V_FL}, s{S_T1}, v{V_LANE}")
    a(f"v_and_b32 v{V_FL}, 3, v{V_FL}")
    a(f"v_lshlrev_b32 v{V_FL}, 5, v{V_FL}")
    a(f"s_and_b32 s{S_T1}, s2, 0xe7")
    a(f"s_lshl_b32 s{S_T1}, s{S_T1}, 2")
    a(f"s_add_u32 s{S_T1}, s{S_T1}, s{S_WV}")
    a(f"v_add_u32 v{V_FL}, s{S_T1}, v{V_FL}")
    a(f"v_mul_u32_u24 v{V_FL}, 384, v{V_FL}")
    a(f"v_add_u32 v{V_FL}, {FLAG_WS_OFF}, v{V_FL}")
    own_o_lds_addr(a, V_E+2)
    st = Stream(a, [TS[t] for t in ORD] + [TS[15]], {4, 6, 8})
    st.seg = [t % 8 for t in ORD]
    for p, t in enumerate(ORD):
        if t % 8 >= 2:
            for ks in range(2): st.vneed[16*p+8*ks] = [f"{'oa' if t < 8 else 'ob'}{2*(t%8)+ks}"]
        elif t >= 8:
            for ks in range(2): st.xneed[16*p+8*ks] = [f"x{4*(t%8)+2*ks}", f"x{4*(t%8)+2*ks+1}"]
    wops = sum((wo_ops(t) for t in range(6)), [])
    units_at = {18: 4, 19: 6, 20: 6, 21: 6, 22: 6, 23: 4}
    def wpf_ops():
        def op(r):
            if r == 0:
                a(f"v_lshrrev_b32 v{V_L}, 4, v{V_LANE}")
                a(f"v_and_b32 v{V_L+1}, 15, v{V_LANE}")
                a(f"v_lshlrev_b32 v{V_L+1}, 4, v{V_L+1}")
                a(f"v_lshl_add_u32 v{V_L}, v{V_L}, 10, v{V_L+1}")
                a(f"s_add_u32 s{S_VD}, s{S_J}, s{S_WV}")
                a(f"s_and_b32 s{S_VD}, s{S_VD}, 3")
                a(f"s_lshl_b32 s{S_VD}, s{S_VD}, 17")
                a(f"s_add_u32 s{S_VD}, s{S_VD}, s{S_WOB}")
                a(f"s_lshl_b32 s{S_T0}, s{S_B}, 14")
                a(f"s_add_u32 s{S_VD}, s{S_VD}, s{S_T0}")
                a(f"s_add_u32 s{S_VD}, s{S_VD}, {4*131072}")
            else: a(f"s_add_u32 s{S_VD}, s{S_VD}, 4096")
            window(a)
            a.vm(f"buffer_load_dwordx4 {vr(XREG(8+r),4)}, v{V_L}, {sr(S_WO,4)}, s{S_VD} offen", "wpf")
        return [lambda r=r: op(r) for r in range(4)]
    wpf = wpf_ops() if not E("NOWPF") else []
    wpf_at = eval(E("WPFAT", "{28:2,29:2}"))
    for g in range(16, 32):
        WIN[0] = int(E("WIN2", "0")) if g <= 29 else 0
        tags = [f"p{g}"]
        if g == 18: tags.append("wo0")
        if g == 21: tags.append("wo1")
        if g == 24:
            while st.n < 32 + st.L - 0 and False: st.unit()
            a.dsall()
        a.vmwait(tags)
        if g == 29 and E("LATESPIN"): tspin(a, E("LATESPIN"), "l")
        stamp(a, 2*(g-16)+10)
        a("s_barrier")
        stamp(a, 2*(g-16)+11)
        ops = []
        if g <= 27: ops += wops[2*(g-16):2*(g-16)+2]
        k = wpf_at.get(g, 0); ops += wpf[:k]; wpf = wpf[k:]
        if g + 2 <= 31: ops += pkg_ops(g+2)
        nu = units_at.get(g, 0)
        for k, op in enumerate(ops):
            op()
            for _ in spread(list(range(nu)), k, len(ops)): st.unit()
        WIN[0] = 0
        if g == 24:
            for f in range(32 - st.L, 32):
                for x in pj_mm(1, f & 15): a(x)
            st.skip = 32
        if g == PUB: store_o(a)
        if g == 30:
            for op in wo_ops(8) + wo_ops(9): op()
        if g == 31:
            for op in wo_ops(6): op()
    assert st.n == 32 and not wpf
    a.vmwait("ost"); set_flag(a, 0)
    a.vmwait(["wo8", "wo9"])
    stamp(a, 44)
    a("s_barrier")
    stamp(a, 45)
    for m in range(2): a.ds(f"ds_read_b128 {vr(XREG(m),4)}, v{V_E+2} offset:{m*1024}", f"x{m}")
    tops = {2: wo_ops(7), 4: o_ops(2, False, "oa") + wo_ops(10), 5: o_ops(3, False, "oa") + wo_ops(11),
            6: wo_ops(12), 7: wo_ops(13), 8: wo_ops(14), 9: o_ops(2, True, "ob") + wo_ops(15), 10: o_ops(3, True, "ob")}
    bars = {(4, 2): ["pl1"], (6, 2): ["wo7"], (8, 2): ["pl2"], (10, 0): ["wo13"], (14, 0): ["wo15"]}
    while not st.done():
        n = st.n; t, idx = n >> 4, n & 15
        xds = []
        if t == 2 and 2 <= idx < 8:
            xds.append((f"ds_read_b128 {vr(XREG(idx),4)}, v{V_E+2} offset:{idx*1024}", f"x{idx}"))
        def bar():
            if idx == 2 and a.lq: a.dsall()
            a.vmwait(bars[(t, idx)])
            stamp(a, {4: 46, 6: 48, 8: 49, 10: 56, 14: 57}[t])
            if t == 4 and not E("BARFIRST"):
                poll_spin(a, 0, "1", V_E, have_first=True)
                stamp(a, 47)
                for op in o_ops(1, False, "oa"): op()
            a("s_barrier")
            if t == 8:
                poll_spin(a, 1, "2", V_E, have_first=True)
                stamp(a, 51)
                for op in o_ops(1, True, "ob"): op()
        st.unit(bar if (t, idx) in bars else None, xds)
        if t == 3 and idx == 6: poll_issue(a, 0, V_E, "pl1")
        if t == 7 and idx == 6: poll_issue(a, 1, V_E, "pl2")
        lo = {10: 6}.get(t, 2 if t in st.late else 0)
        if idx >= lo:
            for op in spread(tops.get(t, []), idx-lo, 14-lo): op()
    assert a.lq == []
    stamp(a, 52)
    a(f"s_lshl_b32 s{S_T1}, s2, 2")
    a(f"s_add_u32 s{S_T1}, s{S_T1}, s{S_WV}")
    a(f"s_lshl_b32 s{S_T1}, s{S_T1}, 14")
    a(f"s_add_u32 s{S_T1}, s{S_T1}, {PART_WS_OFF}")
    a(f"v_add_u32 v{V_FL}, 1, v{V_LANE}")
    a(f"v_and_b32 v{V_FL}, 3, v{V_FL}")
    a(f"v_xor_b32 v{V_FL}, s2, v{V_FL}")
    a(f"v_lshlrev_b32 v{V_FL}, 2, v{V_FL}")
    a(f"v_add_u32 v{V_FL}, s{S_WV}, v{V_FL}")
    a(f"v_mul_u32_u24 v{V_FL}, 384, v{V_FL}")
    a(f"v_add_u32 v{V_FL}, {FLAG_WS_OFF}, v{V_FL}")
    PB = 128
    for beta in (1, 2, 3):
        a(f"s_add_u32 s{S_T1}, s{S_T1}, 4096")
        if PBF16:
            for i in range(8): a(f"v_cvt_pk_bf16_f32 v{PB+8*beta+i}, v{V_O+16*beta+2*i}, v{V_O+16*beta+2*i+1}")
            for i in range(2):
                a.vm(f"buffer_store_dwordx4 {vr(PB+8*beta+4*i,4)}, v{V_L16}, {sr(S_WS,4)}, s{S_T1} offen offset:{i*1024} sc1", "pst")
        else:
            for i in range(4):
                a.vm(f"buffer_store_dwordx4 {vr(V_O+16*beta+4*i,4)}, v{V_L16}, {sr(S_WS,4)}, s{S_T1} offen offset:{i*1024} sc1", "pst")
    t0, t1 = V_E+2, V_E+3
    row0(a, t0, t1)
    a(f"v_and_b32 v{t1}, 0x30, v{V_LANE}")
    a(f"v_lshl_add_u32 v{t0}, v{t0}, 11, v{t1}")
    a(f"s_lshl_b32 s{S_T2}, s{S_B}, 2")
    a(f"s_add_u32 s{S_T2}, s{S_T2}, s{S_WV}")
    a(f"s_lshl_b32 s{S_T2}, s{S_T2}, 16")
    a(f"s_lshl_b32 s{S_T0}, s{S_BR}, 10")
    a(f"s_add_u32 s{S_T2}, s{S_T2}, s{S_T0}")
    a(f"s_lshl_b32 s{S_T0}, s{S_J}, 8")
    a(f"s_add_u32 s{S_T2}, s{S_T2}, s{S_T0}")
    a(f"s_lshl_b32 s{S_T0}, s{S_SET}, 6")
    a(f"s_add_u32 s{S_T2}, s{S_T2}, s{S_T0}")
    a(f"s_add_u32 s{S_KD}, s{S_T2}, 8192")
    a.vmall()
    stamp(a, 53)
    set_flag(a, 2)
    poll_spin(a, 2, "3", V_E)
    stamp(a, 54)
    for beta in (1, 2, 3):
        a(f"s_xor_b32 s{S_T1}, s2, {beta}")
        a(f"s_lshl_b32 s{S_T1}, s{S_T1}, 2")
        a(f"s_add_u32 s{S_T1}, s{S_T1}, s{S_WV}")
        a(f"s_lshl_b32 s{S_T1}, s{S_T1}, 14")
        a(f"s_add_u32 s{S_T1}, s{S_T1}, {PART_WS_OFF + beta*4096}")
        if PBF16:
            for i in range(2):
                a.vm(f"buffer_load_dwordx4 {vr(PB+8*beta+4*i,4)}, v{V_L16}, {sr(S_WS,4)}, s{S_T1} offen offset:{i*1024} sc1", f"pl{beta}")
        else:
            for i in range(4):
                a.vm(f"buffer_load_dwordx4 {vr(V_O+16*beta+4*i,4)}, v{V_L16}, {sr(S_WS,4)}, s{S_T1} offen offset:{i*1024} sc1", f"pl{beta}")
    for beta in (1, 2, 3):
        a.vmwait(f"pl{beta}")
        if PBF16:
            for i in range(8):
                a(f"v_lshlrev_b32 v{V_TMP}, 16, v{PB+8*beta+i}")
                a(f"v_and_b32 v{V_TMP+1}, 0xffff0000, v{PB+8*beta+i}")
                a(f"v_add_f32 v{V_O+2*i}, v{V_O+2*i}, v{V_TMP}")
                a(f"v_add_f32 v{V_O+2*i+1}, v{V_O+2*i+1}, v{V_TMP+1}")
        else:
            for i in range(16): a(f"v_add_f32 v{V_O+i}, v{V_O+i}, v{V_O+16*beta+i}")
    for qh in range(2):
        for h in range(2):
            for i in range(2): a(f"v_cvt_pk_bf16_f32 v{V_Q+4*qh+2*h+i}, v{OREG(h,qh)+2*i}, v{OREG(h,qh)+2*i+1}")
    a("s_nop 1")
    for op in ("v_permlane32_swap_b32", "v_permlane16_swap_b32"):
        for qh in range(2):
            for i in range(2): a(f"{op} v{V_Q+4*qh+i}, v{V_Q+4*qh+2+i}")
    a(f"buffer_store_dwordx4 {vr(V_Q,4)}, v{t0}, {sr(S_OUT,4)}, s{S_T2} offen")
    a(f"buffer_store_dwordx4 {vr(V_Q+4,4)}, v{t0}, {sr(S_OUT,4)}, s{S_KD} offen")
    a(f"s_or_b32 s{S_T0}, s{S_SET}, s{S_J}")
    a(f"s_or_b32 s{S_T0}, s{S_T0}, s{S_WV}")
    a("s_cbranch_scc1 L_noep")
    a(f"v_mov_b32 v{V_TMP}, s{S_TOK}")
    a(f"v_mov_b32 v{V_TMP+1}, s{S_TOK+1}")
    a("s_mov_b64 exec, 1")
    a(f"buffer_store_dwordx2 {vr(V_TMP,2)}, off, {sr(S_WS,4)}, s{S_T3} sc1")
    a("s_mov_b64 exec, -1")
    a.label("L_noep")
    if E("ENDSPIN"): tspin(a, E("ENDSPIN"), "e")
    if STAMPS: a("s_waitcnt vmcnt(0)")
    stamp(a, 55)
    stamp_flush(a)
    a("s_endpgm")

    a.label("L_B_fin")
    a.vmq = []
    stamp(a, 58)
    normalize_o(a)
    store_o(a)
    own_o_lds_addr(a, V_E)
    for m in range(8): a(f"ds_write_b128 v{V_E}, {vr(XREG(m),4)} offset:{m*1024}")
    a("s_waitcnt lgkmcnt(0)")
    stamp(a, 59)
    a("s_barrier")
    stamp(a, 60)
    a.vmall()
    set_flag(a, 1)
    stamp(a, 61)
    stamp_flush(a)
    a("s_endpgm")

    a.label("L_grpB")
    a.vmq = ["X0b"]*4
    common2()
    for nm in planB[-1]:
        for op in tile_ops(nm): op()
    setup_vtype_addr(a, WSLOT(0))
    for r in range(32): a(f"v_mov_b64 {vr(V_O+2*r,2)}, 0")
    token()
    for i in range(8):
        a.vmwait([f"X{i//2}a", f"X{i//2}b"])
        a("s_barrier")
        stamp(a, 2+i)
        if i % 2 == 0: x_frag_issue(a, i//2)
        for nm in planB.get(i, []):
            for op in tile_ops(nm): op()
        if i % 2 == 0:
            a("s_waitcnt lgkmcnt(0)")
            if i < 6: x_addr_move(a, i//2+1, i//2)
            else: x_addr_finish(a, KSLOT(16))
    a.vmwait("p-1")
    stamp(a, 10)
    a("s_barrier")
    stamp(a, 11)
    for nm in planB.get(8, []):
        for op in tile_ops(nm): op()
    a.lq = []
    st = Stream(a, [WSLOT(i) for i in range(8)] + [VSLOT(16)], set())
    w2 = sum((tile_ops(f"B{i}") for i in range(8)), [])
    w2n = eval(E("W2N", "{-1:2,0:2,1:4,2:2,3:2,4:4,5:2,6:2,7:2,8:2,9:4,10:2,11:2}"))
    UPS = int(E("UPS", "10")); U0 = int(E("U0", "1"))
    w2p = 0
    for op in w2[:w2n.get(-1, 0)]: op()
    w2p = w2n.get(-1, 0)
    for g in range(0, 16):
        WIN[0] = int(E("WIN1", "0"))
        nu = UPS if U0 <= g <= 13 else 0
        nu = min(nu, 128 + st.L - st.n)
        tags = [f"p{g}"]
        for t in range(8):
            if st.n <= 16*t + 15 and 16*t < st.n + nu:
                assert w2p >= 4*t + 4, (g, t, w2p)
                tags.append(f"B{t}")
        free_tiles = [t for t in range(8) if st.reads_done(t)]
        a.vmwait(tags)
        if g == 1 and E("MIDSPIN"): tspin(a, E("MIDSPIN"), "m")
        stamp(a, 2*g+12)
        a("s_barrier")
        stamp(a, 2*g+13)
        k = w2n.get(g, 0)
        for x in range(w2p, w2p+k): assert x//4 < 4 or (x//4 - 4) in free_tiles, (g, x)
        ops = w2[w2p:w2p+k] + pkg_ops(g+2); w2p += k
        for kk, op in enumerate(ops):
            op()
            for _ in spread(list(range(nu)), kk, len(ops)): st.unit()
        if g == 14:
            while not st.done(): st.unit()
            q_finalize(a)
    assert w2p == 32 and a.lq == []
    WIN[0] = 0
    a("s_branch L_att_entry")
    a.label("L_end")
    a("s_endpgm")
    att_stubs(a)
    rare(a, 0); rare(a, 1)
    a.label("L_code_end")

def main(fn):
    a = Asm()
    name = NAME + "_kernel"
    a.raw(f"; @launch grid=(256,1,1) block=(512,1,1) lds=163840")
    a.raw('.amdgcn_target "amdgcn-amd-amdhsa--gfx950"')
    a.raw(".text")
    kernel(a, name)
    a.raw('.section .rodata,"a"')
    a.raw(".p2align 6")
    a.raw(f".amdhsa_kernel {name}")
    a.raw(f"  .amdhsa_next_free_vgpr 256"); a.raw(f"  .amdhsa_next_free_sgpr 96"); a.raw(f"  .amdhsa_accum_offset 256")
    a.raw("  .amdhsa_group_segment_fixed_size 0"); a.raw("  .amdhsa_kernarg_size 104"); a.raw("  .amdhsa_user_sgpr_count 2")
    a.raw("  .amdhsa_user_sgpr_kernarg_segment_ptr 1"); a.raw("  .amdhsa_system_sgpr_workgroup_id_x 1"); a.raw(".end_amdhsa_kernel")
    open(fn, "w").write(a.text())

if __name__ == "__main__":
    if len(sys.argv) > 2 and sys.argv[2] == "stamps": STAMPS = True
    main(sys.argv[1] if len(sys.argv) > 1 else "k3.s")
```

```python
import sys, math, os, struct
NAME = "concat_heads__mha_block_cached__gqa_block_cached__near_ridge"
E = os.environ.get

class Asm:
    def __init__(s):
        s.L = []; s.vmq = []; s.lq = []; s.stubs = []
    def __call__(s, t): s.L.append("  " + " ".join(t.split()))
    def label(s, t): s.L.append(t + ":")
    def raw(s, t): s.L.append(t)
    def vm(s, t, tag):
        s(t); s.vmq.append(tag)
    def vmwait(s, tags):
        if not isinstance(tags, (list, tuple, set)): tags = [tags]
        last = -1
        for i, t in enumerate(s.vmq):
            if t in tags: last = i
        if last < 0: return
        n = len(s.vmq) - 1 - last
        assert n <= 63, n
        s(f"s_waitcnt vmcnt({n})")
        s.vmq = s.vmq[last+1:]
    def vmall(s):
        s("s_waitcnt vmcnt(0)"); s.vmq = []
    def ds(s, t, tag):
        s(t); s.lq.append(tag)
        assert len(s.lq) <= 15, s.lq
    def dswait(s, tags, force=False):
        if not isinstance(tags, (list, tuple, set)): tags = [tags]
        last = -1
        for i, t in enumerate(s.lq):
            if t in tags: last = i
        if last < 0: return
        s(f"s_waitcnt lgkmcnt({len(s.lq) - 1 - last})")
        s.lq = s.lq[last+1:]
    def dsall(s):
        s("s_waitcnt lgkmcnt(0)"); s.lq = []
    def text(s): return "\n".join(s.L) + "\n"

def vr(b, n=1): return f"v{b}" if n == 1 else f"v[{b}:{b+n-1}]"
def sr(b, n=1): return f"s{b}" if n == 1 else f"s[{b}:{b+n-1}]"
def f2u(f): return struct.unpack("<I", struct.pack("<f", f))[0]
def u32(x): return f"{x & 0xffffffff:#x}"

V_LANE = 1
V_KA = 2
V_VA = 6
V_DK = 14
V_DV = 16
V_DW = 18
V_ONE = 20
V_FL = 20
V_L  = 22
V_E  = 24
V_TMP = 28
V_L16 = 30
V_ST = 31
V_Q  = 32
V_O  = 64
V_NM = 128
V_LA = 136
V_S  = [144, 160]
V_P  = [176, 184]
V_KF = 192
V_VF = 224
def XREG(s): return (128 + 4*s) if s < 24 else (32 + 4*(s-24))
def OREG(dt, qh): return V_O + 8*dt + 4*qh

S_K, S_V, S_X, S_WQ, S_WS, S_WO, S_OUT = 4, 8, 12, 16, 20, 24, 28
S_RET = 32
S_WV = 34; S_GRP = 35
S_DBG = 36
S_BR = 52; S_B = 53; S_J = 54; S_SET = 55
S_KOFF = 56; S_VOFF = 57; S_WOFF = 58; S_XOFF = 59; S_LDSW = 60
S_H2OFF = 61; S_CNT = 62; S_KD = 63; S_VD = 64; S_KS = 65; S_VS = 66
S_THR = 67; S_T0 = 68; S_T1 = 69; S_OOFF = 70; S_T2 = 71
S_C16K = 40; S_ROT = 41; S_WBASE = 42; S_XBASE = 43; S_HALF = 44; S_OSET = 45; S_FLG = 46; S_T3 = 47; S_WOB = 48
S_STAMP = 80
S_EP = 84
S_TOK = 86
S_RDY = 88
S_SC = 90
S_MSK = 49

KSLOT = lambda n: (n % 3) * 16384 if n < 16 else 16384 + ((n-16) % 3) * 16384
VSLOT = lambda n: 65536 + KSLOT(n)
WSLOT = lambda n: [49152, 114688, 131072, 147456][n % 4]
WSLOT2 = lambda n: [131072, 147456, 0, 65536][n % 4]
S_DL = 72
PLAG = 6
QSCALE = (1.0/math.sqrt(128.0)) * math.log2(math.e)

KV_FLAGS = E("KVF", "nt")
WQ_FLAGS = E("WQF", "")
WO_FLAGS = E("WOF", "")
X_FLAGS = E("XF", "")
FSF = E("FSF", "sc1")
SC1 = "sc1"
OSF = E("OSF", "sc1")
OLF = E("OLF", "sc1")
PBF16 = E("PBF16", "1") == "1"
O_WS_OFF = 0
PART_WS_OFF = 16*1024*1024
FLAG_WS_OFF = 32*1024*1024
EPOCH_WS_OFF = 33*1024*1024
STAMP_WS_OFF = 64*1024*1024
STAMPS = False
SPIN_CAP = 0x40000

def stamp(a, idx):
    if not STAMPS: return
    if E("STONLY") and idx not in eval(E("STONLY")): return
    a(f"s_memrealtime s[{S_STAMP}:{S_STAMP+1}]")
    if idx > 0: a(f"s_memtime s[{S_STAMP+2}:{S_STAMP+3}]")
    a("s_waitcnt lgkmcnt(0)")
    a(f"v_writelane_b32 v{V_ST}, s{S_STAMP}, {idx}")
    if idx > 0: a(f"v_writelane_b32 v0, s{S_STAMP+2}, {idx}")
def stamp_flush(a):
    if not STAMPS: return
    a(f"s_lshl_b32 s{S_STAMP}, s2, 3")
    a(f"s_lshl_b32 s{S_STAMP+1}, s{S_GRP}, 2")
    a(f"s_add_u32 s{S_STAMP}, s{S_STAMP}, s{S_STAMP+1}")
    a(f"s_add_u32 s{S_STAMP}, s{S_STAMP}, s{S_WV}")
    a(f"s_lshl_b32 s{S_STAMP}, s{S_STAMP}, 8")
    a(f"s_add_u32 s{S_STAMP}, s{S_STAMP}, {STAMP_WS_OFF}")
    a(f"v_lshlrev_b32 v{V_TMP}, 2, v{V_LANE}")
    a(f"buffer_store_dword v{V_ST}, v{V_TMP}, {sr(S_WS,4)}, s{S_STAMP} offen")
    a(f"s_add_u32 s{S_STAMP}, s{S_STAMP}, {256*8*256}")
    a(f"buffer_store_dword v0, v{V_TMP}, {sr(S_WS,4)}, s{S_STAMP} offen")

def setup_srds(a):
    a("s_load_dwordx16 s[36:51], s[0:1], 0")
    a("s_load_dwordx8 s[72:79], s[0:1], 64")
    a("s_load_dwordx2 s[20:21], s[0:1], 96")
    a("s_and_b32 s3, s2, 7")
    a(f"s_and_b32 s{S_SET}, s3, 3")
    if E("MAP", "1") == "1":
        a(f"s_lshr_b32 s{S_BR}, s3, 2")
        a(f"s_lshr_b32 s{S_B}, s2, 5")
    elif E("MAP") == "2":
        a(f"s_bfe_u32 s{S_BR}, s2, 0x10005")
        a(f"s_lshr_b32 s{S_B}, s2, 6")
        a(f"s_and_b32 s3, s3, 4")
        a(f"s_or_b32 s{S_B}, s{S_B}, s3")
    else:
        a(f"s_bfe_u32 s{S_BR}, s2, 0x10005")
        a(f"s_lshr_b32 s{S_B}, s2, 6")
        a(f"s_lshl_b32 s{S_B}, s{S_B}, 1")
        a(f"s_lshr_b32 s3, s3, 2")
        a(f"s_or_b32 s{S_B}, s{S_B}, s3")
    a(f"s_lshr_b32 s{S_J}, s2, 3")
    a(f"s_and_b32 s{S_J}, s{S_J}, 3")
    a(f"v_lshrrev_b32 v2, 6, v0")
    a(f"v_and_b32 v{V_LANE}, 63, v0")
    a(f"v_readfirstlane_b32 s{S_WV}, v2")
    for b, n in ((S_K, 1<<26), (S_V, 1<<26), (S_X, 1<<20), (S_WQ, 1<<22), (S_WS, 287309824), (S_WO, 1<<22), (S_OUT, 1<<21)):
        a(f"s_mov_b32 s{b+2}, {n}")
        a(f"s_mov_b32 s{b+3}, 0x20000")
    a(f"s_lshr_b32 s{S_GRP}, s{S_WV}, 2")
    a(f"s_and_b32 s{S_WV}, s{S_WV}, 3")
    a(f"s_lshl_b32 s{S_LDSW}, s{S_WV}, 12")

def finish_srds(a):
    a("s_waitcnt lgkmcnt(0)")
    a(f"s_cmp_eq_u32 s{S_BR}, 0")
    for b, sa, sb in ((S_X, 36, 46), (S_K, 38, 48), (S_V, 40, 50), (S_WQ, 42, 72), (S_WO, 44, 74)):
        a(f"s_cselect_b32 s{b}, s{sa}, s{sb}")
        a(f"s_cselect_b32 s{b+1}, s{sa+1}, s{sb+1}")
    a(f"s_mov_b32 s{S_OUT}, s76")
    a(f"s_mov_b32 s{S_OUT+1}, s77")
    a(f"s_mov_b32 s{S_DBG}, s78")
    a(f"s_mov_b32 s{S_DBG+1}, s79")
    a(f"s_mov_b32 s{S_DBG+2}, 256")
    a(f"s_mov_b32 s{S_DBG+3}, 0x20000")

def setup_vtype_addr(a, base_imm, xor_sgpr=None):
    t0, t1, t2 = V_TMP, V_TMP+1, V_E+3
    a(f"v_bfe_u32 v{t0}, v{V_LANE}, 2, 3")
    a(f"v_bfe_u32 v{t2}, v{V_LANE}, 2, 2")
    a(f"v_lshrrev_b32 v{t1}, 4, v{V_LANE}")
    a(f"v_lshl_add_u32 v{t1}, v{t1}, 3, v{t2}")
    a(f"v_lshlrev_b32 v{t1}, 8, v{t1}")
    a(f"v_and_b32 v{t2}, 3, v{V_LANE}")
    a(f"v_lshl_add_u32 v{t1}, v{t2}, 3, v{t1}")
    if base_imm: a(f"v_add_u32 v{t1}, {base_imm}, v{t1}")
    if xor_sgpr is not None: a(f"v_xor_b32 v{t0}, s{xor_sgpr}, v{t0}")
    for dt in range(8):
        a(f"v_xor_b32 v{t2}, {dt}, v{t0}")
        a(f"v_lshl_add_u32 v{V_VA+dt}, v{t2}, 5, v{t1}")

def setup_vtype_dma(a, dst, log2stride):
    t0, t1, t2 = V_TMP, V_TMP+1, V_E+3
    a(f"v_lshrrev_b32 v{t0}, 4, v{V_LANE}")
    a(f"v_and_b32 v{t1}, 15, v{V_LANE}")
    a(f"v_lshlrev_b32 v{t2}, 1, v{t0}")
    a(f"v_xor_b32 v{t1}, v{t1}, v{t2}")
    a(f"v_lshlrev_b32 v{t1}, 4, v{t1}")
    a(f"s_lshl_b32 s{S_T0}, s{S_WV}, 4")
    a(f"v_add_u32 v{t0}, s{S_T0}, v{t0}")
    a(f"v_lshl_add_u32 v{dst}, v{t0}, {log2stride}, v{t1}")
    a(f"v_xor_b32 v{dst+1}, 0x80, v{dst}")

def setup_ktype_dma(a, dst, log2stride):
    t0, t1, t2 = V_TMP, V_TMP+1, V_E+3
    a(f"v_lshrrev_b32 v{t0}, 4, v{V_LANE}")
    a(f"v_and_b32 v{t1}, 15, v{V_LANE}")
    a(f"v_xor_b32 v{t1}, v{t1}, v{t0}")
    a(f"s_and_b32 s{S_T0}, s{S_WV}, 1")
    a(f"s_lshl_b32 s{S_T0}, s{S_T0}, 3")
    a(f"v_xor_b32 v{t1}, s{S_T0}, v{t1}")
    a(f"v_lshlrev_b32 v{t1}, 4, v{t1}")
    a(f"s_lshl_b32 s{S_T0}, s{S_WV}, 4")
    a(f"v_add_u32 v{t0}, s{S_T0}, v{t0}")
    a(f"v_lshl_add_u32 v{dst}, v{t0}, {log2stride}, v{t1}")
    a(f"v_xor_b32 v{dst+1}, 0x40, v{dst}")

def row0(a, dst, tmp):
    a(f"v_bfe_u32 v{tmp}, v{V_LANE}, 2, 2")
    a(f"v_and_b32 v{dst}, 3, v{V_LANE}")
    a(f"v_lshl_or_b32 v{dst}, v{tmp}, 3, v{dst}")

def k_addr_setup(a):
    t0, t1, t2 = V_TMP, V_TMP+1, V_E+3
    row0(a, t0, t1)
    a(f"v_lshlrev_b32 v{t0}, 8, v{t0}")
    a(f"v_and_b32 v{t1}, 15, v{V_LANE}")
    a(f"v_lshrrev_b32 v{t2}, 4, v{V_LANE}")
    a(f"v_xor_b32 v{t1}, v{t1}, v{t2}")
    for ks in range(4):
        a(f"v_xor_b32 v{t2}, {4*ks}, v{t1}")
        a(f"v_lshl_add_u32 v{V_KA+ks}, v{t2}, 4, v{t0}")

WIN = [0]
def window(a):
    w = WIN[0]
    if w and len(a.vmq) >= w:
        a(f"s_waitcnt vmcnt({w-1})")
        a.vmq = a.vmq[len(a.vmq)-(w-1):]
def dma(a, srd, voff, soff, ldsbase, gstep, flags, tag, js=(0,1,2,3), setm0=True):
    if setm0: a(f"s_add_u32 m0, s{S_LDSW}, {ldsbase}")
    if gstep == 1024:
        if setm0: a("s_nop 0")
        for j in js:
            window(a)
            a.vm(f"buffer_load_dwordx4 v{voff+(j>>1)}, {sr(srd,4)}, s{soff} offen offset:{j*1024} {flags} lds", tag)
    else:
        for j in js:
            if j == 0: a(f"s_mov_b32 s{S_T0}, s{soff}")
            else: a(f"s_add_u32 s{S_T0}, s{soff}, {j*(gstep-1024)}")
            window(a)
            a.vm(f"buffer_load_dwordx4 v{voff+(j>>1)}, {sr(srd,4)}, s{S_T0} offen offset:{j*1024} {flags} lds", tag)

def mfma(d, x, y, c): return f"v_mfma_f32_16x16x32_bf16 {vr(d,4)}, {vr(x,4)}, {vr(y,4)}, {c if isinstance(c,str) else vr(c,4)}"

def pj_mm(seg, idx):
    if idx < 0: seg, idx = (seg-1) % 8, idx + 16
    ks, dt = idx >> 3, idx & 7
    return [mfma(OREG(dt,qh), V_VF+4*dt, XREG(4*seg+2*ks+qh), OREG(dt,qh)) for qh in range(2)]

class Stream:
    L = 5
    def __init__(s, a, slots, late):
        s.a, s.slots, s.late, s.n, s.nt = a, slots, late, 0, len(slots)-1
        s.seg = [t % 8 for t in range(s.nt)]
        s.skip = 0
        s.xneed = {}
        s.vneed = {}
    def reads(s, n):
        t, idx = n >> 4, n & 15
        if t >= s.nt: return []
        fr = [idx]
        if t in s.late: fr = {0: [], 1: [], 2: [0, 1], 3: [2, 3]}.get(idx, [idx])
        r = []
        for f in fr:
            ks, dt = f >> 3, f & 7
            r += [(f"ds_read_b64_tr_b16 {vr(V_VF+4*dt+2*u,2)}, v{V_VA+dt} offset:{ks*8192+u*1024}", f"f{16*t+f}") for u in range(2)]
        return r
    def done(s): return s.n >= 16*s.nt + s.L
    def unit(s, mid=None, xds=(), valu=()):
        a, n, L = s.a, s.n, s.L
        t, idx = n >> 4, n & 15
        f = n - L
        m = pj_mm(s.seg[f >> 4], f & 15) if f >= s.skip else [None, None]
        r = list(xds) + s.reads(n)
        v = list(valu)
        if t < s.nt:
            if idx == 8: a(f"s_mov_b32 s{S_DL}, {u32(s.slots[t+1]-s.slots[t])}")
            if idx >= 9: v.append(f"v_add_u32 v{V_VA+idx-9}, s{S_DL}, v{V_VA+idx-9}")
        if f in s.vneed: a.vmwait(s.vneed[f])
        if m[0]: a(m[0])
        if mid: mid()
        h = (len(r)+1)//2
        for x in r[:h]: a.ds(*x)
        if v and h < 2: a(v.pop(0))
        if m[1]: a(m[1])
        if 0 <= f+1 < 16*s.nt: a.dswait([f"f{f+1}"] + s.xneed.get(f+1, []))
        for x in r[h:]: a.ds(*x)
        for y in v: a(y)
        if t < s.nt and idx == 15: a(f"v_add_u32 v{V_VA+7}, s{S_DL}, v{V_VA+7}")
        s.n += 1
    def reads_done(s, t):
        return s.n > 16*t + 15 and not any(x.startswith("f") and int(x[1:]) >> 4 == t for x in s.a.lq)

def spread(ops, k, span):
    lo, hi = (len(ops)*k + span-1)//span, (len(ops)*(k+1) + span-1)//span
    return ops[min(lo,len(ops)):min(hi,len(ops))]

def acc_to_frags(a, dstf, scale):
    for f in range(8):
        ks, qh = f >> 1, f & 1
        for h in range(2):
            b = OREG(2*ks+h, qh)
            if scale is None:
                if E("PKL"):
                    for i in range(2): a(f"v_pk_mul_f32 {vr(b+2*i,2)}, {vr(b+2*i,2)}, {sr(S_SC,2)}")
                else:
                    for i in range(4): a(f"v_mul_f32 v{b+i}, s{S_SC}, v{b+i}")
            else:
                if E("PKL"):
                    for i in range(2): a(f"v_pk_mul_f32 {vr(b+2*i,2)}, {vr(b+2*i,2)}, {vr(V_E+2*qh,2)}")
                else:
                    for i in range(4): a(f"v_mul_f32 v{b+i}, v{V_E+2*qh}, v{b+i}")
            for i in range(2): a(f"v_cvt_pk_bf16_f32 v{dstf(f)+2*h+i}, v{b+2*i}, v{b+2*i+1}")
    for op in ("v_permlane32_swap_b32", "v_permlane16_swap_b32"):
        for f in range(8):
            for i in range(2): a(f"{op} v{dstf(f)+i}, v{dstf(f)+2+i}")

def xreduce(a, op, d0, d1, t0, t1):
    for sw in ("v_permlane32_swap_b32", "v_permlane16_swap_b32"):
        a(f"v_mov_b32 v{t0}, v{d0}")
        a(f"v_mov_b32 v{t1}, v{d1}")
        a("s_nop 1")
        a(f"{sw} v{d0}, v{t0}")
        a(f"{sw} v{d1}, v{t1}")
        a(f"{op} v{d0}, v{d0}, v{t0}")
        a(f"{op} v{d1}, v{d1}, v{t1}")

def rowmax(a, S, d, t):
    for qh in range(2):
        b0, b1 = S+4*qh, S+8+4*qh
        a(f"v_max3_f32 v{d+qh}, v{b0}, v{b0+1}, v{b0+2}")
        a(f"v_max3_f32 v{d+qh}, v{d+qh}, v{b0+3}, v{b1}")
        a(f"v_max3_f32 v{d+qh}, v{d+qh}, v{b1+1}, v{b1+2}")
        a(f"v_max_f32 v{d+qh}, v{d+qh}, v{b1+3}")
    xreduce(a, "v_max_f32", d, d+1, t, t+1)

QH = lambda i: (i >> 2) & 1
def pidx(j): return 4*QH(j) + 2*(j >> 3) + ((j & 3) >> 1)

def rare(a, par):
    Sc, Sn, Pc = V_S[par], V_S[1-par], V_P[par]
    d, t = V_E, V_E+2
    a.label(f"L_rare{par}")
    a("s_nop 15")
    rowmax(a, Sc, d, t)
    for qh in range(2): a(f"v_add_f32 v{d+qh}, s{S_THR}, v{d+qh}")
    for qh in range(2): a(f"v_max_f32 v{d+qh}, 0, v{d+qh}")
    for qh in range(2): a(f"v_exp_f32 v{t+qh}, -v{d+qh}")
    for i in range(8): a(f"v_sub_f32 v{V_NM+i}, v{V_NM+i}, v{d+QH(i)}")
    for i in range(16): a(f"v_sub_f32 v{Sc+i}, v{Sc+i}, v{d+QH(i)}")
    for i in range(16): a(f"v_sub_f32 v{Sn+i}, v{Sn+i}, v{d+QH(i)}")
    for i in range(64): a(f"v_mul_f32 v{V_O+i}, v{V_O+i}, v{t+QH(i)}")
    for i in range(8): a(f"v_mul_f32 v{V_LA+i}, v{V_LA+i}, v{t+QH(i)}")
    for i in range(16): a(f"v_exp_f32 v{Sc+i}, v{Sc+i}")
    a("s_nop 0")
    for j in range(1, 16, 2): a(f"v_cvt_pk_bf16_f32 v{Pc+pidx(j)}, v{Sc+j-1}, v{Sc+j}")
    a("s_nop 1")
    a(f"s_setpc_b64 {sr(S_RET,2)}")

def att_pairs(a, par, i0, i1, qk, pv, sm, koff, voff, uid, bar=None):
    Sc, Sn, Pc, Pp = V_S[par], V_S[1-par], V_P[par], V_P[1-par]
    T = V_TMP
    W = [Pc+pidx(2*n+1) for n in range(8)]
    for i in range(i0, i1):
        kt, ks = i >> 2, i & 3
        f = (i + 4) % 8
        mq = [mfma(Sn+8*kt+4*qh, V_KF+4*i, V_Q+4*(2*ks+qh), (V_NM+4*qh) if ks == 0 else Sn+8*kt+4*qh) for qh in range(2)] if qk else [None, None]
        mp = [mfma(OREG(i,qh), V_VF+4*i, Pp+4*qh, OREG(i,qh)) for qh in range(2)] if pv else [None, None]
        ml = [mfma(V_LA+4*qh, V_ONE, Pp+4*qh, V_LA+4*qh) for qh in range(2)] if pv else [None, None]
        ex = [f"v_exp_f32 v{V_E+n}, v{Sc+2*i+n}" for n in range(2)] if sm else [None, None]
        cv = f"v_cvt_pk_bf16_f32 v{W[i]}, v{V_E}, v{V_E+1}" if sm else None
        def e(x):
            if x: a(x)
        def vread():
            o = voff(i)
            if o is None: return
            a.ds(f"ds_read_b64_tr_b16 {vr(V_VF+4*f,2)}, v{V_VA+f} offset:{o}", f"v{f}")
            a.ds(f"ds_read_b64_tr_b16 {vr(V_VF+4*f+2,2)}, v{V_VA+f} offset:{o+1024}", f"v{f}")
        def kread():
            o = koff(i)
            if o is None: return
            a.ds(f"ds_read_b128 {vr(V_KF+4*f,4)}, v{V_KA+(f&3)} offset:{o+(f>>2)*1024}", f"k{f}")
        nxt = [f"k{(i+1)%8}", f"v{(i+1)%8}"]
        if i < 7:
            e(mq[0]); e(ex[0]); e(mq[1])
            if bar and i == i0: bar()
            vread()
            e(mp[0]); a.dswait(nxt); e(ex[1]); e(mp[1]); kread()
            if sm and not pv and koff(i) is None: a("s_nop 0")
            e(cv)
            if i == 5:
                e(ml[1])
                if sm:
                    a(f"v_or3_b32 v{T}, v{W[0]}, v{W[1]}, v{W[2]}")
                    a(f"v_or3_b32 v{T}, v{T}, v{W[3]}, v{W[4]}")
        else:
            e(mq[0]); e(ex[0]); e(mq[1]); a.dswait(nxt); e(ex[1]); e(mp[0]); kread()
            if sm: a(f"v_or3_b32 v{T}, v{T}, v{W[5]}, v{W[6]}")
            e(mp[1]); e(cv)
            if sm:
                a(f"v_bitop3_b32 v{T}, v{T}, v{W[7]}, s{S_MSK} bitop3:0xa8")
                a(f"v_cmp_ne_u32 vcc, 0, v{T}")
            e(ml[0]); vread()
            if sm:
                a(f"s_cbranch_vccnz L_st{uid}")
                a.label(f"L_ok{uid}")
                a.stubs.append((uid, par))

def att_stubs(a):
    for uid, par in a.stubs:
        a.label(f"L_st{uid}")
        a(f"s_call_b64 {sr(S_RET,2)}, L_rare{par}")
        a(f"s_branch L_ok{uid}")

def attention(a):
    S0 = V_S[0]
    a.lq = []
    for u in range(8): a.ds(f"ds_read_b128 {vr(V_KF+4*u,4)}, v{V_KA+(u&3)} offset:{(u>>2)*1024}", f"k{u}")
    for i in range(32): a(f"v_mov_b64 {vr(V_O+2*i,2)}, 0")
    for i in range(4): a(f"v_mov_b64 {vr(V_LA+2*i,2)}, 0")
    for i in range(4): a(f"v_mov_b64 {vr(V_P[1]+2*i,2)}, 0")
    for i in range(8): a(f"v_mov_b64 {vr(V_VF+16+2*i,2)}, 0")
    for i in range(4): a(f"v_mov_b32 v{V_ONE+i}, 0x3f803f80")
    for u in range(8):
        kt, ks = u >> 2, u & 3
        if u % 4 == 0: a.dswait(f"k{u+3}")
        for qh in range(2): a(mfma(S0+8*kt+4*qh, V_KF+4*u, V_Q+4*(2*ks+qh), "0" if ks == 0 else S0+8*kt+4*qh))
    for u in range(4): a.ds(f"ds_read_b128 {vr(V_KF+4*u,4)}, v{V_KA+u} offset:8192", f"k{u}")
    a(f"s_mov_b32 s{S_CNT}, 0")
    a("s_nop 3")
    rowmax(a, S0, V_E, V_E+2)
    for qh in range(2): a(f"v_add_f32 v{V_E+qh}, s{S_THR}, v{V_E+qh}")
    for i in range(8): a(f"v_sub_f32 v{V_NM+i}, 0, v{V_E+QH(i)}")
    for i in range(16): a(f"v_sub_f32 v{S0+i}, v{S0+i}, v{V_E+QH(i)}")
    a.dswait("k0")
    att_pairs(a, 0, 0, 4, True, False, True, lambda i: 8192, lambda i: None, "p")
    lq_entry = list(a.lq)
    a.raw(".p2align 3")
    a.label("L_att_loop")
    for p in range(3):
        ks, vs = ((p+1) % 3)*16384, p*16384
        def bar(p=p):
            a.dsall()
            if p == 0: a("s_waitcnt vmcnt(8)")
            if p == 1: a("s_waitcnt vmcnt(0)")
            a("s_barrier")
        att_pairs(a, 0, 4, 8, True, True, True, lambda i: ks, lambda i: vs, f"a{p}", bar)
        att_pairs(a, 1, 0, 8, True, True, True, lambda i: ks + (i >> 2)*8192, lambda i: vs + (i >> 2)*8192, f"b{p}")
        att_pairs(a, 0, 0, 4, True, True, True, lambda i: ks + 8192, lambda i: vs + 8192, f"c{p}")
    a(f"s_add_u32 s{S_CNT}, s{S_CNT}, 1")
    a(f"s_cmp_lt_u32 s{S_CNT}, 5")
    a("s_cbranch_scc1 L_att_loop")
    def bar():
        a.dsall(); a("s_barrier")
    att_pairs(a, 0, 4, 8, True, True, True, lambda i: None, lambda i: 0, "e0", bar)
    att_pairs(a, 1, 0, 8, False, True, True, lambda i: None, lambda i: (i >> 2)*8192, "e1")
    att_pairs(a, 0, 0, 8, False, True, False, lambda i: None, lambda i: 8192 if i < 4 else None, "e2")
    assert a.lq == [], a.lq

def normalize_o(a):
    a("s_nop 7")
    for i in range(4): a(f"v_rcp_f32 v{V_E+i}, v{V_LA+2*i}")
    a("s_nop 0")
    acc_to_frags(a, XREG, "l")

def store_o(a, ms=range(8)):
    for m in ms:
        if m == 4: a(f"s_add_u32 s{S_OOFF}, s{S_OOFF}, 4096")
        so = S_OOFF
        a.vm(f"buffer_store_dwordx4 {vr(XREG(m),4)}, v{V_L16}, {sr(S_WS,4)}, s{so} offen offset:{(m%4)*1024} {OSF}", "ost")

def load_o(a, head_sgpr_off, first_frag, tag):
    a(f"s_add_u32 s{S_T0}, s{head_sgpr_off}, 4096")
    for m in range(8):
        so = head_sgpr_off if m < 4 else S_T0
        a.vm(f"buffer_load_dwordx4 {vr(XREG(first_frag+m),4)}, v{V_L16}, {sr(S_WS,4)}, s{so} offen offset:{(m%4)*1024} {OLF}", tag + ("a" if m < 4 else "b"))

def set_flag(a, kind, tag="flag"):
    a(f"v_mov_b32 v{V_TMP}, s{S_TOK}")
    a(f"v_mov_b32 v{V_TMP+1}, s{S_TOK+1}")
    a("s_mov_b64 exec, 1")
    a.vm(f"buffer_store_dwordx2 {vr(V_TMP,2)}, off, {sr(S_WS,4)}, s{S_FLG} offset:{kind*128} {FSF if kind < 2 else SC1}", tag)
    a("s_mov_b64 exec, -1")

def poll_issue(a, kind, dst, tag):
    a("s_mov_b64 exec, 7")
    a.vm(f"buffer_load_dwordx2 {vr(dst,2)}, v{V_FL}, {sr(S_WS,4)}, 0 offen offset:{kind*128} sc1", tag)
    a("s_mov_b64 exec, -1")

def poll_spin(a, kind, uid, dst, have_first=False):
    a(f"s_mov_b32 s{S_CNT}, {SPIN_CAP}")
    a("s_mov_b64 exec, 7")
    a(f"s_branch L_poll{'c' if have_first else 'f'}{uid}")
    a.label(f"L_poll{uid}")
    a(f"s_sub_u32 s{S_CNT}, s{S_CNT}, 1")
    a(f"s_cbranch_scc1 L_pollx{uid}")
    if int(E("SLP", "2")): a(f"s_sleep {E('SLP','2')}")
    a.label(f"L_pollf{uid}")
    a(f"buffer_load_dwordx2 {vr(dst,2)}, v{V_FL}, {sr(S_WS,4)}, 0 offen offset:{kind*128} sc1")
    a("s_waitcnt vmcnt(0)")
    a.label(f"L_pollc{uid}")
    a(f"v_cmp_ne_u64 vcc, {sr(S_TOK,2)}, {vr(dst,2)}")
    a(f"s_cbranch_vccnz L_poll{uid}")
    a.label(f"L_pollx{uid}")
    a("s_mov_b64 exec, -1")
    if not have_first: a.vmq = []

def pkg(a, g):
    kn, vn = g+1, g
    if kn <= 31:
        if kn == 16: a(f"s_mov_b32 s{S_KOFF}, s{S_H2OFF}")
        dma(a, S_K, V_DK, S_KOFF, KSLOT(kn), 1024, KV_FLAGS, f"p{g}")
        a(f"s_add_u32 s{S_KOFF}, s{S_KOFF}, 16384")
    if 0 <= vn <= 31:
        if vn == 16: a(f"s_mov_b32 s{S_VOFF}, s{S_H2OFF}")
        dma(a, S_V, V_DV, S_VOFF, VSLOT(vn), 1024, KV_FLAGS, f"p{g}")
        a(f"s_add_u32 s{S_VOFF}, s{S_VOFF}, 16384")

XS = [(VSLOT(1), WSLOT(0)), (WSLOT(3), VSLOT(2)), (VSLOT(0), KSLOT(2)), (WSLOT(1), WSLOT(2))]
W1S = [WSLOT(1), WSLOT(2), KSLOT(0), KSLOT(1), VSLOT(1), WSLOT(0), WSLOT(3), VSLOT(2)]
SLOT = {f"X{q}{'ab'[h]}": XS[q][h] for q in range(4) for h in range(2)}
SLOT.update({f"A{i}": W1S[i] for i in range(8)})
SLOT.update({f"K{i}": KSLOT(i) for i in range(3)}); SLOT.update({f"V{i}": VSLOT(i) for i in range(2)})
FREE = {"A4": 1, "A5": 1, "X3a": 1, "X3b": 2, "A6": 3, "A7": 3, "K0": 3, "K1": 4, "V0": 5, "K2": 5, "V1": 5}

def x_addr_move(a, q, prev_q):
    pa, pb = XS[prev_q] if prev_q is not None else (0, 0)
    a(f"s_cmp_lt_u32 s{S_WV}, 2")
    a(f"s_mov_b32 s{S_T1}, {u32(XS[q][0]-pa)}")
    a(f"s_cselect_b32 s{S_T1}, s{S_T1}, {u32(XS[q][1]-pb)}")
    if prev_q is None: a(f"s_add_u32 s{S_T1}, s{S_T1}, s{S_HALF}")
    for m in range(4): a(f"v_add_u32 v{V_KA+m}, s{S_T1}, v{V_KA+m}")
def x_frag_issue(a, q):
    for f in range(8): a(f"ds_read_b128 {vr(XREG(8*q+f),4)}, v{V_KA+(f>>1)} offset:{(f&1)*1024}")
def x_addr_finish(a, kbase):
    a(f"s_cmp_lt_u32 s{S_WV}, 2")
    a(f"s_mov_b32 s{S_T1}, {u32(kbase-XS[3][0])}")
    a(f"s_cselect_b32 s{S_T1}, s{S_T1}, {u32(kbase-XS[3][1])}")
    a(f"s_sub_u32 s{S_T1}, s{S_T1}, s{S_HALF}")
    for m in range(4): a(f"v_add_u32 v{V_KA+m}, s{S_T1}, v{V_KA+m}")

def own_o_lds_addr(a, dst):
    a(f"s_cmp_lt_u32 s{S_WV}, 2")
    a(f"s_mov_b32 s{S_T1}, {VSLOT(30)}")
    a(f"s_cselect_b32 s{S_T1}, s{S_T1}, {KSLOT(31)}")
    a(f"s_add_u32 s{S_T1}, s{S_T1}, s{S_HALF}")
    a(f"v_add_u32 v{dst}, s{S_T1}, v{V_L16}")

def tspin(a, us, uid):
    a.label(f"L_ts{uid}")
    a("s_sleep 2")
    a("s_memrealtime s[94:95]")
    a("s_waitcnt lgkmcnt(0)")
    a("s_sub_u32 s94, s94, s92")
    a(f"s_cmp_lt_u32 s94, {int(us)*100}")
    a(f"s_cbranch_scc1 L_ts{uid}")

def q_finalize(a):
    a(f"s_mov_b32 s{S_SC}, {f2u(QSCALE):#x}")
    a(f"s_mov_b32 s{S_SC+1}, {f2u(QSCALE):#x}")
    a("s_nop 3")
    acc_to_frags(a, lambda f: V_Q+4*f, None)

def kernel(a, name):
    a.raw(f".globl {name}"); a.raw(".p2align 8"); a.raw(f".type {name},@function"); a.label(name)
    a("s_cmp_ge_u32 s2, 256")
    a("s_cbranch_scc1 L_end")
    if STAMPS: a(f"v_mov_b32 v{V_ST}, 0")
    stamp(a, 0)
    if E("ENDSPIN") or E("MIDSPIN") or E("LATESPIN"): a("s_memrealtime s[92:93]")
    setup_srds(a)
    a(f"s_lshl_b32 s{S_T1}, s{S_SET}, 3")
    a(f"s_add_u32 s{S_T1}, s{S_T1}, s{S_J}")
    a(f"s_lshl_b32 s{S_T2}, s{S_B}, 5")
    a(f"s_add_u32 s{S_T2}, s{S_T2}, s{S_T1}")
    a(f"s_lshl_b32 s{S_KOFF}, s{S_T2}, 18")
    a(f"s_mov_b32 s{S_VOFF}, s{S_KOFF}")
    a(f"s_add_u32 s{S_H2OFF}, s{S_KOFF}, {4<<18}")
    a(f"s_mov_b32 s{S_THR}, 0x41700000")
    a(f"v_lshlrev_b32 v{V_L16}, 4, v{V_LANE}")
    setup_ktype_dma(a, V_E, 10)
    setup_vtype_dma(a, V_DW, 13)
    finish_srds(a)
    stamp(a, 1)
    a(f"s_lshl_b32 s{S_WBASE}, s{S_T1}, 8")
    a(f"s_lshl_b32 s{S_XBASE}, s{S_B}, 17")
    if E("MAP") == "3":
        a(f"s_lshr_b32 s{S_ROT}, s{S_B}, 1")
        a(f"s_add_u32 s{S_ROT}, s{S_J}, s{S_ROT}")
    else: a(f"s_add_u32 s{S_ROT}, s{S_J}, s{S_B}")
    a(f"s_and_b32 s{S_ROT}, s{S_ROT}, {3 if E('NOROT') is None else 0}")
    def common2():
        a(f"s_lshl_b32 s{S_T0}, s{S_BR}, 3")
        a(f"s_add_u32 s{S_T0}, s{S_T0}, s{S_B}")
        a(f"s_lshl_b32 s{S_T3}, s{S_T0}, 7")
        a(f"s_add_u32 s{S_T3}, s{S_T3}, {EPOCH_WS_OFF}")
        a(f"s_load_dwordx2 {sr(S_EP,2)}, {sr(S_WS,2)}, s{S_T3}")
        a(f"s_lshl_b32 s{S_T0}, s{S_T0}, 2")
        a(f"s_add_u32 s{S_T0}, s{S_T0}, s{S_SET}")
        a(f"s_lshl_b32 s{S_T0}, s{S_T0}, 5")
        a(f"s_add_u32 s{S_T0}, s{S_T0}, s{S_WV}")
        a(f"s_lshl_b32 s{S_OSET}, s{S_T0}, 13")
        a(f"s_lshl_b32 s{S_T0}, s{S_GRP}, 2")
        a(f"s_add_u32 s{S_T0}, s{S_T0}, s{S_J}")
        a(f"s_lshl_b32 s{S_T0}, s{S_T0}, 15")
        a(f"s_add_u32 s{S_OOFF}, s{S_OSET}, s{S_T0}")
        a(f"s_lshl_b32 s{S_T0}, s2, 2")
        a(f"s_add_u32 s{S_T0}, s{S_T0}, s{S_WV}")
        a(f"s_mul_i32 s{S_FLG}, s{S_T0}, 384")
        a(f"s_add_u32 s{S_FLG}, s{S_FLG}, {FLAG_WS_OFF}")
        a(f"s_mov_b32 s{S_MSK}, 0x40004000")
        a(f"s_and_b32 s{S_HALF}, s{S_WV}, 1")
        a(f"s_lshl_b32 s{S_HALF}, s{S_HALF}, 13")
        a(f"s_lshl_b32 s{S_WOB}, s{S_SET}, 20")
        a(f"s_lshl_b32 s{S_T0}, s{S_J}, 8")
        a(f"s_add_u32 s{S_WOB}, s{S_WOB}, s{S_T0}")
        setup_vtype_dma(a, V_DV, 8)
        setup_ktype_dma(a, V_DK, 8)
        k_addr_setup(a)
        x_addr_move(a, 0, None)
    def token():
        a("s_waitcnt lgkmcnt(0)")
        a(f"s_mul_i32 s{S_TOK}, s{S_EP}, 0x9E3779B1")
        a(f"s_add_u32 s{S_TOK}, s{S_TOK}, 0x7F4A7C15")
        a(f"s_mul_i32 s{S_TOK+1}, s{S_EP+1}, 0x85EBCA6D")
        a(f"s_add_u32 s{S_TOK+1}, s{S_TOK+1}, 0x27D4EB2F")

    TS = {t: WSLOT2(t) for t in range(6)}
    TS.update({8: KSLOT(29), 9: KSLOT(30), 6: VSLOT(29), 7: VSLOT(31), 10: KSLOT(29), 11: KSLOT(30), 12: TS[2], 13: TS[3], 14: TS[4], 15: TS[5]})
    ORD = [0, 1, 8, 9, 2, 3, 4, 5, 6, 7, 10, 11, 12, 13, 14, 15]
    def wo_off(t):
        d = (t >> 1) & 3
        a(f"s_add_u32 s{S_WOFF}, s{S_J}, {d}")
        a(f"s_and_b32 s{S_WOFF}, s{S_WOFF}, 3")
        a(f"s_lshl_b32 s{S_WOFF}, s{S_WOFF}, 17")
        a(f"s_add_u32 s{S_WOFF}, s{S_WOFF}, s{S_WOB}")
        add = (t >> 3)*4*131072 + (t & 1)*65536
        if add: a(f"s_add_u32 s{S_WOFF}, s{S_WOFF}, {add}")
    def wo_ops(t):
        def op(j):
            if j == 0: wo_off(t)
            dma(a, S_WO, V_DW, S_WOFF, TS[t], 4096, WO_FLAGS, f"wo{t}", (j,))
        return [lambda j=j: op(j) for j in range(4)]
    def rot_off(dst, q, shift, base, add=0):
        a(f"s_add_u32 s{dst}, s{S_ROT}, {q}")
        a(f"s_and_b32 s{dst}, s{dst}, 3")
        a(f"s_lshl_b32 s{dst}, s{dst}, {shift}")
        a(f"s_add_u32 s{dst}, s{dst}, s{base}")
        if add: a(f"s_add_u32 s{dst}, s{dst}, {add}")
    def kv_ops(kind, n, tag):
        srd, voff, soff, slot = (S_K, V_DK, S_KOFF, KSLOT(n)) if kind == "K" else (S_V, V_DV, S_VOFF, VSLOT(n))
        def op(j):
            if j == 0 and n == 16: a(f"s_mov_b32 s{soff}, s{S_H2OFF}")
            dma(a, srd, voff, soff, slot, 1024, KV_FLAGS, tag, (j,), setm0=(j == 0))
            if j == 3: a(f"s_add_u32 s{soff}, s{soff}, 16384")
        return [lambda j=j: op(j) for j in range(4)]
    def pkg_ops(g):
        return (kv_ops("K", g+1, f"p{g}") if g+1 <= 31 else []) + kv_ops("V", g, f"p{g}")
    def tile_ops(nm):
        if nm[0] == "K": return kv_ops("K", int(nm[1]), f"p{int(nm[1])-1}")
        if nm[0] == "V": return kv_ops("V", int(nm[1]), f"p{nm[1]}")
        def op(j):
            if nm[0] == "X":
                if j == 0: rot_off(S_XOFF, int(nm[1]), 8, S_XBASE, 65536 if nm[2] == "b" else 0)
                dma(a, S_X, V_E, S_XOFF, SLOT[nm], 4096, X_FLAGS, nm, (j,))
            else:
                i = int(nm[1])
                if j == 0: rot_off(S_WOFF, i//2, 20, S_WBASE, (i % 2)*64*8192 + (1024 if nm[0] == "B" else 0))
                dma(a, S_WQ, V_DW, S_WOFF, SLOT[nm] if nm[0] == "A" else WSLOT(i), 4*8192, WQ_FLAGS, nm, (j,))
        return [lambda j=j: op(j) for j in range(4)]
    planA = eval(E("SUA", "{-1:['A0','A1'],0:['A2','A3'],1:['A4'],2:['A5'],3:['A6'],4:['A7']}"))
    planB = eval(E("SUB", "{-1:['X1a'],0:['X1b'],1:['X2a','X2b'],2:['X3a'],3:['X3b'],4:['K0'],5:['K1'],6:['V0'],8:['K2','V1']}"))
    for pl in (planA, planB):
        for k, l in pl.items():
            for nm in l: assert FREE.get(nm, -1) <= k, (nm, k)

    rot_off(S_XOFF, 0, 8, S_XBASE)
    a(f"s_lshl_b32 s{S_T0}, s{S_GRP}, 16")
    a(f"s_add_u32 s{S_XOFF}, s{S_XOFF}, s{S_T0}")
    a(f"s_cmp_eq_u32 s{S_GRP}, 0")
    a(f"s_mov_b32 s{S_T0}, {XS[0][0]}")
    a(f"s_cselect_b32 s{S_T0}, s{S_T0}, {XS[0][1]}")
    a(f"s_add_u32 m0, s{S_LDSW}, s{S_T0}")
    for jj in range(4):
        if jj: a(f"s_add_u32 s{S_XOFF}, s{S_XOFF}, 3072")
        else: a("s_nop 0")
        a(f"buffer_load_dwordx4 v{V_E+(jj>>1)}, {sr(S_X,4)}, s{S_XOFF} offen offset:{jj*1024} {X_FLAGS} lds")
    a(f"s_cmp_eq_u32 s{S_GRP}, 0")
    a("s_cbranch_scc0 L_grpB")

    a.vmq = ["X0a"]*4
    for nm in planA[-1][:1]:
        for op in tile_ops(nm): op()
    if not E("NOPF"):
        a(f"s_getpc_b64 {sr(S_SC,2)}")
        a.label("L_pc")
        a(f"s_sub_u32 s{S_SC}, s{S_SC}, L_pc-{name}")
        a(f"s_subb_u32 s{S_SC+1}, s{S_SC+1}, 0")
        a(f"s_lshr_b32 s{S_T0}, s2, 3")
        a(f"s_lshl_b32 s{S_T0}, s{S_T0}, 2")
        a(f"s_add_u32 s{S_T0}, s{S_T0}, s{S_WV}")
        a(f"s_lshl_b32 s{S_T0}, s{S_T0}, 2")
        a(f"v_and_b32 v{V_TMP}, 3, v{V_LANE}")
        a(f"v_add_lshl_u32 v{V_TMP}, v{V_TMP}, s{S_T0}, 7")
        a(f"v_min_u32 v{V_TMP}, L_code_end-{name}-4, v{V_TMP}")
        a.vm(f"global_load_dword v{V_Q}, v{V_TMP}, {sr(S_SC,2)}", "A1")
    common2()
    setup_vtype_addr(a, W1S[0])
    for i in range(32): a(f"v_mov_b64 {vr(V_O+2*i,2)}, 0")
    for nm in planA[-1][1:]:
        for op in tile_ops(nm): op()
    token()
    a.lq = []
    st = Stream(a, W1S + [VSLOT(0)], set(range(8)))
    for n in range(128):
        seg, idx = n >> 4, n & 15
        st.xneed[n] = [f"x{4*seg+2*(idx>>3)}", f"x{4*seg+2*(idx>>3)+1}"]
    opsA = {k: sum((tile_ops(nm) for nm in l), []) for k, l in planA.items() if k >= 0}
    st.n = 2
    while not st.done():
        n = st.n; seg, idx = n >> 4, n & 15
        xds, valu = [], []
        if seg < 8 and seg % 2 == 0:
            for f in {2: [0, 1]}.get(idx, [idx-2] if 4 <= idx < 10 else []):
                xds.append((f"ds_read_b128 {vr(XREG(4*seg+f),4)}, v{V_KA+(f>>1)} offset:{(f&1)*1024}", f"x{4*seg+f}"))
            if idx == 12:
                q = seg // 2
                tgt = XS[q+1] if q < 3 else (KSLOT(0), KSLOT(0))
                a(f"s_cmp_lt_u32 s{S_WV}, 2")
                a(f"s_mov_b32 s{S_DL+1}, {u32(tgt[0]-XS[q][0])}")
                a(f"s_cselect_b32 s{S_DL+1}, s{S_DL+1}, {u32(tgt[1]-XS[q][1])}")
                if q == 3: a(f"s_sub_u32 s{S_DL+1}, s{S_DL+1}, s{S_HALF}")
        if seg < 8 and seg % 2 == 1 and 4 <= idx < 8: valu.append(f"v_add_u32 v{V_KA+idx-4}, s{S_DL+1}, v{V_KA+idx-4}")
        def bar():
            if a.lq: a.dsall()
            a.vmwait([f"A{seg}", f"X{seg//2}a", f"X{seg//2}b"])
            a("s_barrier")
        st.unit(bar if idx == 2 else None, xds, valu)
        for op in spread(opsA.get((n-2) >> 4, []), (n-2) & 15, 14): op()
    assert a.vmq == [] and a.lq == []
    q_finalize(a)
    a.label("L_att_entry")
    attention(a)
    a(f"s_cmp_eq_u32 s{S_GRP}, 0")
    a("s_cbranch_scc0 L_B_fin")
    a.vmq = []; a.lq = []
    a(f"s_add_u32 s{S_KOFF}, s{S_H2OFF}, {3*16384}")
    a(f"s_add_u32 s{S_VOFF}, s{S_H2OFF}, {2*16384}")
    def o_ops(d, second, tag):
        def op(m):
            if m == 0:
                a(f"s_add_u32 s{S_T1}, s{S_J}, {d}")
                a(f"s_and_b32 s{S_T1}, s{S_T1}, 3")
                a(f"s_lshl_b32 s{S_T1}, s{S_T1}, 15")
                a(f"s_add_u32 s{S_T1}, s{S_T1}, s{S_OSET}")
                if second: a(f"s_add_u32 s{S_T1}, s{S_T1}, {4*32768}")
            if m == 4: a(f"s_add_u32 s{S_T1}, s{S_T1}, 4096")
            a.vm(f"buffer_load_dwordx4 {vr(XREG(8*d+m),4)}, v{V_L16}, {sr(S_WS,4)}, s{S_T1} offen offset:{(m%4)*1024} {OLF}", f"{tag}{4*d+m//2}")
        return [lambda m=m: op(m) for m in range(8)]
    PUB = int(E("PUB", "30"))
    normalize_o(a)
    setup_vtype_dma(a, V_DW, 10)
    for i in range(32): a(f"v_mov_b64 {vr(V_O+2*i,2)}, 0")
    a(f"s_lshl_b32 s{S_T1}, s{S_SET}, 1")
    setup_vtype_addr(a, TS[0], xor_sgpr=S_T1)
    a(f"s_add_u32 s{S_T1}, s{S_J}, 1")
    a(f"v_add_u32 v{V_FL}, s{S_T1}, v{V_LANE}")
    a(f"v_and_b32 v{V_FL}, 3, v{V_FL}")
    a(f"v_lshlrev_b32 v{V_FL}, 5, v{V_FL}")
    a(f"s_and_b32 s{S_T1}, s2, 0xe7")
    a(f"s_lshl_b32 s{S_T1}, s{S_T1}, 2")
    a(f"s_add_u32 s{S_T1}, s{S_T1}, s{S_WV}")
    a(f"v_add_u32 v{V_FL}, s{S_T1}, v{V_FL}")
    a(f"v_mul_u32_u24 v{V_FL}, 384, v{V_FL}")
    a(f"v_add_u32 v{V_FL}, {FLAG_WS_OFF}, v{V_FL}")
    own_o_lds_addr(a, V_E+2)
    st = Stream(a, [TS[t] for t in ORD] + [TS[15]], {4, 6, 8})
    st.seg = [t % 8 for t in ORD]
    for p, t in enumerate(ORD):
        if t % 8 >= 2:
            for ks in range(2): st.vneed[16*p+8*ks] = [f"{'oa' if t < 8 else 'ob'}{2*(t%8)+ks}"]
        elif t >= 8:
            for ks in range(2): st.xneed[16*p+8*ks] = [f"x{4*(t%8)+2*ks}", f"x{4*(t%8)+2*ks+1}"]
    wops = sum((wo_ops(t) for t in range(6)), [])
    units_at = {18: 4, 19: 6, 20: 6, 21: 6, 22: 6, 23: 4}
    def wpf_ops():
        def op(r):
            if r == 0:
                a(f"v_lshrrev_b32 v{V_L}, 4, v{V_LANE}")
                a(f"v_and_b32 v{V_L+1}, 15, v{V_LANE}")
                a(f"v_lshlrev_b32 v{V_L+1}, 4, v{V_L+1}")
                a(f"v_lshl_add_u32 v{V_L}, v{V_L}, 10, v{V_L+1}")
                a(f"s_add_u32 s{S_VD}, s{S_J}, s{S_WV}")
                a(f"s_and_b32 s{S_VD}, s{S_VD}, 3")
                a(f"s_lshl_b32 s{S_VD}, s{S_VD}, 17")
                a(f"s_add_u32 s{S_VD}, s{S_VD}, s{S_WOB}")
                a(f"s_lshl_b32 s{S_T0}, s{S_B}, 14")
                a(f"s_add_u32 s{S_VD}, s{S_VD}, s{S_T0}")
                a(f"s_add_u32 s{S_VD}, s{S_VD}, {4*131072}")
            else: a(f"s_add_u32 s{S_VD}, s{S_VD}, 4096")
            window(a)
            a.vm(f"buffer_load_dwordx4 {vr(XREG(8+r),4)}, v{V_L}, {sr(S_WO,4)}, s{S_VD} offen", "wpf")
        return [lambda r=r: op(r) for r in range(4)]
    wpf = wpf_ops() if not E("NOWPF") else []
    wpf_at = eval(E("WPFAT", "{28:2,29:2}"))
    for g in range(16, 32):
        WIN[0] = int(E("WIN2", "0")) if g <= 29 else 0
        tags = [f"p{g}"]
        if g == 18: tags.append("wo0")
        if g == 21: tags.append("wo1")
        if g == 24:
            while st.n < 32 + st.L - 0 and False: st.unit()
            a.dsall()
        a.vmwait(tags)
        if g == 29 and E("LATESPIN"): tspin(a, E("LATESPIN"), "l")
        stamp(a, 2*(g-16)+10)
        a("s_barrier")
        stamp(a, 2*(g-16)+11)
        ops = []
        if g <= 27: ops += wops[2*(g-16):2*(g-16)+2]
        k = wpf_at.get(g, 0); ops += wpf[:k]; wpf = wpf[k:]
        if g + 2 <= 31: ops += pkg_ops(g+2)
        nu = units_at.get(g, 0)
        for k, op in enumerate(ops):
            op()
            for _ in spread(list(range(nu)), k, len(ops)): st.unit()
        WIN[0] = 0
        if g == 24:
            for f in range(32 - st.L, 32):
                for x in pj_mm(1, f & 15): a(x)
            st.skip = 32
        if g == PUB: store_o(a)
        if g == 30:
            for op in wo_ops(8) + wo_ops(9): op()
        if g == 31:
            for op in wo_ops(6): op()
    assert st.n == 32 and not wpf
    a.vmwait("ost"); set_flag(a, 0)
    a.vmwait(["wo8", "wo9"])
    stamp(a, 44)
    a("s_barrier")
    stamp(a, 45)
    for m in range(2): a.ds(f"ds_read_b128 {vr(XREG(m),4)}, v{V_E+2} offset:{m*1024}", f"x{m}")
    tops = {2: wo_ops(7), 4: o_ops(2, False, "oa") + wo_ops(10), 5: o_ops(3, False, "oa") + wo_ops(11),
            6: wo_ops(12), 7: wo_ops(13), 8: wo_ops(14), 9: o_ops(2, True, "ob") + wo_ops(15), 10: o_ops(3, True, "ob")}
    bars = {(4, 2): ["pl1"], (6, 2): ["wo7"], (8, 2): ["pl2"], (10, 0): ["wo13"], (14, 0): ["wo15"]}
    while not st.done():
        n = st.n; t, idx = n >> 4, n & 15
        xds = []
        if t == 2 and 2 <= idx < 8:
            xds.append((f"ds_read_b128 {vr(XREG(idx),4)}, v{V_E+2} offset:{idx*1024}", f"x{idx}"))
        def bar():
            if idx == 2 and a.lq: a.dsall()
            a.vmwait(bars[(t, idx)])
            stamp(a, {4: 46, 6: 48, 8: 49, 10: 56, 14: 57}[t])
            if t == 4 and not E("BARFIRST"):
                poll_spin(a, 0, "1", V_E, have_first=True)
                stamp(a, 47)
                for op in o_ops(1, False, "oa"): op()
            a("s_barrier")
            if t == 8:
                poll_spin(a, 1, "2", V_E, have_first=True)
                stamp(a, 51)
                for op in o_ops(1, True, "ob"): op()
        st.unit(bar if (t, idx) in bars else None, xds)
        if t == 3 and idx == 6: poll_issue(a, 0, V_E, "pl1")
        if t == 7 and idx == 6: poll_issue(a, 1, V_E, "pl2")
        lo = {10: 6}.get(t, 2 if t in st.late else 0)
        if idx >= lo:
            for op in spread(tops.get(t, []), idx-lo, 14-lo): op()
    assert a.lq == []
    stamp(a, 52)
    a(f"s_lshl_b32 s{S_T1}, s2, 2")
    a(f"s_add_u32 s{S_T1}, s{S_T1}, s{S_WV}")
    a(f"s_lshl_b32 s{S_T1}, s{S_T1}, 14")
    a(f"s_add_u32 s{S_T1}, s{S_T1}, {PART_WS_OFF}")
    a(f"v_add_u32 v{V_FL}, 1, v{V_LANE}")
    a(f"v_and_b32 v{V_FL}, 3, v{V_FL}")
    a(f"v_xor_b32 v{V_FL}, s2, v{V_FL}")
    a(f"v_lshlrev_b32 v{V_FL}, 2, v{V_FL}")
    a(f"v_add_u32 v{V_FL}, s{S_WV}, v{V_FL}")
    a(f"v_mul_u32_u24 v{V_FL}, 384, v{V_FL}")
    a(f"v_add_u32 v{V_FL}, {FLAG_WS_OFF}, v{V_FL}")
    PB = 128
    for beta in (1, 2, 3):
        a(f"s_add_u32 s{S_T1}, s{S_T1}, 4096")
        if PBF16:
            for i in range(8): a(f"v_cvt_pk_bf16_f32 v{PB+8*beta+i}, v{V_O+16*beta+2*i}, v{V_O+16*beta+2*i+1}")
            for i in range(2):
                a.vm(f"buffer_store_dwordx4 {vr(PB+8*beta+4*i,4)}, v{V_L16}, {sr(S_WS,4)}, s{S_T1} offen offset:{i*1024} sc1", "pst")
        else:
            for i in range(4):
                a.vm(f"buffer_store_dwordx4 {vr(V_O+16*beta+4*i,4)}, v{V_L16}, {sr(S_WS,4)}, s{S_T1} offen offset:{i*1024} sc1", "pst")
    t0, t1 = V_E+2, V_E+3
    row0(a, t0, t1)
    a(f"v_and_b32 v{t1}, 0x30, v{V_LANE}")
    a(f"v_lshl_add_u32 v{t0}, v{t0}, 11, v{t1}")
    a(f"s_lshl_b32 s{S_T2}, s{S_B}, 2")
    a(f"s_add_u32 s{S_T2}, s{S_T2}, s{S_WV}")
    a(f"s_lshl_b32 s{S_T2}, s{S_T2}, 16")
    a(f"s_lshl_b32 s{S_T0}, s{S_BR}, 10")
    a(f"s_add_u32 s{S_T2}, s{S_T2}, s{S_T0}")
    a(f"s_lshl_b32 s{S_T0}, s{S_J}, 8")
    a(f"s_add_u32 s{S_T2}, s{S_T2}, s{S_T0}")
    a(f"s_lshl_b32 s{S_T0}, s{S_SET}, 6")
    a(f"s_add_u32 s{S_T2}, s{S_T2}, s{S_T0}")
    a(f"s_add_u32 s{S_KD}, s{S_T2}, 8192")
    a.vmall()
    stamp(a, 53)
    set_flag(a, 2)
    poll_spin(a, 2, "3", V_E)
    stamp(a, 54)
    for beta in (1, 2, 3):
        a(f"s_xor_b32 s{S_T1}, s2, {beta}")
        a(f"s_lshl_b32 s{S_T1}, s{S_T1}, 2")
        a(f"s_add_u32 s{S_T1}, s{S_T1}, s{S_WV}")
        a(f"s_lshl_b32 s{S_T1}, s{S_T1}, 14")
        a(f"s_add_u32 s{S_T1}, s{S_T1}, {PART_WS_OFF + beta*4096}")
        if PBF16:
            for i in range(2):
                a.vm(f"buffer_load_dwordx4 {vr(PB+8*beta+4*i,4)}, v{V_L16}, {sr(S_WS,4)}, s{S_T1} offen offset:{i*1024} sc1", f"pl{beta}")
        else:
            for i in range(4):
                a.vm(f"buffer_load_dwordx4 {vr(V_O+16*beta+4*i,4)}, v{V_L16}, {sr(S_WS,4)}, s{S_T1} offen offset:{i*1024} sc1", f"pl{beta}")
    for beta in (1, 2, 3):
        a.vmwait(f"pl{beta}")
        if PBF16:
            for i in range(8):
                a(f"v_lshlrev_b32 v{V_TMP}, 16, v{PB+8*beta+i}")
                a(f"v_and_b32 v{V_TMP+1}, 0xffff0000, v{PB+8*beta+i}")
                a(f"v_add_f32 v{V_O+2*i}, v{V_O+2*i}, v{V_TMP}")
                a(f"v_add_f32 v{V_O+2*i+1}, v{V_O+2*i+1}, v{V_TMP+1}")
        else:
            for i in range(16): a(f"v_add_f32 v{V_O+i}, v{V_O+i}, v{V_O+16*beta+i}")
    for qh in range(2):
        for h in range(2):
            for i in range(2): a(f"v_cvt_pk_bf16_f32 v{V_Q+4*qh+2*h+i}, v{OREG(h,qh)+2*i}, v{OREG(h,qh)+2*i+1}")
    a("s_nop 1")
    for op in ("v_permlane32_swap_b32", "v_permlane16_swap_b32"):
        for qh in range(2):
            for i in range(2): a(f"{op} v{V_Q+4*qh+i}, v{V_Q+4*qh+2+i}")
    a(f"buffer_store_dwordx4 {vr(V_Q,4)}, v{t0}, {sr(S_OUT,4)}, s{S_T2} offen")
    a(f"buffer_store_dwordx4 {vr(V_Q+4,4)}, v{t0}, {sr(S_OUT,4)}, s{S_KD} offen")
    a(f"s_or_b32 s{S_T0}, s{S_SET}, s{S_J}")
    a(f"s_or_b32 s{S_T0}, s{S_T0}, s{S_WV}")
    a("s_cbranch_scc1 L_noep")
    a(f"v_mov_b32 v{V_TMP}, s{S_TOK}")
    a(f"v_mov_b32 v{V_TMP+1}, s{S_TOK+1}")
    a("s_mov_b64 exec, 1")
    a(f"buffer_store_dwordx2 {vr(V_TMP,2)}, off, {sr(S_WS,4)}, s{S_T3} sc1")
    a("s_mov_b64 exec, -1")
    a.label("L_noep")
    if E("ENDSPIN"):
        if E("ENDWG"):
            lo, hi = eval(E("ENDWG"))
            a(f"s_cmp_lt_u32 s2, {lo}"); a("s_cbranch_scc1 L_nospin"); a(f"s_cmp_gt_u32 s2, {hi}"); a("s_cbranch_scc1 L_nospin")
        tspin(a, E("ENDSPIN"), "e")
        a.label("L_nospin")
    if STAMPS: a("s_waitcnt vmcnt(0)")
    stamp(a, 55)
    stamp_flush(a)
    a("s_endpgm")

    a.label("L_B_fin")
    a.vmq = []
    stamp(a, 58)
    normalize_o(a)
    store_o(a)
    own_o_lds_addr(a, V_E)
    for m in range(8): a(f"ds_write_b128 v{V_E}, {vr(XREG(m),4)} offset:{m*1024}")
    a("s_waitcnt lgkmcnt(0)")
    stamp(a, 59)
    a("s_barrier")
    stamp(a, 60)
    a.vmall()
    set_flag(a, 1)
    stamp(a, 61)
    stamp_flush(a)
    a("s_endpgm")

    a.label("L_grpB")
    a.vmq = ["X0b"]*4
    common2()
    for nm in planB[-1]:
        for op in tile_ops(nm): op()
    setup_vtype_addr(a, WSLOT(0))
    for r in range(32): a(f"v_mov_b64 {vr(V_O+2*r,2)}, 0")
    token()
    for i in range(8):
        a.vmwait([f"X{i//2}a", f"X{i//2}b"])
        a("s_barrier")
        stamp(a, 2+i)
        if i % 2 == 0: x_frag_issue(a, i//2)
        for nm in planB.get(i, []):
            for op in tile_ops(nm): op()
        if i % 2 == 0:
            a("s_waitcnt lgkmcnt(0)")
            if i < 6: x_addr_move(a, i//2+1, i//2)
            else: x_addr_finish(a, KSLOT(16))
    a.vmwait("p-1")
    stamp(a, 10)
    a("s_barrier")
    stamp(a, 11)
    for nm in planB.get(8, []):
        for op in tile_ops(nm): op()
    a.lq = []
    st = Stream(a, [WSLOT(i) for i in range(8)] + [VSLOT(16)], set())
    w2 = sum((tile_ops(f"B{i}") for i in range(8)), [])
    w2n = eval(E("W2N", "{-1:2,0:2,1:4,2:2,3:2,4:4,5:2,6:2,7:2,8:2,9:4,10:2,11:2}"))
    UPS = int(E("UPS", "10")); U0 = int(E("U0", "1"))
    w2p = 0
    for op in w2[:w2n.get(-1, 0)]: op()
    w2p = w2n.get(-1, 0)
    for g in range(0, 16):
        WIN[0] = int(E("WIN1", "0"))
        nu = UPS if U0 <= g <= 13 else 0
        nu = min(nu, 128 + st.L - st.n)
        tags = [f"p{g}"]
        for t in range(8):
            if st.n <= 16*t + 15 and 16*t < st.n + nu:
                assert w2p >= 4*t + 4, (g, t, w2p)
                tags.append(f"B{t}")
        free_tiles = [t for t in range(8) if st.reads_done(t)]
        a.vmwait(tags)
        if g == 1 and E("MIDSPIN"): tspin(a, E("MIDSPIN"), "m")
        stamp(a, 2*g+12)
        a("s_barrier")
        stamp(a, 2*g+13)
        k = w2n.get(g, 0)
        for x in range(w2p, w2p+k): assert x//4 < 4 or (x//4 - 4) in free_tiles, (g, x)
        ops = w2[w2p:w2p+k] + pkg_ops(g+2); w2p += k
        for kk, op in enumerate(ops):
            op()
            for _ in spread(list(range(nu)), kk, len(ops)): st.unit()
        if g == 14:
            while not st.done(): st.unit()
            q_finalize(a)
    assert w2p == 32 and a.lq == []
    WIN[0] = 0
    a("s_branch L_att_entry")
    a.label("L_end")
    a("s_endpgm")
    att_stubs(a)
    rare(a, 0); rare(a, 1)
    a.label("L_code_end")

def main(fn):
    a = Asm()
    name = NAME + "_kernel"
    a.raw(f"; @launch grid=(256,1,1) block=(512,1,1) lds=163840")
    a.raw('.amdgcn_target "amdgcn-amd-amdhsa--gfx950"')
    a.raw(".text")
    kernel(a, name)
    a.raw('.section .rodata,"a"')
    a.raw(".p2align 6")
    a.raw(f".amdhsa_kernel {name}")
    a.raw(f"  .amdhsa_next_free_vgpr 256"); a.raw(f"  .amdhsa_next_free_sgpr 96"); a.raw(f"  .amdhsa_accum_offset 256")
    a.raw("  .amdhsa_group_segment_fixed_size 0"); a.raw("  .amdhsa_kernarg_size 104"); a.raw("  .amdhsa_user_sgpr_count 2")
    a.raw("  .amdhsa_user_sgpr_kernarg_segment_ptr 1"); a.raw("  .amdhsa_system_sgpr_workgroup_id_x 1"); a.raw(".end_amdhsa_kernel")
    open(fn, "w").write(a.text())

if __name__ == "__main__":
    if len(sys.argv) > 2 and sys.argv[2] == "stamps": STAMPS = True
    main(sys.argv[1] if len(sys.argv) > 1 else "k3.s")
```

```python
import sys, math, os, struct
NAME = "concat_heads__mha_block_cached__gqa_block_cached__near_ridge"
E = os.environ.get

class Asm:
    def __init__(s):
        s.L = []; s.vmq = []; s.lq = []; s.stubs = []
    def __call__(s, t): s.L.append("  " + " ".join(t.split()))
    def label(s, t): s.L.append(t + ":")
    def raw(s, t): s.L.append(t)
    def vm(s, t, tag):
        s(t); s.vmq.append(tag)
    def vmwait(s, tags):
        if not isinstance(tags, (list, tuple, set)): tags = [tags]
        last = -1
        for i, t in enumerate(s.vmq):
            if t in tags: last = i
        if last < 0: return
        n = len(s.vmq) - 1 - last
        assert n <= 63, n
        s(f"s_waitcnt vmcnt({n})")
        s.vmq = s.vmq[last+1:]
    def vmall(s):
        s("s_waitcnt vmcnt(0)"); s.vmq = []
    def ds(s, t, tag):
        s(t); s.lq.append(tag)
        assert len(s.lq) <= 15, s.lq
    def dswait(s, tags, force=False):
        if not isinstance(tags, (list, tuple, set)): tags = [tags]
        last = -1
        for i, t in enumerate(s.lq):
            if t in tags: last = i
        if last < 0: return
        s(f"s_waitcnt lgkmcnt({len(s.lq) - 1 - last})")
        s.lq = s.lq[last+1:]
    def dsall(s):
        s("s_waitcnt lgkmcnt(0)"); s.lq = []
    def text(s): return "\n".join(s.L) + "\n"

def vr(b, n=1): return f"v{b}" if n == 1 else f"v[{b}:{b+n-1}]"
def sr(b, n=1): return f"s{b}" if n == 1 else f"s[{b}:{b+n-1}]"
def f2u(f): return struct.unpack("<I", struct.pack("<f", f))[0]
def u32(x): return f"{x & 0xffffffff:#x}"

V_LANE = 1
V_KA = 2
V_VA = 6
V_DK = 14
V_DV = 16
V_DW = 18
V_ONE = 20
V_FL = 20
V_L  = 22
V_E  = 24
V_TMP = 28
V_L16 = 30
V_ST = 31
V_Q  = 32
V_O  = 64
V_NM = 128
V_LA = 136
V_S  = [144, 160]
V_P  = [176, 184]
V_KF = 192
V_VF = 224
def XREG(s): return (128 + 4*s) if s < 24 else (32 + 4*(s-24))
def OREG(dt, qh): return V_O + 8*dt + 4*qh

S_K, S_V, S_X, S_WQ, S_WS, S_WO, S_OUT = 4, 8, 12, 16, 20, 24, 28
S_RET = 32
S_WV = 34; S_GRP = 35
S_DBG = 36
S_BR = 52; S_B = 53; S_J = 54; S_SET = 55
S_KOFF = 56; S_VOFF = 57; S_WOFF = 58; S_XOFF = 59; S_LDSW = 60
S_H2OFF = 61; S_CNT = 62; S_KD = 63; S_VD = 64; S_KS = 65; S_VS = 66
S_THR = 67; S_T0 = 68; S_T1 = 69; S_OOFF = 70; S_T2 = 71
S_C16K = 40; S_ROT = 41; S_WBASE = 42; S_XBASE = 43; S_HALF = 44; S_OSET = 45; S_FLG = 46; S_T3 = 47; S_WOB = 48
S_STAMP = 80
S_EP = 84
S_TOK = 86
S_J2 = 65
S_WB2 = 66
H2X = int(E('H2X', '1'))
WSPLIT = E('WSPLIT', '1') == '1'
S_RDY = 88
S_SC = 90
S_MSK = 49

KSLOT = lambda n: (n % 3) * 16384 if n < 16 else 16384 + ((n-16) % 3) * 16384
VSLOT = lambda n: 65536 + KSLOT(n)
WSLOT = lambda n: [49152, 114688, 131072, 147456][n % 4]
WSLOT2 = lambda n: [131072, 147456, 0, 65536][n % 4]
S_DL = 72
PLAG = 6
QSCALE = (1.0/math.sqrt(128.0)) * math.log2(math.e)

KV_FLAGS = E("KVF", "nt")
WQ_FLAGS = E("WQF", "")
WO_FLAGS = E("WOF", "")
X_FLAGS = E("XF", "")
FSF = E("FSF", "sc1")
SC1 = "sc1"
OSF = E("OSF", "sc1")
OLF = E("OLF", "sc1")
PBF16 = E("PBF16", "1") == "1"
O_WS_OFF = 0
PART_WS_OFF = 16*1024*1024
FLAG_WS_OFF = 32*1024*1024
EPOCH_WS_OFF = 33*1024*1024
STAMP_WS_OFF = 64*1024*1024
STAMPS = False
SPIN_CAP = 0x40000

def stamp(a, idx):
    if not STAMPS: return
    if E("STONLY") and idx not in eval(E("STONLY")): return
    a(f"s_memrealtime s[{S_STAMP}:{S_STAMP+1}]")
    if idx > 0: a(f"s_memtime s[{S_STAMP+2}:{S_STAMP+3}]")
    a("s_waitcnt lgkmcnt(0)")
    a(f"v_writelane_b32 v{V_ST}, s{S_STAMP}, {idx}")
    if idx > 0: a(f"v_writelane_b32 v0, s{S_STAMP+2}, {idx}")
def stamp_flush(a):
    if not STAMPS: return
    a(f"s_lshl_b32 s{S_STAMP}, s2, 3")
    a(f"s_lshl_b32 s{S_STAMP+1}, s{S_GRP}, 2")
    a(f"s_add_u32 s{S_STAMP}, s{S_STAMP}, s{S_STAMP+1}")
    a(f"s_add_u32 s{S_STAMP}, s{S_STAMP}, s{S_WV}")
    a(f"s_lshl_b32 s{S_STAMP}, s{S_STAMP}, 8")
    a(f"s_add_u32 s{S_STAMP}, s{S_STAMP}, {STAMP_WS_OFF}")
    a(f"v_lshlrev_b32 v{V_TMP}, 2, v{V_LANE}")
    a(f"buffer_store_dword v{V_ST}, v{V_TMP}, {sr(S_WS,4)}, s{S_STAMP} offen")
    a(f"s_add_u32 s{S_STAMP}, s{S_STAMP}, {256*8*256}")
    a(f"buffer_store_dword v0, v{V_TMP}, {sr(S_WS,4)}, s{S_STAMP} offen")

def setup_srds(a):
    a("s_load_dwordx16 s[36:51], s[0:1], 0")
    a("s_load_dwordx8 s[72:79], s[0:1], 64")
    a("s_load_dwordx2 s[20:21], s[0:1], 96")
    a("s_and_b32 s3, s2, 7")
    a(f"s_and_b32 s{S_SET}, s3, 3")
    if E("MAP", "1") == "1":
        a(f"s_lshr_b32 s{S_BR}, s3, 2")
        a(f"s_lshr_b32 s{S_B}, s2, 5")
    elif E("MAP") == "2":
        a(f"s_bfe_u32 s{S_BR}, s2, 0x10005")
        a(f"s_lshr_b32 s{S_B}, s2, 6")
        a(f"s_and_b32 s3, s3, 4")
        a(f"s_or_b32 s{S_B}, s{S_B}, s3")
    else:
        a(f"s_bfe_u32 s{S_BR}, s2, 0x10005")
        a(f"s_lshr_b32 s{S_B}, s2, 6")
        a(f"s_lshl_b32 s{S_B}, s{S_B}, 1")
        a(f"s_lshr_b32 s3, s3, 2")
        a(f"s_or_b32 s{S_B}, s{S_B}, s3")
    a(f"s_lshr_b32 s{S_J}, s2, 3")
    if E("JX"): a(f"s_xor_b32 s{S_J}, s{S_J}, {E('JX')}")
    a(f"s_and_b32 s{S_J}, s{S_J}, 3")
    a(f"v_lshrrev_b32 v2, 6, v0")
    a(f"v_and_b32 v{V_LANE}, 63, v0")
    a(f"v_readfirstlane_b32 s{S_WV}, v2")
    for b, n in ((S_K, 1<<26), (S_V, 1<<26), (S_X, 1<<20), (S_WQ, 1<<22), (S_WS, 287309824), (S_WO, 1<<22), (S_OUT, 1<<21)):
        a(f"s_mov_b32 s{b+2}, {n}")
        a(f"s_mov_b32 s{b+3}, 0x20000")
    a(f"s_lshr_b32 s{S_GRP}, s{S_WV}, 2")
    a(f"s_and_b32 s{S_WV}, s{S_WV}, 3")
    a(f"s_lshl_b32 s{S_LDSW}, s{S_WV}, 12")

def finish_srds(a):
    a("s_waitcnt lgkmcnt(0)")
    a(f"s_cmp_eq_u32 s{S_BR}, 0")
    for b, sa, sb in ((S_X, 36, 46), (S_K, 38, 48), (S_V, 40, 50), (S_WQ, 42, 72), (S_WO, 44, 74)):
        a(f"s_cselect_b32 s{b}, s{sa}, s{sb}")
        a(f"s_cselect_b32 s{b+1}, s{sa+1}, s{sb+1}")
    a(f"s_mov_b32 s{S_OUT}, s76")
    a(f"s_mov_b32 s{S_OUT+1}, s77")
    a(f"s_mov_b32 s{S_DBG}, s78")
    a(f"s_mov_b32 s{S_DBG+1}, s79")
    a(f"s_mov_b32 s{S_DBG+2}, 256")
    a(f"s_mov_b32 s{S_DBG+3}, 0x20000")

def setup_vtype_addr(a, base_imm, xor_sgpr=None):
    t0, t1, t2 = V_TMP, V_TMP+1, V_E+3
    a(f"v_bfe_u32 v{t0}, v{V_LANE}, 2, 3")
    a(f"v_bfe_u32 v{t2}, v{V_LANE}, 2, 2")
    a(f"v_lshrrev_b32 v{t1}, 4, v{V_LANE}")
    a(f"v_lshl_add_u32 v{t1}, v{t1}, 3, v{t2}")
    a(f"v_lshlrev_b32 v{t1}, 8, v{t1}")
    a(f"v_and_b32 v{t2}, 3, v{V_LANE}")
    a(f"v_lshl_add_u32 v{t1}, v{t2}, 3, v{t1}")
    if base_imm: a(f"v_add_u32 v{t1}, {base_imm}, v{t1}")
    if xor_sgpr is not None: a(f"v_xor_b32 v{t0}, s{xor_sgpr}, v{t0}")
    for dt in range(8):
        a(f"v_xor_b32 v{t2}, {dt}, v{t0}")
        a(f"v_lshl_add_u32 v{V_VA+dt}, v{t2}, 5, v{t1}")

def split_cols(a, v, tmp):
    a(f"v_and_b32 v{tmp}, 0x80, v{v}")
    a(f"v_mad_u32_u24 v{v}, v{tmp}, 3, v{v}")
def setup_vtype_dma(a, dst, log2stride, split=False):
    t0, t1, t2 = V_TMP, V_TMP+1, V_E+3
    a(f"v_lshrrev_b32 v{t0}, 4, v{V_LANE}")
    a(f"v_and_b32 v{t1}, 15, v{V_LANE}")
    a(f"v_lshlrev_b32 v{t2}, 1, v{t0}")
    a(f"v_xor_b32 v{t1}, v{t1}, v{t2}")
    a(f"v_lshlrev_b32 v{t1}, 4, v{t1}")
    if split: split_cols(a, t1, t2)
    a(f"s_lshl_b32 s{S_T0}, s{S_WV}, 4")
    a(f"v_add_u32 v{t0}, s{S_T0}, v{t0}")
    a(f"v_lshl_add_u32 v{dst}, v{t0}, {log2stride}, v{t1}")
    a(f"v_xor_b32 v{dst+1}, {0x200 if split else 0x80}, v{dst}")

def setup_ktype_dma(a, dst, log2stride):
    t0, t1, t2 = V_TMP, V_TMP+1, V_E+3
    a(f"v_lshrrev_b32 v{t0}, 4, v{V_LANE}")
    a(f"v_and_b32 v{t1}, 15, v{V_LANE}")
    a(f"v_xor_b32 v{t1}, v{t1}, v{t0}")
    a(f"s_and_b32 s{S_T0}, s{S_WV}, 1")
    a(f"s_lshl_b32 s{S_T0}, s{S_T0}, 3")
    a(f"v_xor_b32 v{t1}, s{S_T0}, v{t1}")
    a(f"v_lshlrev_b32 v{t1}, 4, v{t1}")
    a(f"s_lshl_b32 s{S_T0}, s{S_WV}, 4")
    a(f"v_add_u32 v{t0}, s{S_T0}, v{t0}")
    a(f"v_lshl_add_u32 v{dst}, v{t0}, {log2stride}, v{t1}")
    a(f"v_xor_b32 v{dst+1}, 0x40, v{dst}")

def row0(a, dst, tmp):
    a(f"v_bfe_u32 v{tmp}, v{V_LANE}, 2, 2")
    a(f"v_and_b32 v{dst}, 3, v{V_LANE}")
    a(f"v_lshl_or_b32 v{dst}, v{tmp}, 3, v{dst}")

def k_addr_setup(a):
    t0, t1, t2 = V_TMP, V_TMP+1, V_E+3
    row0(a, t0, t1)
    a(f"v_lshlrev_b32 v{t0}, 8, v{t0}")
    a(f"v_and_b32 v{t1}, 15, v{V_LANE}")
    a(f"v_lshrrev_b32 v{t2}, 4, v{V_LANE}")
    a(f"v_xor_b32 v{t1}, v{t1}, v{t2}")
    for ks in range(4):
        a(f"v_xor_b32 v{t2}, {4*ks}, v{t1}")
        a(f"v_lshl_add_u32 v{V_KA+ks}, v{t2}, 4, v{t0}")

WIN = [0]
def window(a):
    w = WIN[0]
    if w and len(a.vmq) >= w:
        a(f"s_waitcnt vmcnt({w-1})")
        a.vmq = a.vmq[len(a.vmq)-(w-1):]
def dma(a, srd, voff, soff, ldsbase, gstep, flags, tag, js=(0,1,2,3), setm0=True):
    if setm0: a(f"s_add_u32 m0, s{S_LDSW}, {ldsbase}")
    if gstep == 1024:
        if setm0: a("s_nop 0")
        for j in js:
            window(a)
            a.vm(f"buffer_load_dwordx4 v{voff+(j>>1)}, {sr(srd,4)}, s{soff} offen offset:{j*1024} {flags} lds", tag)
    else:
        for j in js:
            if j == 0: a(f"s_mov_b32 s{S_T0}, s{soff}")
            else: a(f"s_add_u32 s{S_T0}, s{soff}, {j*(gstep-1024)}")
            window(a)
            a.vm(f"buffer_load_dwordx4 v{voff+(j>>1)}, {sr(srd,4)}, s{S_T0} offen offset:{j*1024} {flags} lds", tag)

def mfma(d, x, y, c): return f"v_mfma_f32_16x16x32_bf16 {vr(d,4)}, {vr(x,4)}, {vr(y,4)}, {c if isinstance(c,str) else vr(c,4)}"

def pj_mm(seg, idx):
    if idx < 0: seg, idx = (seg-1) % 8, idx + 16
    ks, dt = idx >> 3, idx & 7
    return [mfma(OREG(dt,qh), V_VF+4*dt, XREG(4*seg+2*ks+qh), OREG(dt,qh)) for qh in range(2)]

class Stream:
    L = 5
    def __init__(s, a, slots, late):
        s.a, s.slots, s.late, s.n, s.nt = a, slots, late, 0, len(slots)-1
        s.seg = [t % 8 for t in range(s.nt)]
        s.skip = 0
        s.xneed = {}
        s.vneed = {}
    def reads(s, n):
        t, idx = n >> 4, n & 15
        if t >= s.nt: return []
        fr = [idx]
        if t in s.late: fr = {0: [], 1: [], 2: [0, 1], 3: [2, 3]}.get(idx, [idx])
        r = []
        for f in fr:
            ks, dt = f >> 3, f & 7
            r += [(f"ds_read_b64_tr_b16 {vr(V_VF+4*dt+2*u,2)}, v{V_VA+dt} offset:{ks*8192+u*1024}", f"f{16*t+f}") for u in range(2)]
        return r
    def done(s): return s.n >= 16*s.nt + s.L
    def unit(s, mid=None, xds=(), valu=()):
        a, n, L = s.a, s.n, s.L
        t, idx = n >> 4, n & 15
        f = n - L
        m = pj_mm(s.seg[f >> 4], f & 15) if f >= s.skip else [None, None]
        r = list(xds) + s.reads(n)
        v = list(valu)
        if t < s.nt:
            if idx == 8: a(f"s_mov_b32 s{S_DL}, {u32(s.slots[t+1]-s.slots[t])}")
            if idx >= 9: v.append(f"v_add_u32 v{V_VA+idx-9}, s{S_DL}, v{V_VA+idx-9}")
        if f in s.vneed: a.vmwait(s.vneed[f])
        if m[0]: a(m[0])
        if mid: mid()
        h = (len(r)+1)//2
        for x in r[:h]: a.ds(*x)
        if v and h < 2: a(v.pop(0))
        if m[1]: a(m[1])
        if 0 <= f+1 < 16*s.nt: a.dswait([f"f{f+1}"] + s.xneed.get(f+1, []))
        for x in r[h:]: a.ds(*x)
        for y in v: a(y)
        if t < s.nt and idx == 15: a(f"v_add_u32 v{V_VA+7}, s{S_DL}, v{V_VA+7}")
        s.n += 1
    def reads_done(s, t):
        return s.n > 16*t + 15 and not any(x.startswith("f") and int(x[1:]) >> 4 == t for x in s.a.lq)

def spread(ops, k, span):
    lo, hi = (len(ops)*k + span-1)//span, (len(ops)*(k+1) + span-1)//span
    return ops[min(lo,len(ops)):min(hi,len(ops))]

def acc_to_frags(a, dstf, scale, done=None):
    def cv(f, h):
        ks, qh = f >> 1, f & 1
        b = OREG(2*ks+h, qh)
        for i in range(4): a(f"v_mul_f32 v{b+i}, {f's{S_SC}' if scale is None else f'v{V_E+2*qh}'}, v{b+i}")
        for i in range(2): a(f"v_cvt_pk_bf16_f32 v{dstf(f)+2*h+i}, v{b+2*i}, v{b+2*i+1}")
    def sw(op, f):
        for i in range(2): a(f"{op} v{dstf(f)+i}, v{dstf(f)+2+i}")
    for f in range(9):
        if f < 8: cv(f, 0)
        else: a("s_nop 1")
        if f >= 1: sw("v_permlane32_swap_b32", f-1)
        if f < 8: cv(f, 1)
        else: a("s_nop 1")
        if f >= 1:
            sw("v_permlane16_swap_b32", f-1)
            if done: done(f-1)

def xreduce(a, op, d0, d1, t0, t1):
    for sw in ("v_permlane32_swap_b32", "v_permlane16_swap_b32"):
        a(f"v_mov_b32 v{t0}, v{d0}")
        a(f"v_mov_b32 v{t1}, v{d1}")
        a("s_nop 1")
        a(f"{sw} v{d0}, v{t0}")
        a(f"{sw} v{d1}, v{t1}")
        a(f"{op} v{d0}, v{d0}, v{t0}")
        a(f"{op} v{d1}, v{d1}, v{t1}")

def rowmax(a, S, d, t):
    for qh in range(2):
        b0, b1 = S+4*qh, S+8+4*qh
        a(f"v_max3_f32 v{d+qh}, v{b0}, v{b0+1}, v{b0+2}")
        a(f"v_max3_f32 v{d+qh}, v{d+qh}, v{b0+3}, v{b1}")
        a(f"v_max3_f32 v{d+qh}, v{d+qh}, v{b1+1}, v{b1+2}")
        a(f"v_max_f32 v{d+qh}, v{d+qh}, v{b1+3}")
    xreduce(a, "v_max_f32", d, d+1, t, t+1)

QH = lambda i: (i >> 2) & 1
def pidx(j): return 4*QH(j) + 2*(j >> 3) + ((j & 3) >> 1)

def rare(a, par):
    Sc, Sn, Pc = V_S[par], V_S[1-par], V_P[par]
    d, t = V_E, V_E+2
    a.label(f"L_rare{par}")
    a("s_nop 15")
    rowmax(a, Sc, d, t)
    for qh in range(2): a(f"v_add_f32 v{d+qh}, s{S_THR}, v{d+qh}")
    for qh in range(2): a(f"v_max_f32 v{d+qh}, 0, v{d+qh}")
    for qh in range(2): a(f"v_exp_f32 v{t+qh}, -v{d+qh}")
    for i in range(8): a(f"v_sub_f32 v{V_NM+i}, v{V_NM+i}, v{d+QH(i)}")
    for i in range(16): a(f"v_sub_f32 v{Sc+i}, v{Sc+i}, v{d+QH(i)}")
    for i in range(16): a(f"v_sub_f32 v{Sn+i}, v{Sn+i}, v{d+QH(i)}")
    for i in range(64): a(f"v_mul_f32 v{V_O+i}, v{V_O+i}, v{t+QH(i)}")
    for i in range(8): a(f"v_mul_f32 v{V_LA+i}, v{V_LA+i}, v{t+QH(i)}")
    for i in range(16): a(f"v_exp_f32 v{Sc+i}, v{Sc+i}")
    a("s_nop 0")
    for j in range(1, 16, 2): a(f"v_cvt_pk_bf16_f32 v{Pc+pidx(j)}, v{Sc+j-1}, v{Sc+j}")
    a("s_nop 1")
    a(f"s_setpc_b64 {sr(S_RET,2)}")

def att_pairs(a, par, i0, i1, qk, pv, sm, koff, voff, uid, bar=None):
    Sc, Sn, Pc, Pp = V_S[par], V_S[1-par], V_P[par], V_P[1-par]
    T = V_TMP
    W = [Pc+pidx(2*n+1) for n in range(8)]
    for i in range(i0, i1):
        kt, ks = i >> 2, i & 3
        f = (i + 4) % 8
        mq = [mfma(Sn+8*kt+4*qh, V_KF+4*i, V_Q+4*(2*ks+qh), (V_NM+4*qh) if ks == 0 else Sn+8*kt+4*qh) for qh in range(2)] if qk else [None, None]
        mp = [mfma(OREG(i,qh), V_VF+4*i, Pp+4*qh, OREG(i,qh)) for qh in range(2)] if pv else [None, None]
        ml = [mfma(V_LA+4*qh, V_ONE, Pp+4*qh, V_LA+4*qh) for qh in range(2)] if pv else [None, None]
        ex = [f"v_exp_f32 v{V_E+n}, v{Sc+2*i+n}" for n in range(2)] if sm else [None, None]
        cv = f"v_cvt_pk_bf16_f32 v{W[i]}, v{V_E}, v{V_E+1}" if sm else None
        def e(x):
            if x: a(x)
        def vread():
            o = voff(i)
            if o is None: return
            a.ds(f"ds_read_b64_tr_b16 {vr(V_VF+4*f,2)}, v{V_VA+f} offset:{o}", f"v{f}")
            a.ds(f"ds_read_b64_tr_b16 {vr(V_VF+4*f+2,2)}, v{V_VA+f} offset:{o+1024}", f"v{f}")
        def kread():
            o = koff(i)
            if o is None: return
            a.ds(f"ds_read_b128 {vr(V_KF+4*f,4)}, v{V_KA+(f&3)} offset:{o+(f>>2)*1024}", f"k{f}")
        nxt = [f"k{(i+1)%8}", f"v{(i+1)%8}"]
        if i < 7:
            e(mq[0]); e(ex[0]); e(mq[1])
            if bar and i == i0: bar()
            vread()
            e(mp[0]); a.dswait(nxt); e(ex[1]); e(mp[1]); kread()
            if sm and not pv and koff(i) is None: a("s_nop 0")
            e(cv)
            if i == 5:
                e(ml[1])
                if sm:
                    a(f"v_or3_b32 v{T}, v{W[0]}, v{W[1]}, v{W[2]}")
                    a(f"v_or3_b32 v{T}, v{T}, v{W[3]}, v{W[4]}")
        else:
            e(mq[0]); e(ex[0]); e(mq[1]); a.dswait(nxt); e(ex[1]); e(mp[0]); kread()
            if sm: a(f"v_or3_b32 v{T}, v{T}, v{W[5]}, v{W[6]}")
            e(mp[1]); e(cv)
            if sm:
                a(f"v_bitop3_b32 v{T}, v{T}, v{W[7]}, s{S_MSK} bitop3:0xa8")
                a(f"v_cmp_ne_u32 vcc, 0, v{T}")
            e(ml[0]); vread()
            if sm:
                a(f"s_cbranch_vccnz L_st{uid}")
                a.label(f"L_ok{uid}")
                a.stubs.append((uid, par))

def att_stubs(a):
    for uid, par in a.stubs:
        a.label(f"L_st{uid}")
        a(f"s_call_b64 {sr(S_RET,2)}, L_rare{par}")
        a(f"s_branch L_ok{uid}")

def attention(a):
    S0 = V_S[0]
    a.lq = []
    for u in range(8): a.ds(f"ds_read_b128 {vr(V_KF+4*u,4)}, v{V_KA+(u&3)} offset:{(u>>2)*1024}", f"k{u}")
    for i in range(32): a(f"v_mov_b64 {vr(V_O+2*i,2)}, 0")
    for i in range(4): a(f"v_mov_b64 {vr(V_LA+2*i,2)}, 0")
    for i in range(4): a(f"v_mov_b64 {vr(V_P[1]+2*i,2)}, 0")
    for i in range(8): a(f"v_mov_b64 {vr(V_VF+16+2*i,2)}, 0")
    for i in range(4): a(f"v_mov_b32 v{V_ONE+i}, 0x3f803f80")
    for u in range(8):
        kt, ks = u >> 2, u & 3
        if u % 4 == 0: a.dswait(f"k{u+3}")
        for qh in range(2): a(mfma(S0+8*kt+4*qh, V_KF+4*u, V_Q+4*(2*ks+qh), "0" if ks == 0 else S0+8*kt+4*qh))
    for u in range(4): a.ds(f"ds_read_b128 {vr(V_KF+4*u,4)}, v{V_KA+u} offset:8192", f"k{u}")
    a(f"s_mov_b32 s{S_CNT}, 0")
    a("s_nop 3")
    rowmax(a, S0, V_E, V_E+2)
    for qh in range(2): a(f"v_add_f32 v{V_E+qh}, s{S_THR}, v{V_E+qh}")
    for i in range(8): a(f"v_sub_f32 v{V_NM+i}, 0, v{V_E+QH(i)}")
    for i in range(16): a(f"v_sub_f32 v{S0+i}, v{S0+i}, v{V_E+QH(i)}")
    a.dswait("k0")
    att_pairs(a, 0, 0, 4, True, False, True, lambda i: 8192, lambda i: None, "p")
    lq_entry = list(a.lq)
    a.raw(".p2align 3")
    a.label("L_att_loop")
    for p in range(3):
        ks, vs = ((p+1) % 3)*16384, p*16384
        def bar(p=p):
            a.dsall()
            if p == 0: a("s_waitcnt vmcnt(8)")
            if p == 1: a("s_waitcnt vmcnt(0)")
            a("s_barrier")
        att_pairs(a, 0, 4, 8, True, True, True, lambda i: ks, lambda i: vs, f"a{p}", bar)
        att_pairs(a, 1, 0, 8, True, True, True, lambda i: ks + (i >> 2)*8192, lambda i: vs + (i >> 2)*8192, f"b{p}")
        att_pairs(a, 0, 0, 4, True, True, True, lambda i: ks + 8192, lambda i: vs + 8192, f"c{p}")
    a(f"s_add_u32 s{S_CNT}, s{S_CNT}, 1")
    a(f"s_cmp_lt_u32 s{S_CNT}, 5")
    a("s_cbranch_scc1 L_att_loop")
    def bar():
        a.dsall(); a("s_barrier")
    att_pairs(a, 0, 4, 8, True, True, True, lambda i: None, lambda i: 0, "e0", bar)
    att_pairs(a, 1, 0, 8, False, True, True, lambda i: None, lambda i: (i >> 2)*8192, "e1")
    att_pairs(a, 0, 0, 8, False, True, False, lambda i: None, lambda i: 8192 if i < 4 else None, "e2")
    assert a.lq == [], a.lq

def normalize_o(a, done=None):
    a("s_nop 7")
    for qh in range(2): a(f"v_rcp_f32 v{V_E+2*qh}, v{V_LA+4*qh}")
    a("s_nop 0")
    acc_to_frags(a, XREG, "l", done)

def store_o(a, ms=range(8)):
    for m in ms:
        if m == 4: a(f"s_add_u32 s{S_OOFF}, s{S_OOFF}, 4096")
        so = S_OOFF
        a.vm(f"buffer_store_dwordx4 {vr(XREG(m),4)}, v{V_L16}, {sr(S_WS,4)}, s{so} offen offset:{(m%4)*1024} {OSF}", "ost")

def load_o(a, head_sgpr_off, first_frag, tag):
    a(f"s_add_u32 s{S_T0}, s{head_sgpr_off}, 4096")
    for m in range(8):
        so = head_sgpr_off if m < 4 else S_T0
        a.vm(f"buffer_load_dwordx4 {vr(XREG(first_frag+m),4)}, v{V_L16}, {sr(S_WS,4)}, s{so} offen offset:{(m%4)*1024} {OLF}", tag + ("a" if m < 4 else "b"))

DUAL = E("DUAL", "1") == "1"
def set_flag(a, kind, tag="flag"):
    a(f"v_mov_b32 v{V_TMP}, s{S_TOK}")
    a(f"v_mov_b32 v{V_TMP+1}, s{S_TOK+1}")
    a("s_mov_b64 exec, 1")
    if DUAL and kind < 2: a.vm(f"buffer_store_dwordx2 {vr(V_TMP,2)}, off, {sr(S_WS,4)}, s{S_FLG} offset:{(kind+3)*128}", tag)
    a.vm(f"buffer_store_dwordx2 {vr(V_TMP,2)}, off, {sr(S_WS,4)}, s{S_FLG} offset:{kind*128} sc1", tag)
    a("s_mov_b64 exec, -1")

def pmask(kind): return 0x77 if (DUAL and kind < 2) else 7
def poll_issue(a, kind, dst, tag):
    a(f"s_mov_b64 exec, {pmask(kind)}")
    a.vm(f"buffer_load_dwordx2 {vr(dst,2)}, v{V_FL}, {sr(S_WS,4)}, 0 offen offset:{kind*128} sc1", tag)
    a("s_mov_b64 exec, -1")

def poll_spin(a, kind, uid, dst, have_first=False):
    a(f"s_mov_b32 s{S_CNT}, {SPIN_CAP}")
    a(f"s_mov_b64 exec, {pmask(kind)}")
    a(f"s_branch L_poll{'c' if have_first else 'f'}{uid}")
    a.label(f"L_poll{uid}")
    a(f"s_sub_u32 s{S_CNT}, s{S_CNT}, 1")
    a(f"s_cbranch_scc1 L_pollx{uid}")
    if int(E("SLP", "2")): a(f"s_sleep {E('SLP','2')}")
    a.label(f"L_pollf{uid}")
    a(f"buffer_load_dwordx2 {vr(dst,2)}, v{V_FL}, {sr(S_WS,4)}, 0 offen offset:{kind*128} sc1")
    a("s_waitcnt vmcnt(0)")
    a.label(f"L_pollc{uid}")
    a(f"v_cmp_ne_u64 vcc, {sr(S_TOK,2)}, {vr(dst,2)}")
    if pmask(kind) == 7:
        a(f"s_cbranch_vccnz L_poll{uid}")
    else:
        a(f"s_lshr_b32 s{S_RDY}, vcc_lo, 4")
        a(f"s_and_b32 s{S_RDY}, s{S_RDY}, vcc_lo")
        a(f"s_cbranch_scc1 L_poll{uid}")
    a.label(f"L_pollx{uid}")
    a("s_mov_b64 exec, -1")
    if not have_first: a.vmq = []

def pkg(a, g):
    kn, vn = g+1, g
    if kn <= 31:
        if kn == 16: a(f"s_mov_b32 s{S_KOFF}, s{S_H2OFF}")
        dma(a, S_K, V_DK, S_KOFF, KSLOT(kn), 1024, KV_FLAGS, f"p{g}")
        a(f"s_add_u32 s{S_KOFF}, s{S_KOFF}, 16384")
    if 0 <= vn <= 31:
        if vn == 16: a(f"s_mov_b32 s{S_VOFF}, s{S_H2OFF}")
        dma(a, S_V, V_DV, S_VOFF, VSLOT(vn), 1024, KV_FLAGS, f"p{g}")
        a(f"s_add_u32 s{S_VOFF}, s{S_VOFF}, 16384")

XS = [(VSLOT(1), WSLOT(0)), (WSLOT(3), VSLOT(2)), (VSLOT(0), KSLOT(2)), (WSLOT(1), WSLOT(2))]
W1S = [WSLOT(1), WSLOT(2), KSLOT(0), KSLOT(1), VSLOT(1), WSLOT(0), WSLOT(3), VSLOT(2)]
SLOT = {f"X{q}{'ab'[h]}": XS[q][h] for q in range(4) for h in range(2)}
SLOT.update({f"A{i}": W1S[i] for i in range(8)})
SLOT.update({f"K{i}": KSLOT(i) for i in range(3)}); SLOT.update({f"V{i}": VSLOT(i) for i in range(3)})
FREE = {"A4": 1, "A5": 1, "X3a": 1, "X3b": 2, "A6": 3, "A7": 3, "K0": 3, "K1": 4, "V0": 5, "K2": 5, "V1": 5, "V2": 8}

def x_addr_move(a, q, prev_q):
    pa, pb = XS[prev_q] if prev_q is not None else (0, 0)
    a(f"s_cmp_lt_u32 s{S_WV}, 2")
    a(f"s_mov_b32 s{S_T1}, {u32(XS[q][0]-pa)}")
    a(f"s_cselect_b32 s{S_T1}, s{S_T1}, {u32(XS[q][1]-pb)}")
    if prev_q is None: a(f"s_add_u32 s{S_T1}, s{S_T1}, s{S_HALF}")
    for m in range(4): a(f"v_add_u32 v{V_KA+m}, s{S_T1}, v{V_KA+m}")
def x_frag_issue(a, q):
    for f in range(8): a(f"ds_read_b128 {vr(XREG(8*q+f),4)}, v{V_KA+(f>>1)} offset:{(f&1)*1024}")
def x_addr_finish(a, kbase):
    a(f"s_cmp_lt_u32 s{S_WV}, 2")
    a(f"s_mov_b32 s{S_T1}, {u32(kbase-XS[3][0])}")
    a(f"s_cselect_b32 s{S_T1}, s{S_T1}, {u32(kbase-XS[3][1])}")
    a(f"s_sub_u32 s{S_T1}, s{S_T1}, s{S_HALF}")
    for m in range(4): a(f"v_add_u32 v{V_KA+m}, s{S_T1}, v{V_KA+m}")

def own_o_lds_addr(a, dst):
    a(f"s_cmp_lt_u32 s{S_WV}, 2")
    a(f"s_mov_b32 s{S_T1}, {VSLOT(30)}")
    a(f"s_cselect_b32 s{S_T1}, s{S_T1}, {KSLOT(31)}")
    a(f"s_add_u32 s{S_T1}, s{S_T1}, s{S_HALF}")
    a(f"v_add_u32 v{dst}, s{S_T1}, v{V_L16}")

def tspin(a, us, uid):
    a.label(f"L_ts{uid}")
    a("s_sleep 2")
    a("s_memrealtime s[94:95]")
    a("s_waitcnt lgkmcnt(0)")
    a("s_sub_u32 s94, s94, s92")
    a(f"s_cmp_lt_u32 s94, {int(us)*100}")
    a(f"s_cbranch_scc1 L_ts{uid}")

def q_finalize(a):
    a(f"s_mov_b32 s{S_SC}, {f2u(QSCALE):#x}")
    a(f"s_mov_b32 s{S_SC+1}, {f2u(QSCALE):#x}")
    a("s_nop 3")
    acc_to_frags(a, lambda f: V_Q+4*f, None)

def kernel(a, name):
    a.raw(f".globl {name}"); a.raw(".p2align 8"); a.raw(f".type {name},@function"); a.label(name)
    a("s_cmp_ge_u32 s2, 256")
    a("s_cbranch_scc1 L_end")
    if STAMPS: a(f"v_mov_b32 v{V_ST}, 0")
    stamp(a, 0)
    if E("ENDSPIN") or E("MIDSPIN") or E("LATESPIN"): a("s_memrealtime s[92:93]")
    setup_srds(a)
    a(f"s_lshl_b32 s{S_T1}, s{S_SET}, 3")
    a(f"s_add_u32 s{S_T1}, s{S_T1}, s{S_J}")
    a(f"s_lshl_b32 s{S_T2}, s{S_B}, 5")
    a(f"s_add_u32 s{S_T2}, s{S_T2}, s{S_T1}")
    a(f"s_lshl_b32 s{S_KOFF}, s{S_T2}, 18")
    a(f"s_mov_b32 s{S_VOFF}, s{S_KOFF}")
    a(f"s_xor_b32 s{S_J2}, s{S_J}, {H2X}")
    a(f"s_xor_b32 s{S_H2OFF}, s{S_KOFF}, {(4+H2X)<<18}")
    a(f"s_xor_b32 s{S_WB2}, s{S_T1}, {4+H2X}")
    a(f"s_lshl_b32 s{S_WB2}, s{S_WB2}, 8")
    a(f"s_mov_b32 s{S_THR}, 0x41700000")
    a(f"v_lshlrev_b32 v{V_L16}, 4, v{V_LANE}")
    setup_ktype_dma(a, V_E, 10)
    setup_vtype_dma(a, V_DW, 13)
    finish_srds(a)
    stamp(a, 1)
    a(f"s_lshl_b32 s{S_WBASE}, s{S_T1}, 8")
    a(f"s_lshl_b32 s{S_XBASE}, s{S_B}, 17")
    if E("MAP") == "3":
        a(f"s_lshr_b32 s{S_ROT}, s{S_B}, 1")
        a(f"s_add_u32 s{S_ROT}, s{S_J}, s{S_ROT}")
    else: a(f"s_add_u32 s{S_ROT}, s{S_J}, s{S_B}")
    if E("ROT2", "1") == "1": a(f"s_lshl_b32 s{S_ROT}, s{S_ROT}, 1")
    a(f"s_and_b32 s{S_ROT}, s{S_ROT}, {3 if E('NOROT') is None else 0}")
    def common2():
        a(f"s_lshl_b32 s{S_T0}, s{S_BR}, 3")
        a(f"s_add_u32 s{S_T0}, s{S_T0}, s{S_B}")
        a(f"s_lshl_b32 s{S_T3}, s{S_T0}, 7")
        a(f"s_add_u32 s{S_T3}, s{S_T3}, {EPOCH_WS_OFF}")
        a(f"s_load_dwordx2 {sr(S_EP,2)}, {sr(S_WS,2)}, s{S_T3}")
        a(f"s_lshl_b32 s{S_T0}, s{S_T0}, 2")
        a(f"s_add_u32 s{S_T0}, s{S_T0}, s{S_SET}")
        a(f"s_lshl_b32 s{S_T0}, s{S_T0}, 5")
        a(f"s_add_u32 s{S_T0}, s{S_T0}, s{S_WV}")
        a(f"s_lshl_b32 s{S_OSET}, s{S_T0}, 13")
        a(f"s_mul_i32 s{S_T0}, s{S_GRP}, {4+H2X}")
        a(f"s_xor_b32 s{S_T0}, s{S_T0}, s{S_J}")
        a(f"s_lshl_b32 s{S_T0}, s{S_T0}, 15")
        a(f"s_add_u32 s{S_OOFF}, s{S_OSET}, s{S_T0}")
        a(f"s_lshl_b32 s{S_T0}, s2, 2")
        a(f"s_add_u32 s{S_T0}, s{S_T0}, s{S_WV}")
        a(f"s_mul_i32 s{S_FLG}, s{S_T0}, 640")
        a(f"s_add_u32 s{S_FLG}, s{S_FLG}, {FLAG_WS_OFF}")
        a(f"s_mov_b32 s{S_MSK}, 0x40004000")
        a(f"s_and_b32 s{S_HALF}, s{S_WV}, 1")
        a(f"s_lshl_b32 s{S_HALF}, s{S_HALF}, 13")
        a(f"s_lshl_b32 s{S_WOB}, s{S_SET}, 20")
        a(f"s_lshl_b32 s{S_T0}, s{S_J}, {7 if WSPLIT else 8}")
        a(f"s_add_u32 s{S_WOB}, s{S_WOB}, s{S_T0}")
        setup_vtype_dma(a, V_DV, 8)
        setup_ktype_dma(a, V_DK, 8)
        k_addr_setup(a)
        x_addr_move(a, 0, None)
    def token():
        a("s_waitcnt lgkmcnt(0)")
        a(f"s_mul_i32 s{S_TOK}, s{S_EP}, 0x9E3779B1")
        a(f"s_add_u32 s{S_TOK}, s{S_TOK}, 0x7F4A7C15")
        a(f"s_mul_i32 s{S_TOK+1}, s{S_EP+1}, 0x85EBCA6D")
        a(f"s_add_u32 s{S_TOK+1}, s{S_TOK+1}, 0x27D4EB2F")

    TS = {t: WSLOT2(t) for t in range(6)}
    TS.update({8: KSLOT(29), 9: KSLOT(30), 6: VSLOT(29), 7: VSLOT(31), 10: KSLOT(29), 11: KSLOT(30), 12: TS[2], 13: TS[3], 14: TS[4], 15: TS[5]})
    ORD = [0, 1, 8, 9, 2, 3, 4, 5, 6, 7, 10, 11, 12, 13, 14, 15]
    def wo_off(t):
        d = (t >> 1) & 3
        a(f"s_add_u32 s{S_WOFF}, s{S_J if t < 8 else S_J2}, {d}")
        a(f"s_and_b32 s{S_WOFF}, s{S_WOFF}, 3")
        a(f"s_lshl_b32 s{S_WOFF}, s{S_WOFF}, 17")
        a(f"s_add_u32 s{S_WOFF}, s{S_WOFF}, s{S_WOB}")
        add = (t >> 3)*4*131072 + (t & 1)*65536
        if add: a(f"s_add_u32 s{S_WOFF}, s{S_WOFF}, {add}")
    def wo_ops(t):
        def op(j):
            if j == 0: wo_off(t)
            dma(a, S_WO, V_DW, S_WOFF, TS[t], 4096, WO_FLAGS, f"wo{t}", (j,))
        return [lambda j=j: op(j) for j in range(4)]
    def rot_off(dst, q, shift, base, add=0):
        a(f"s_add_u32 s{dst}, s{S_ROT}, {q}")
        a(f"s_and_b32 s{dst}, s{dst}, 3")
        a(f"s_lshl_b32 s{dst}, s{dst}, {shift}")
        a(f"s_add_u32 s{dst}, s{dst}, s{base}")
        if add: a(f"s_add_u32 s{dst}, s{dst}, {add}")
    def kv_ops(kind, n, tag):
        srd, voff, soff, slot = (S_K, V_DK, S_KOFF, KSLOT(n)) if kind == "K" else (S_V, V_DV, S_VOFF, VSLOT(n))
        def op(j):
            if j == 0 and n == 16: a(f"s_mov_b32 s{soff}, s{S_H2OFF}")
            dma(a, srd, voff, soff, slot, 1024, KV_FLAGS, tag, (j,), setm0=(j == 0))
            if j == 3: a(f"s_add_u32 s{soff}, s{soff}, 16384")
        return [lambda j=j: op(j) for j in range(4)]
    def pkg_ops(g):
        return (kv_ops("K", g+1, f"p{g}") if g+1 <= 31 else []) + kv_ops("V", g, f"p{g}")
    def tile_ops(nm):
        if nm[0] == "K": return kv_ops("K", int(nm[1]), f"p{int(nm[1])-1}")
        if nm[0] == "V": return kv_ops("V", int(nm[1]), f"p{nm[1]}")
        def op(j):
            if nm[0] == "X":
                if j == 0: rot_off(S_XOFF, int(nm[1]), 8, S_XBASE, 65536 if nm[2] == "b" else 0)
                dma(a, S_X, V_E, S_XOFF, SLOT[nm], 4096, X_FLAGS, nm, (j,))
            else:
                i = int(nm[1])
                if j == 0: rot_off(S_WOFF, i//2, 20, S_WBASE if nm[0] == "A" else S_WB2, (i % 2)*64*8192)
                dma(a, S_WQ, V_DW, S_WOFF, SLOT[nm] if nm[0] == "A" else WSLOT(i), 4*8192, WQ_FLAGS, nm, (j,))
        return [lambda j=j: op(j) for j in range(4)]
    planA = eval(E("SUA", "{-1:['A0','A1']}"))
    planB = eval(E("SUB", "{-1:['X1a'],0:['X1b','A2','A3'],1:['X2a','X2b','A4'],2:['A5','X3a','X3b'],3:['A6','A7','K0'],4:['K1'],5:['V0'],6:['K2'],8:['V1','V2']}"))
    for pl in (planA, planB):
        for k, l in pl.items():
            for nm in l: assert FREE.get(nm, -1) <= k, (nm, k)

    rot_off(S_XOFF, 0, 8, S_XBASE)
    a(f"s_lshl_b32 s{S_T0}, s{S_GRP}, 16")
    a(f"s_add_u32 s{S_XOFF}, s{S_XOFF}, s{S_T0}")
    a(f"s_cmp_eq_u32 s{S_GRP}, 0")
    a(f"s_mov_b32 s{S_T0}, {XS[0][0]}")
    a(f"s_cselect_b32 s{S_T0}, s{S_T0}, {XS[0][1]}")
    a(f"s_add_u32 m0, s{S_LDSW}, s{S_T0}")
    for jj in range(4):
        if jj: a(f"s_add_u32 s{S_XOFF}, s{S_XOFF}, 3072")
        else: a("s_nop 0")
        a(f"buffer_load_dwordx4 v{V_E+(jj>>1)}, {sr(S_X,4)}, s{S_XOFF} offen offset:{jj*1024} {X_FLAGS} lds")
    a(f"s_cmp_eq_u32 s{S_GRP}, 0")
    a("s_cbranch_scc0 L_grpB")

    a.vmq = ["X0a"]*4
    for nm in planA[-1][:1]:
        for op in tile_ops(nm): op()
    if not E("NOPF"):
        a(f"s_getpc_b64 {sr(S_SC,2)}")
        a.label("L_pc")
        a(f"s_sub_u32 s{S_SC}, s{S_SC}, L_pc-{name}")
        a(f"s_subb_u32 s{S_SC+1}, s{S_SC+1}, 0")
        a(f"s_lshr_b32 s{S_T0}, s2, 3")
        a(f"s_lshl_b32 s{S_T0}, s{S_T0}, 2")
        a(f"s_add_u32 s{S_T0}, s{S_T0}, s{S_WV}")
        a(f"s_lshl_b32 s{S_T0}, s{S_T0}, 3")
        a(f"v_and_b32 v{V_TMP}, 7, v{V_LANE}")
        a(f"v_add_lshl_u32 v{V_TMP}, v{V_TMP}, s{S_T0}, 6")
        a(f"v_min_u32 v{V_TMP}, L_code_end-{name}-4, v{V_TMP}")
        a.vm(f"global_load_dword v{V_Q}, v{V_TMP}, {sr(S_SC,2)}", "A1")
    common2()
    setup_vtype_addr(a, W1S[0])
    for i in range(32): a(f"v_mov_b64 {vr(V_O+2*i,2)}, 0")
    for nm in planA[-1][1:]:
        for op in tile_ops(nm): op()
    token()
    a.lq = []
    st = Stream(a, W1S + [VSLOT(0)], set(range(8)))
    for n in range(128):
        seg, idx = n >> 4, n & 15
        st.xneed[n] = [f"x{4*seg+2*(idx>>3)}", f"x{4*seg+2*(idx>>3)+1}"]
    opsA = {k: sum((tile_ops(nm) for nm in l), []) for k, l in planA.items() if k >= 0}
    st.n = 2
    while not st.done():
        n = st.n; seg, idx = n >> 4, n & 15
        xds, valu = [], []
        if seg < 8 and seg % 2 == 0:
            for f in {2: [0, 1]}.get(idx, [idx-2] if 4 <= idx < 10 else []):
                xds.append((f"ds_read_b128 {vr(XREG(4*seg+f),4)}, v{V_KA+(f>>1)} offset:{(f&1)*1024}", f"x{4*seg+f}"))
            if idx == 12:
                q = seg // 2
                tgt = XS[q+1] if q < 3 else (KSLOT(0), KSLOT(0))
                a(f"s_cmp_lt_u32 s{S_WV}, 2")
                a(f"s_mov_b32 s{S_DL+1}, {u32(tgt[0]-XS[q][0])}")
                a(f"s_cselect_b32 s{S_DL+1}, s{S_DL+1}, {u32(tgt[1]-XS[q][1])}")
                if q == 3: a(f"s_sub_u32 s{S_DL+1}, s{S_DL+1}, s{S_HALF}")
        if seg < 8 and seg % 2 == 1 and 4 <= idx < 8: valu.append(f"v_add_u32 v{V_KA+idx-4}, s{S_DL+1}, v{V_KA+idx-4}")
        def bar():
            if a.lq: a.dsall()
            a.vmwait([f"A{seg}", f"X{seg//2}a", f"X{seg//2}b"])
            a("s_barrier")
        st.unit(bar if idx == 2 else None, xds, valu)
        for op in spread(opsA.get((n-2) >> 4, []), (n-2) & 15, 14): op()
    assert a.vmq == [] and a.lq == []
    q_finalize(a)
    a.label("L_att_entry")
    if E("PRIO", "1") == "1": a("s_setprio 0")
    attention(a)
    a(f"s_cmp_eq_u32 s{S_GRP}, 0")
    a("s_cbranch_scc0 L_B_fin")
    if E("PRIO", "1") == "1": a("s_setprio 1")
    a.vmq = []; a.lq = []
    a(f"s_add_u32 s{S_KOFF}, s{S_H2OFF}, {3*16384}")
    a(f"s_add_u32 s{S_VOFF}, s{S_H2OFF}, {2*16384}")
    def o_ops(d, second, tag):
        def op(m):
            if m == 0:
                a(f"s_add_u32 s{S_T1}, s{S_J2 if second else S_J}, {d}")
                a(f"s_and_b32 s{S_T1}, s{S_T1}, 3")
                a(f"s_lshl_b32 s{S_T1}, s{S_T1}, 15")
                a(f"s_add_u32 s{S_T1}, s{S_T1}, s{S_OSET}")
                if second: a(f"s_add_u32 s{S_T1}, s{S_T1}, {4*32768}")
            if m == 4: a(f"s_add_u32 s{S_T1}, s{S_T1}, 4096")
            a.vm(f"buffer_load_dwordx4 {vr(XREG(8*d+m),4)}, v{V_L16}, {sr(S_WS,4)}, s{S_T1} offen offset:{(m%4)*1024} {OLF}", f"{tag}{4*d+m//2}")
        return [lambda m=m: op(m) for m in range(8)]
    PUB = int(E("PUB", "30"))
    normalize_o(a)
    setup_vtype_dma(a, V_DW, 10, WSPLIT)
    for i in range(32): a(f"v_mov_b64 {vr(V_O+2*i,2)}, 0")
    a(f"s_lshl_b32 s{S_T1}, s{S_SET}, 1")
    setup_vtype_addr(a, TS[0], xor_sgpr=S_T1)
    a(f"v_add_u32 v{V_FL}, 1, v{V_LANE}")
    a(f"v_and_b32 v{V_FL}, 3, v{V_FL}")
    a(f"v_lshlrev_b32 v{V_FL}, 3, v{V_FL}")
    a(f"v_xor_b32 v{V_FL}, s2, v{V_FL}")
    a(f"v_lshlrev_b32 v{V_FL}, 2, v{V_FL}")
    a(f"v_add_u32 v{V_FL}, s{S_WV}, v{V_FL}")
    a(f"v_mul_u32_u24 v{V_FL}, 640, v{V_FL}")
    a(f"v_add_u32 v{V_FL}, {FLAG_WS_OFF}, v{V_FL}")
    a(f"v_bfe_u32 v{V_TMP}, v{V_LANE}, 2, 1")
    a(f"v_mul_u32_u24 v{V_TMP}, {3*128}, v{V_TMP}")
    a(f"v_add_u32 v{V_FL}, v{V_FL}, v{V_TMP}")
    own_o_lds_addr(a, V_E+2)
    st = Stream(a, [TS[t] for t in ORD] + [TS[15]], {4, 6, 8})
    st.seg = [t % 8 for t in ORD]
    for p, t in enumerate(ORD):
        if t % 8 >= 2:
            for ks in range(2): st.vneed[16*p+8*ks] = [f"{'oa' if t < 8 else 'ob'}{2*(t%8)+ks}"]
        elif t >= 8:
            for ks in range(2): st.xneed[16*p+8*ks] = [f"x{4*(t%8)+2*ks}", f"x{4*(t%8)+2*ks+1}"]
    wops = sum((wo_ops(t) for t in range(6)), [])
    units_at = {18: 4, 19: 6, 20: 6, 21: 6, 22: 6, 23: 4}
    def wpf_ops():
        def op(r):
            if r == 0:
                a(f"v_lshrrev_b32 v{V_L}, 4, v{V_LANE}")
                a(f"v_and_b32 v{V_L+1}, 15, v{V_LANE}")
                a(f"v_lshlrev_b32 v{V_L+1}, 4, v{V_L+1}")
                if WSPLIT: split_cols(a, V_L+1, V_TMP)
                a(f"v_lshl_add_u32 v{V_L}, v{V_L}, 10, v{V_L+1}")
                a(f"s_add_u32 s{S_VD}, s{S_J}, s{S_WV}")
                a(f"s_and_b32 s{S_VD}, s{S_VD}, 3")
                a(f"s_lshl_b32 s{S_VD}, s{S_VD}, 17")
                a(f"s_add_u32 s{S_VD}, s{S_VD}, s{S_WOB}")
                a(f"s_lshl_b32 s{S_T0}, s{S_B}, 14")
                a(f"s_add_u32 s{S_VD}, s{S_VD}, s{S_T0}")
                a(f"s_add_u32 s{S_VD}, s{S_VD}, {4*131072}")
            else: a(f"s_add_u32 s{S_VD}, s{S_VD}, 4096")
            window(a)
            a.vm(f"buffer_load_dwordx4 {vr(XREG(8+r),4)}, v{V_L}, {sr(S_WO,4)}, s{S_VD} offen", "wpf")
        return [lambda r=r: op(r) for r in range(4)]
    wpf = wpf_ops() if not E("NOWPF") else []
    wpf_at = eval(E("WPFAT", "{28:2,29:2}"))
    for g in range(16, 32):
        WIN[0] = int(E("WIN2", "0")) if g <= 29 else 0
        tags = [f"p{g}"]
        if g == 18: tags.append("wo0")
        if g == 21: tags.append("wo1")
        if g == 24: a.dsall()
        a.vmwait(tags)
        stamp(a, 2*(g-16)+10)
        a("s_barrier")
        stamp(a, 2*(g-16)+11)
        ops = []
        if g <= 27: ops += wops[2*(g-16):2*(g-16)+2]
        k = wpf_at.get(g, 0); ops += wpf[:k]; wpf = wpf[k:]
        if g + 2 <= 31: ops += pkg_ops(g+2)
        nu = units_at.get(g, 0)
        for k, op in enumerate(ops):
            op()
            for _ in spread(list(range(nu)), k, len(ops)): st.unit()
        WIN[0] = 0
        if g == 24:
            for f in range(32 - st.L, 32):
                for x in pj_mm(1, f & 15): a(x)
            st.skip = 32
        for x in eval(E("ENDSEQ", "{30:['S',8],31:[9,6]}")).get(g, []):
            if x == "S": store_o(a)
            else:
                for op in wo_ops(x): op()
    assert st.n == 32 and not wpf
    a.vmwait("ost"); set_flag(a, 0)
    a.vmwait(["wo8", "wo9"])
    stamp(a, 44)
    a("s_barrier")
    stamp(a, 45)
    for m in range(2): a.ds(f"ds_read_b128 {vr(XREG(m),4)}, v{V_E+2} offset:{m*1024}", f"x{m}")
    tops = {4: o_ops(2, False, "oa"), 5: o_ops(3, False, "oa"), 9: o_ops(2, True, "ob"), 10: o_ops(3, True, "ob")}
    bars = {(4, 2): ["pl1"], (6, 2): [], (8, 2): [], (10, 0): [], (14, 0): []}
    PT = eval(E("PT", "(8,2)"))
    P1 = eval(E("P1", "(3,6)"))
    while not st.done():
        n = st.n; t, idx = n >> 4, n & 15
        xds = []
        if t == 2 and 2 <= idx < 8:
            xds.append((f"ds_read_b128 {vr(XREG(idx),4)}, v{V_E+2} offset:{idx*1024}", f"x{idx}"))
        def bar():
            if (t, idx) in bars:
                if idx == 2 and a.lq: a.dsall()
                a.vmwait(bars[(t, idx)])
                stamp(a, {4: 46, 6: 48, 8: 49, 10: 56, 14: 57}[t])
                if t == 4:
                    poll_spin(a, 0, "1", V_E, have_first=True)
                    stamp(a, 47)
                    for op in o_ops(1, False, "oa"): op()
                a("s_barrier")
            if (t, idx) == PT:
                a.vmwait("pl2")
                poll_spin(a, 1, "2", V_E, have_first=True)
                stamp(a, 51)
                for op in o_ops(1, True, "ob"): op()
        st.unit(bar, xds)
        if (t, idx) == P1: poll_issue(a, 0, V_E, "pl1")
        if n == 16*PT[0] + PT[1] - 12: poll_issue(a, 1, V_E, "pl2")
        lo = {10: 6}.get(t, 2 if t in st.late else 0)
        if idx >= lo:
            for op in spread(tops.get(t, []), idx-lo, 14-lo): op()
    assert a.lq == []
    stamp(a, 52)
    a(f"s_lshl_b32 s{S_T1}, s2, 2")
    a(f"s_add_u32 s{S_T1}, s{S_T1}, s{S_WV}")
    a(f"s_lshl_b32 s{S_T1}, s{S_T1}, 14")
    a(f"s_add_u32 s{S_T1}, s{S_T1}, {PART_WS_OFF}")
    a(f"v_add_u32 v{V_FL}, 1, v{V_LANE}")
    a(f"v_and_b32 v{V_FL}, 3, v{V_FL}")
    a(f"v_xor_b32 v{V_FL}, s2, v{V_FL}")
    a(f"v_lshlrev_b32 v{V_FL}, 2, v{V_FL}")
    a(f"v_add_u32 v{V_FL}, s{S_WV}, v{V_FL}")
    a(f"v_mul_u32_u24 v{V_FL}, 640, v{V_FL}")
    a(f"v_add_u32 v{V_FL}, {FLAG_WS_OFF}, v{V_FL}")
    PB = 128
    for beta in (1, 2, 3):
        a(f"s_add_u32 s{S_T1}, s{S_T1}, 4096")
        if PBF16:
            for i in range(8): a(f"v_cvt_pk_bf16_f32 v{PB+8*beta+i}, v{V_O+16*beta+2*i}, v{V_O+16*beta+2*i+1}")
            for i in range(2):
                a.vm(f"buffer_store_dwordx4 {vr(PB+8*beta+4*i,4)}, v{V_L16}, {sr(S_WS,4)}, s{S_T1} offen offset:{i*1024} sc1", "pst")
        else:
            for i in range(4):
                a.vm(f"buffer_store_dwordx4 {vr(V_O+16*beta+4*i,4)}, v{V_L16}, {sr(S_WS,4)}, s{S_T1} offen offset:{i*1024} sc1", "pst")
    t0, t1 = V_E+2, V_E+3
    row0(a, t0, t1)
    a(f"v_and_b32 v{t1}, 0x30, v{V_LANE}")
    a(f"v_lshl_add_u32 v{t0}, v{t0}, 11, v{t1}")
    a(f"s_lshl_b32 s{S_T2}, s{S_B}, 2")
    a(f"s_add_u32 s{S_T2}, s{S_T2}, s{S_WV}")
    a(f"s_lshl_b32 s{S_T2}, s{S_T2}, 16")
    a(f"s_lshl_b32 s{S_T0}, s{S_BR}, 10")
    a(f"s_add_u32 s{S_T2}, s{S_T2}, s{S_T0}")
    a(f"s_lshl_b32 s{S_T0}, s{S_J}, {7 if WSPLIT else 8}")
    a(f"s_add_u32 s{S_T2}, s{S_T2}, s{S_T0}")
    a(f"s_lshl_b32 s{S_T0}, s{S_SET}, 6")
    a(f"s_add_u32 s{S_T2}, s{S_T2}, s{S_T0}")
    if WSPLIT:
        a(f"s_and_b32 s{S_T0}, s{S_T0}, 0x80")
        a(f"s_mul_i32 s{S_T0}, s{S_T0}, 3")
        a(f"s_add_u32 s{S_T2}, s{S_T2}, s{S_T0}")
    a(f"s_add_u32 s{S_KD}, s{S_T2}, 8192")
    a.vmall()
    stamp(a, 53)
    set_flag(a, 2)
    poll_spin(a, 2, "3", V_E)
    stamp(a, 54)
    for beta in (1, 2, 3):
        a(f"s_xor_b32 s{S_T1}, s2, {beta}")
        a(f"s_lshl_b32 s{S_T1}, s{S_T1}, 2")
        a(f"s_add_u32 s{S_T1}, s{S_T1}, s{S_WV}")
        a(f"s_lshl_b32 s{S_T1}, s{S_T1}, 14")
        a(f"s_add_u32 s{S_T1}, s{S_T1}, {PART_WS_OFF + beta*4096}")
        if PBF16:
            for i in range(2):
                a.vm(f"buffer_load_dwordx4 {vr(PB+8*beta+4*i,4)}, v{V_L16}, {sr(S_WS,4)}, s{S_T1} offen offset:{i*1024} sc1", f"pl{beta}")
        else:
            for i in range(4):
                a.vm(f"buffer_load_dwordx4 {vr(V_O+16*beta+4*i,4)}, v{V_L16}, {sr(S_WS,4)}, s{S_T1} offen offset:{i*1024} sc1", f"pl{beta}")
    for beta in (1, 2, 3):
        a.vmwait(f"pl{beta}")
        if PBF16:
            for i in range(8):
                a(f"v_lshlrev_b32 v{V_TMP}, 16, v{PB+8*beta+i}")
                a(f"v_and_b32 v{V_TMP+1}, 0xffff0000, v{PB+8*beta+i}")
                a(f"v_add_f32 v{V_O+2*i}, v{V_O+2*i}, v{V_TMP}")
                a(f"v_add_f32 v{V_O+2*i+1}, v{V_O+2*i+1}, v{V_TMP+1}")
        else:
            for i in range(16): a(f"v_add_f32 v{V_O+i}, v{V_O+i}, v{V_O+16*beta+i}")
    for qh in range(2):
        for h in range(2):
            for i in range(2): a(f"v_cvt_pk_bf16_f32 v{V_Q+4*qh+2*h+i}, v{OREG(h,qh)+2*i}, v{OREG(h,qh)+2*i+1}")
    a("s_nop 1")
    for op in ("v_permlane32_swap_b32", "v_permlane16_swap_b32"):
        for qh in range(2):
            for i in range(2): a(f"{op} v{V_Q+4*qh+i}, v{V_Q+4*qh+2+i}")
    a(f"buffer_store_dwordx4 {vr(V_Q,4)}, v{t0}, {sr(S_OUT,4)}, s{S_T2} offen {E('OUTF','')}")
    a(f"buffer_store_dwordx4 {vr(V_Q+4,4)}, v{t0}, {sr(S_OUT,4)}, s{S_KD} offen {E('OUTF','')}")
    a(f"s_or_b32 s{S_T0}, s{S_SET}, s{S_J}")
    a(f"s_or_b32 s{S_T0}, s{S_T0}, s{S_WV}")
    a("s_cbranch_scc1 L_noep")
    a(f"v_mov_b32 v{V_TMP}, s{S_TOK}")
    a(f"v_mov_b32 v{V_TMP+1}, s{S_TOK+1}")
    a("s_mov_b64 exec, 1")
    a(f"buffer_store_dwordx2 {vr(V_TMP,2)}, off, {sr(S_WS,4)}, s{S_T3} sc1")
    a("s_mov_b64 exec, -1")
    a.label("L_noep")
    if E("ENDSPIN"):
        if E("ENDWG"):
            lo, hi = eval(E("ENDWG"))
            a(f"s_cmp_lt_u32 s2, {lo}"); a("s_cbranch_scc1 L_nospin"); a(f"s_cmp_gt_u32 s2, {hi}"); a("s_cbranch_scc1 L_nospin")
        tspin(a, E("ENDSPIN"), "e")
        a.label("L_nospin")
    if STAMPS: a("s_waitcnt vmcnt(0)")
    stamp(a, 55)
    stamp_flush(a)
    a("s_endpgm")

    a.label("L_B_fin")
    a.vmq = []
    stamp(a, 58)
    own_o_lds_addr(a, V_E+1)
    NST = int(E("NST", "4"))
    def outf(m):
        a(f"ds_write_b128 v{V_E+1}, {vr(XREG(m),4)} offset:{m*1024}")
        if m < NST: store_o(a, [m])
    normalize_o(a, outf)
    a("s_waitcnt lgkmcnt(0)")
    stamp(a, 59)
    a("s_barrier")
    stamp(a, 60)
    store_o(a, range(NST, 8))
    setup_vtype_dma(a, V_DW, 10, WSPLIT)
    a.vmwait("ost")
    set_flag(a, 1)
    stamp(a, 61)
    a("s_barrier")
    for op in wo_ops(7) + wo_ops(10) + wo_ops(11): op()
    a("s_barrier")
    for op in wo_ops(12) + wo_ops(13): op()
    a.vmwait("wo7")
    a("s_barrier")
    for op in wo_ops(14) + wo_ops(15): op()
    a.vmwait("wo13")
    a("s_barrier")
    a.vmall()
    stamp(a, 62)
    a("s_barrier")
    stamp_flush(a)
    a("s_endpgm")

    a.label("L_grpB")
    if E("PRIO", "1") == "1": a("s_setprio 1")
    a.vmq = ["X0b"]*4
    common2()
    for nm in planB[-1]:
        for op in tile_ops(nm): op()
    setup_vtype_addr(a, WSLOT(0))
    for r in range(32): a(f"v_mov_b64 {vr(V_O+2*r,2)}, 0")
    token()
    for i in range(8):
        a.vmwait([f"X{i//2}a", f"X{i//2}b", f"A{i}"])
        a("s_barrier")
        stamp(a, 2+i)
        if i % 2 == 0 and False: x_frag_issue(a, i//2)
        for nm in planB.get(i, []):
            for op in tile_ops(nm): op()
        if i % 2 == 0 and True: x_frag_issue(a, i//2)
        if i % 2 == 0:
            a("s_waitcnt lgkmcnt(0)")
            if i < 6: x_addr_move(a, i//2+1, i//2)
            else: x_addr_finish(a, KSLOT(16))
    a.vmwait("p-1")
    stamp(a, 10)
    a("s_barrier")
    stamp(a, 11)
    for nm in planB.get(8, []):
        for op in tile_ops(nm): op()
    a.lq = []
    st = Stream(a, [WSLOT(i) for i in range(8)] + [VSLOT(16)], set())
    w2 = sum((tile_ops(f"B{i}") for i in range(8)), [])
    w2n = eval(E("W2N", "{-1:2,0:2,1:4,2:2,3:2,4:4,5:2,6:2,7:2,8:2,9:4,10:2,11:2}"))
    UPS = int(E("UPS", "10")); U0 = int(E("U0", "1"))
    w2p = 0
    for op in w2[:w2n.get(-1, 0)]: op()
    w2p = w2n.get(-1, 0)
    for g in range(0, 16):
        WIN[0] = int(E("WIN1", "0"))
        nu = UPS if U0 <= g <= 13 else 0
        nu = min(nu, 128 + st.L - st.n)
        tags = [f"p{g}"]
        for t in range(8):
            if st.n <= 16*t + 15 and 16*t < st.n + nu:
                assert w2p >= 4*t + 4, (g, t, w2p)
                tags.append(f"B{t}")
        free_tiles = [t for t in range(8) if st.reads_done(t)]
        a.vmwait(tags)
        if g == 1 and E("MIDSPIN"): tspin(a, E("MIDSPIN"), "m")
        stamp(a, 2*g+12)
        a("s_barrier")
        stamp(a, 2*g+13)
        k = w2n.get(g, 0)
        for x in range(w2p, w2p+k): assert x//4 < 4 or (x//4 - 4) in free_tiles, (g, x)
        ops = w2[w2p:w2p+k] + (pkg_ops(g+2) if not (g == 0 and "V2" in planB.get(8, [])) else kv_ops("K", 3, "p2")); w2p += k
        for kk, op in enumerate(ops):
            op()
            for _ in spread(list(range(nu)), kk, len(ops)): st.unit()
        if g == 14:
            while not st.done(): st.unit()
            q_finalize(a)
    assert w2p == 32 and a.lq == []
    WIN[0] = 0
    a("s_branch L_att_entry")
    a.label("L_end")
    a("s_endpgm")
    att_stubs(a)
    rare(a, 0); rare(a, 1)
    a.label("L_code_end")

def main(fn):
    a = Asm()
    name = NAME + "_kernel"
    a.raw(f"; @launch grid=(256,1,1) block=(512,1,1) lds=163840")
    a.raw('.amdgcn_target "amdgcn-amd-amdhsa--gfx950"')
    a.raw(".text")
    kernel(a, name)
    a.raw('.section .rodata,"a"')
    a.raw(".p2align 6")
    a.raw(f".amdhsa_kernel {name}")
    a.raw(f"  .amdhsa_next_free_vgpr 256"); a.raw(f"  .amdhsa_next_free_sgpr 96"); a.raw(f"  .amdhsa_accum_offset 256")
    a.raw("  .amdhsa_group_segment_fixed_size 0"); a.raw("  .amdhsa_kernarg_size 104"); a.raw("  .amdhsa_user_sgpr_count 2")
    a.raw("  .amdhsa_user_sgpr_kernarg_segment_ptr 1"); a.raw("  .amdhsa_system_sgpr_workgroup_id_x 1"); a.raw(".end_amdhsa_kernel")
    open(fn, "w").write(a.text())

if __name__ == "__main__":
    if len(sys.argv) > 2 and sys.argv[2] == "stamps": STAMPS = True
    main(sys.argv[1] if len(sys.argv) > 1 else "k3.s")
```
